```python
import torch

def _softmax(x, axis=-1):
    return torch.softmax(x, dim=axis)
def _gelu(x):
    return torch.nn.functional.gelu(x, approximate="tanh")
def _silu(x):
    return torch.nn.functional.silu(x)
def _sigmoid(x):
    return torch.sigmoid(x)
def _layernorm(x, axis=-1, eps=1e-5):
    m = x.mean(dim=axis, keepdim=True)
    v = x.var(dim=axis, keepdim=True, unbiased=False)
    return (x - m) / torch.sqrt(v + eps)
def _scatter_add(tgt, idx, src, axis=0):
    return tgt.clone().index_add_(axis, idx, src)
def _segment_sum(src, seg, n):
    out = torch.zeros((n,) + src.shape[1:], dtype=src.dtype)
    return out.index_add_(0, seg, src)
def _pad(x, pw):
    flat = tuple(v for pair in reversed(pw) for v in pair)
    return torch.nn.functional.pad(x, flat)

kernel_name = 'sequential_preLN__gqa_block_cached__swiglu_ffn__decode'

def setup_inputs():

    _w = (lambda a: (lambda t: t.to(torch.bfloat16) if t.is_floating_point() else t)(torch.as_tensor(a)))
    def _A_setup():
        B, Sq, D = 4, 1, 640
        Hq, Hkv, Sk, Dh = 32, 32, 4096, 192
        assert Hq % Hkv == 0, (Hq, Hkv)
        return {
            "x": _w((lambda *s: torch.randn(*s, dtype=torch.bfloat16) * 0.05)(B, Sq, D)),
            "k_cache": _w((lambda *s: torch.randn(*s, dtype=torch.bfloat16) * 3.2)(B, Hkv, Sk, Dh)),
            "v_cache": _w((lambda *s: torch.randn(*s, dtype=torch.bfloat16) * 0.4)(B, Hkv, Sk, Dh)),
            "wq": _w((lambda *s: torch.randn(*s, dtype=torch.bfloat16) * 3.2)(D, Hq * Dh) * (D ** -0.5)),
            "wo": _w((lambda *s: torch.randn(*s, dtype=torch.bfloat16) * 0.4)(Hq * Dh, D) * ((Hq * Dh) ** -0.5)),
        }
    _A_in = _A_setup()

    def _B_setup():
        B, S, D, F = 4, 1, 640, 1536
        return {
            "x": _w((lambda *s: torch.randn(*s, dtype=torch.bfloat16) * 0.05)(B, S, D)),
            "w_gate": _w((lambda *s: torch.randn(*s, dtype=torch.bfloat16) * 0.05)(D, F)),
            "w_up": _w((lambda *s: torch.randn(*s, dtype=torch.bfloat16) * 0.05)(D, F)),
            "w_down": _w((lambda *s: torch.randn(*s, dtype=torch.bfloat16) * 0.05)(F, D)),
        }
    _B_in = _B_setup()

    return {
        "A_x": _A_in["x"],
        "A_k_cache": _A_in["k_cache"],
        "A_v_cache": _A_in["v_cache"],
        "A_wq": _A_in["wq"],
        "A_wo": _A_in["wo"],
        "B_x": _B_in["x"],
        "B_w_gate": _B_in["w_gate"],
        "B_w_up": _B_in["w_up"],
        "B_w_down": _B_in["w_down"],
    }

def reference(A_x, A_k_cache, A_v_cache, A_wq, A_wo, B_x, B_w_gate, B_w_up, B_w_down):
    def _A_ref(x, k_cache, v_cache, wq, wo):
        B, Sq, D = x.shape
        Hq, Dh = 32, 192
        Hkv = k_cache.shape[1]
        rep = Hq // Hkv
        q = (lambda x, *d: x.permute(*d))((x @ wq).reshape(B, Sq, Hq, Dh), 0, 2, 1, 3)
        k = (lambda x, n, axis: torch.repeat_interleave(x, n, dim=axis))(k_cache, rep, axis=1)
        v = (lambda x, n, axis: torch.repeat_interleave(x, n, dim=axis))(v_cache, rep, axis=1)
        scores = torch.einsum("bhqd,bhkd->bhqk", q, k) * (Dh ** -0.5)
        p = _softmax(scores, axis=-1)
        o = torch.einsum("bhqk,bhkd->bhqd", p, v)
        return (lambda x, *d: x.permute(*d))(o, 0, 2, 1, 3).reshape(B, Sq, Hq * Dh) @ wo

    def _B_ref(x, w_gate, w_up, w_down):
        g = _silu(x @ w_gate)
        u = x @ w_up
        return (g * u) @ w_down

    x = A_x
    h = x + _A_ref(_layernorm(x, axis=-1), A_k_cache, A_v_cache, A_wq, A_wo)
    h2 = h + _B_ref(_layernorm(h, axis=-1), B_w_gate, B_w_up, B_w_down)
    return h2
```

```python
import re

KNAME = "sequential_preLN__gqa_block_cached__swiglu_ffn__decode_kernel"

_REG = re.compile(r"\b([vsa])(\d+)\b|\b([vsa])\[(\d+):(\d+)\]|\b(vcc|exec|m0|exec_hi|exec_lo)\b")

TRANS = ("v_exp_f32", "v_log_f32", "v_rcp_f32", "v_rsq_f32", "v_sqrt_f32", "v_sin_f32", "v_cos_f32")


def regs_of(tok):
    out = []
    for m in _REG.finditer(tok):
        if m.group(1):
            out.append(m.group(1) + m.group(2))
        elif m.group(3):
            out += [m.group(3) + str(i) for i in range(int(m.group(4)), int(m.group(5)) + 1)]
        else:
            out.append(m.group(6))
    return out


def split_ops(s):
    ops, depth, cur = [], 0, ""
    for ch in s:
        if ch == "[":
            depth += 1
        if ch == "]":
            depth -= 1
        if ch == "," and depth == 0:
            ops.append(cur.strip())
            cur = ""
        else:
            cur += ch
    if cur.strip():
        ops.append(cur.strip())
    return ops


class Ins:
    def __init__(self, text):
        self.text = text
        t = text.split(";")[0].strip()
        parts = t.split(None, 1)
        self.mn = parts[0]
        rest = parts[1] if len(parts) > 1 else ""
        ops = split_ops(rest)
        self.mods = ""
        if ops:
            last = ops[-1].split(None, 1)
            ops[-1] = last[0]
            self.mods = last[1] if len(last) > 1 else ""
        self.ops = ops
        mn = self.mn
        self.valu = mn.startswith("v_") and not mn.startswith("v_mfma")
        self.mfma = mn.startswith("v_mfma")
        self.salu = mn.startswith("s_")
        self.vmem = mn.startswith(("buffer_", "global_", "flat_"))
        self.ds = mn.startswith("ds_")
        self.trans = mn.replace("_e32", "").replace("_e64", "") in TRANS
        self.dot = mn.startswith("v_dot")
        self.dpp = "_dpp" in mn or "quad_perm" in self.mods or "row_" in self.mods
        self.perml = mn.startswith("v_permlane")
        self.rdlane = mn.startswith(("v_readlane", "v_readfirstlane"))
        self.states = 1
        if mn == "s_nop":
            self.states = int(ops[0], 0) + 1
        self.dst, self.src = [], []
        R = [regs_of(o) for o in ops]
        if self.valu or self.mfma:
            if self.perml:
                self.dst = R[0] + R[1]
                self.src = R[0] + R[1]
            else:
                self.dst = list(R[0])
                k = 1
                if mn.startswith(("v_add_co", "v_sub_co", "v_addc_co", "v_subb_co", "v_div_scale", "v_subrev_co")):
                    self.dst += R[1]
                    k = 2
                for r in R[k:]:
                    self.src += r
                if mn.startswith(("v_fmac", "v_dot2c", "v_writelane", "v_pk_fmac")):
                    self.src += R[0]
                if mn.startswith("v_cndmask") and len(ops) == 3:
                    self.src.append("vcc")
                if mn.startswith("v_div_fmas"):
                    self.src.append("vcc")
        elif self.vmem:
            is_store = "store" in mn or ("atomic" in mn)
            lds = " lds" in (" " + self.mods + " ").replace(" lds ", " lds") or self.mods.endswith("lds") or "_lds_" in mn
            self.lds_dma = lds
            if is_store or lds:
                for r in R:
                    self.src += r
                if "atomic" in mn and "sc0" in self.mods:
                    self.dst = list(R[0])
            else:
                self.dst = list(R[0])
                for r in R[1:]:
                    self.src += r
            if lds:
                self.src.append("m0")
        elif self.ds:
            if mn.startswith(("ds_write", "ds_add", "ds_store")) and "rtn" not in mn:
                for r in R:
                    self.src += r
            else:
                self.dst = list(R[0])
                for r in R[1:]:
                    self.src += r
        elif self.salu:
            if mn.startswith(("s_cmp", "s_cbranch", "s_branch", "s_waitcnt", "s_nop", "s_barrier", "s_sleep",
                              "s_setprio", "s_endpgm", "s_bitcmp")):
                for r in R:
                    self.src += r
            else:
                self.dst = list(R[0]) if R else []
                for r in R[1:]:
                    self.src += r
                if "saveexec" in mn:
                    self.dst.append("exec")
        self.wide_store = self.vmem and ("store" in mn) and ("x3" in mn or "x4" in mn)
        self.store_data = R[0] if self.wide_store and mn.startswith("buffer") else (R[1] if self.wide_store else [])
        if self.mfma:
            self.passes = 8 if "32x32" in mn else 4
            self.srcC = R[3]
            self.srcAB = R[1] + R[2]


def need(p, c):
    n = 0
    pd, cs, cd = set(p.dst), set(c.src), set(c.dst)
    raw = pd & cs
    vraw = {r for r in raw if r[0] in "va" and r != "vcc"}
    sraw = {r for r in raw if r[0] == "s" or r == "vcc"}
    if p.valu:
        if vraw:
            if c.dpp:
                n = max(n, 2)
            if c.rdlane:
                n = max(n, 1)
            if c.perml:
                n = max(n, 2)
            if c.mfma:
                n = max(n, 2)
            if p.trans and not c.trans:
                n = max(n, 1)
            if "sdwa" in p.mn:
                n = max(n, 1)
        if p.dot and ((pd & (cs | cd)) and not (c.mn == p.mn and not (pd & set(sum([regs_of(o) for o in c.ops[1:3]], []))))):
            n = max(n, 3)
        if sraw:
            if c.valu or c.mfma:
                n = max(n, 2)
                if c.mn.startswith(("v_readlane", "v_writelane")):
                    n = max(n, 4)
                if c.mn.startswith("v_div_fmas"):
                    n = max(n, 4)
            if c.vmem:
                n = max(n, 5)
            if c.salu:
                n = max(n, 1)
        if "exec" in pd:
            n = max(n, 5)
    if p.mfma:
        full = {4: 8, 8: 12}[p.passes]
        if c.mfma:
            if pd & set(c.srcAB):
                n = max(n, full)
            if pd & set(c.srcC):
                if not (list(p.dst) == list(c.srcC) and p.passes == c.passes):
                    n = max(n, {4: 6, 8: 10}[p.passes])
        else:
            if pd & (cs | cd):
                n = max(n, full)
            if c.valu and (set(p.srcC) & cd):
                n = max(n, {4: 3, 8: 7}[p.passes])
    if p.wide_store and (set(p.store_data) & cd):
        n = max(n, 2)
    if p.salu and "m0" in pd and "m0" in cs:
        n = max(n, 1)
    return n


class Asm:
    def __init__(self):
        self.lines = []
        self.hist = []
        self.label_heads = {}
        self.seq = []
        self.uid = 0

    def raw(self, s):
        self.lines.append(s)

    def comment(self, s):
        self.lines.append("    ; " + s)

    def label(self, name):
        self.lines.append(name + ":")
        self.label_heads[name] = len(self.seq)

    def newlabel(self, base="L"):
        self.uid += 1
        return "%s_%d" % (base, self.uid)

    def _required(self, hist, c):
        dist = 0
        req = 0
        for p in reversed(hist):
            k = need(p, c)
            if k > dist:
                req = max(req, k - dist)
            dist += p.states
            if dist >= 20:
                break
        return req

    def __call__(self, text):
        for t in text.strip().split("\n"):
            t = t.strip()
            if not t or t.startswith(";"):
                continue
            if t.endswith(":"):
                self.label(t[:-1])
                continue
            self._emit(t)

    def _emit(self, t):
        c = Ins(t)
        req = self._required(self.hist, c)
        while req > 0:
            k = min(req, 16)
            nop = Ins("s_nop %d" % (k - 1))
            self.lines.append("    s_nop %d" % (k - 1))
            self.hist.append(nop)
            self.seq.append(nop)
            req -= k
        self.lines.append("    " + t)
        self.hist.append(c)
        self.seq.append(c)
        if len(self.hist) > 40:
            self.hist = self.hist[-40:]
        if c.mn.startswith(("s_cbranch", "s_branch")):
            tgt = c.ops[0]
            if tgt in self.label_heads:
                h = list(self.hist)
                i = self.label_heads[tgt]
                dist = 0
                for nxt in self.seq[i:i + 20]:
                    r = self._required(h, nxt)
                    if r > 0:
                        raise RuntimeError("hazard across back edge to %s: %s needs %d more" % (tgt, nxt.text, r))
                    h.append(nxt)
            else:
                self.fwd = getattr(self, "fwd", {})
                self.fwd.setdefault(tgt, []).append(list(self.hist))
        if c.mn in ("s_branch", "s_endpgm"):
            self.hist = []

    def check_forward(self):
        for tgt, hists in getattr(self, "fwd", {}).items():
            i = self.label_heads[tgt]
            for h in hists:
                h = list(h)
                for nxt in self.seq[i:i + 20]:
                    r = self._required(h, nxt)
                    if r > 0:
                        raise RuntimeError("hazard across fwd edge to %s: %s needs %d more" % (tgt, nxt.text, r))
                    h.append(nxt)
                    if nxt.mn in ("s_branch", "s_endpgm"):
                        break

    def text(self):
        self.check_forward()
        return "\n".join(self.lines) + "\n"


def wrap(body, header_comments, grid, block, lds, vgpr, sgpr=102, accum=None):
    if accum is None:
        accum = (vgpr + 3) // 4 * 4
    s = header_comments
    s += "; @launch grid=(%d,1,1) block=(%d,1,1) lds=%d\n" % (grid, block, lds)
    s += '.amdgcn_target "amdgcn-amd-amdhsa--gfx950"\n.text\n.globl %s\n.p2align 8\n.type %s,@function\n%s:\n' % (KNAME, KNAME, KNAME)
    s += body
    s += '.section .rodata,"a"\n.p2align 6\n.amdhsa_kernel %s\n' % KNAME
    s += "  .amdhsa_next_free_vgpr %d\n  .amdhsa_next_free_sgpr %d\n  .amdhsa_accum_offset %d\n" % (vgpr, sgpr, accum)
    s += "  .amdhsa_group_segment_fixed_size 0\n  .amdhsa_kernarg_size 96\n  .amdhsa_user_sgpr_count 2\n"
    s += "  .amdhsa_user_sgpr_kernarg_segment_ptr 1\n  .amdhsa_system_sgpr_workgroup_id_x 1\n.end_amdhsa_kernel\n"
    return s
```

```python
import sys
sys.path.insert(0, "work")
from asmlib import *

HEADER = open("sequential_preLN__gqa_block_cached__swiglu_ffn__decode.s.ref").read().split("; Override launch")[0]

QP_OFF = 0x000000
OP_OFF = 0x100000
YP_OFF = 0x200000
HB_OFF = 0x280000
AC_OFF = 0x290000
CT_OFF = 0x2A0000
ST_OFF = 0x800000
WS_SIZE = 0x1000000
OOB = 0x80000000
TASKB = 4096 * 384

L_STAGE = 0
L_XN = 49152
L_QL = L_XN + 5120
L_OL = L_QL + 1536
L_RED = L_OL + 1536
L_CNT = L_RED + 2048
LDS_BYTES = L_CNT + 64

LOG2E = "0x3fb8aa3b"
SCALE = "0x3d93cd3a"
EPS = "0x3727c5ac"
INV640 = "0x3acccccd"
F640 = "0x44200000"

S_WS, S_K, S_V, S_X, S_WQ, S_DBG, S_WO, S_WG, S_WU, S_WD, S_OUT = [f"s[{28+4*i}:{31+4*i}]" for i in range(11)]
sG, sJ, sB = "s72", "s73", "s74"


def gen(D=3, S0=56, PACE=2, stamps=False, spin_g=200000, spin_l=4000000, b0_first=True, prio=True, dump=False):
    NS = 8
    E = NS - D
    assert (S0 - NS) % D == 0
    nA = (S0 - NS) // D - 2
    POOL = 512 - 8 * S0
    A = Asm()
    nst = [0, 0]

    def srd(name, ptr_lo, size, add=None):
        r = int(name[2:name.index(":")])
        if add is None:
            A(f"s_mov_b32 s{r}, s{ptr_lo}")
            A(f"s_mov_b32 s{r+1}, s{ptr_lo+1}")
        else:
            A(f"s_add_u32 s{r}, s{ptr_lo}, {add}")
            A(f"s_addc_u32 s{r+1}, s{ptr_lo+1}, 0")
        A(f"s_mov_b32 s{r+2}, {size}")
        A(f"s_mov_b32 s{r+3}, 0x20000")

    def stamp(k):
        if stamps:
            assert k < 8
            A(f"s_memrealtime s[{84+2*k}:{85+2*k}]")

    def stamp_flush(role, vt):
        if not stamps:
            return
        A("s_waitcnt lgkmcnt(0)")
        for k in range(16):
            A(f"v_mov_b32 v{vt+k}, s{84+k}")
        A("s_lshl_b32 s82, s2, 3")
        A("s_add_u32 s82, s82, s3")
        A("s_lshl_b32 s82, s82, 6")
        A(f"s_add_u32 s82, s82, {ST_OFF}")
        A(f"v_mov_b32 v{vt+16}, 0")
        A("s_mov_b64 exec, 1")
        for k in range(4):
            A(f"buffer_store_dwordx4 v[{vt+4*k}:{vt+4*k+3}], v{vt+16}, {S_WS}, s82 offen offset:{16*k}")
        A("s_mov_b64 exec, -1")

    DPP = "row_mask:0xf bank_mask:0xf"

    def allred16_32(op, x, t):
        A(f"v_mov_b32 v{t}, v{x}")
        A(f"v_permlane16_swap_b32 v{x}, v{t}")
        A(f"{op} v{x}, v{x}, v{t}")
        A(f"v_mov_b32 v{t}, v{x}")
        A(f"v_permlane32_swap_b32 v{x}, v{t}")
        A(f"{op} v{x}, v{x}, v{t}")

    def allred64(op, x, t):
        for pat in ("quad_perm:[1,0,3,2]", "quad_perm:[2,3,0,1]", "row_ror:4", "row_ror:8"):
            A(f"{op}_dpp v{x}, v{x}, v{x} {pat} {DPP}")
        allred16_32(op, x, t)

    def rnd(dst, src):
        A(f"v_cvt_pk_bf16_f32 v{dst}, v{src}, v{src}")
        A(f"v_lshlrev_b32 v{dst}, 16, v{dst}")

    def div640(x, t0, t1):
        A(f"v_mul_f32 v{t0}, {INV640}, v{x}")
        A(f"v_fma_f32 v{t1}, -v{t0}, s80, v{x}")
        A(f"v_mul_f32 v{t1}, {INV640}, v{t1}")
        A(f"v_add_f32 v{x}, v{t0}, v{t1}")

    def layernorm(src, f, t):
        A(f"s_mov_b32 s80, {F640}")
        for u in range(5):
            A(f"v_lshlrev_b32 v{f+2*u}, 16, v{src+u}")
            A(f"v_and_b32 v{f+2*u+1}, 0xffff0000, v{src+u}")
        A(f"v_add_f32 v{t}, v{f}, v{f+1}")
        A(f"v_add_f32 v{t+1}, v{f+2}, v{f+3}")
        A(f"v_add_f32 v{t+2}, v{f+4}, v{f+5}")
        A(f"v_add_f32 v{t+3}, v{f+6}, v{f+7}")
        A(f"v_add_f32 v{t+4}, v{f+8}, v{f+9}")
        A(f"v_add_f32 v{t}, v{t}, v{t+1}")
        A(f"v_add_f32 v{t+2}, v{t+2}, v{t+3}")
        A(f"v_add_f32 v{t}, v{t}, v{t+4}")
        A(f"v_add_f32 v{t}, v{t}, v{t+2}")
        allred64("v_add_f32", t, t + 1)
        div640(t, t + 1, t + 2)
        A(f"v_sub_f32 v{t+2}, v{f}, v{t}")
        A(f"v_mul_f32 v{t+1}, v{t+2}, v{t+2}")
        for i in range(1, 10):
            A(f"v_sub_f32 v{t+2+(i&1)}, v{f+i}, v{t}")
            A(f"v_fmac_f32 v{t+1}, v{t+2+(i&1)}, v{t+2+(i&1)}")
        allred64("v_add_f32", t + 1, t + 2)
        div640(t + 1, t + 2, t + 3)
        rnd(t, t)
        rnd(t + 1, t + 1)
        A(f"v_add_f32 v{t+1}, {EPS}, v{t+1}")
        rnd(t + 1, t + 1)
        A(f"v_sqrt_f32 v{t+1}, v{t+1}")
        rnd(t + 1, t + 1)
        A(f"v_rcp_f32 v{t+2}, v{t+1}")
        for u in range(5):
            a, b = f + 2 * u, f + 2 * u + 1
            A(f"v_sub_f32 v{a}, v{a}, v{t}")
            A(f"v_sub_f32 v{b}, v{b}, v{t}")
            A(f"v_cvt_pk_bf16_f32 v{b}, v{a}, v{b}")
            A(f"v_lshlrev_b32 v{a}, 16, v{b}")
            A(f"v_and_b32 v{b}, 0xffff0000, v{b}")
            A(f"v_mul_f32 v{t+3}, v{a}, v{t+2}")
            A(f"v_mul_f32 v{t+4}, v{b}, v{t+2}")
            A(f"v_fma_f32 v{a}, -v{t+3}, v{t+1}, v{a}")
            A(f"v_fma_f32 v{b}, -v{t+4}, v{t+1}, v{b}")
            A(f"v_fmac_f32 v{t+3}, v{a}, v{t+2}")
            A(f"v_fmac_f32 v{t+4}, v{b}, v{t+2}")
            A(f"v_cvt_pk_bf16_f32 v{src+u}, v{t+3}, v{t+4}")

    def poll(loads, regs, tmp, mask=None, sleep=0):
        Lp, Ld = A.newlabel("L_poll"), A.newlabel("L_pdone")
        A(f"s_mov_b32 s81, {spin_g}")
        A.label(Lp)
        if mask is not None:
            A(f"s_mov_b64 exec, {mask}")
        for l in loads:
            A(l)
        A("s_waitcnt vmcnt(0)")
        rs = list(regs)
        if len(rs) == 1:
            A(f"v_cmp_eq_u32 vcc, -1, v{rs[0]}")
        else:
            if len(rs) == 2:
                A(f"v_max_u32 v{tmp}, v{rs[0]}, v{rs[1]}")
                rs = []
            else:
                A(f"v_max3_u32 v{tmp}, v{rs[0]}, v{rs[1]}, v{rs[2]}")
                rs = rs[3:]
            while rs:
                if len(rs) >= 2:
                    A(f"v_max3_u32 v{tmp}, v{tmp}, v{rs[0]}, v{rs[1]}")
                    rs = rs[2:]
                else:
                    A(f"v_max_u32 v{tmp}, v{tmp}, v{rs[0]}")
                    rs = []
            A(f"v_cmp_eq_u32 vcc, -1, v{tmp}")
        if mask is not None:
            A("s_mov_b64 exec, -1")
        A(f"s_cbranch_vccz {Ld}")
        if sleep:
            A(f"s_sleep {sleep}")
        A("s_sub_u32 s81, s81, 1")
        A("s_cmp_lg_u32 s81, 0")
        A(f"s_cbranch_scc1 {Lp}")
        A.label(Ld)

    def lds_wait(addr_v, val_v, off, target):
        Lp, Ld = A.newlabel("L_lw"), A.newlabel("L_lwd")
        A(f"s_mov_b32 s81, {spin_l}")
        A.label(Lp)
        A(f"ds_read_b32 v{val_v}, v{addr_v} offset:{off}")
        A("s_waitcnt lgkmcnt(0)")
        A(f"v_readfirstlane_b32 s79, v{val_v}")
        A(f"s_cmp_ge_u32 s79, {target}")
        A(f"s_cbranch_scc1 {Ld}")
        A("s_sleep 1")
        A("s_sub_u32 s81, s81, 1")
        A("s_cmp_lg_u32 s81, 0")
        A(f"s_cbranch_scc1 {Lp}")
        A.label(Ld)

    def lds_inc(zero_v, one_v, off):
        A("s_mov_b64 exec, 1")
        A(f"ds_add_u32 v{zero_v}, v{one_v} offset:{off}")
        A("s_mov_b64 exec, -1")

    A("s_cmp_ge_u32 s2, 256")
    A("s_cbranch_scc1 L_end")
    A("s_load_dwordx16 s[4:19], s[0:1], 0")
    A("s_load_dwordx8 s[20:27], s[0:1], 64")
    A("v_lshrrev_b32 v1, 6, v0")
    A("v_and_b32 v0, 63, v0")
    A("v_readfirstlane_b32 s3, v1")
    A(f"s_lshr_b32 {sG}, s2, 3")
    A(f"s_and_b32 {sJ}, s2, 7")
    A(f"s_and_b32 {sB}, s3, 3")
    if stamps:
        for k in range(16):
            A(f"s_mov_b32 s{84+k}, 0")
    A("s_cmp_lt_u32 s3, 4")
    A("s_cbranch_scc1 L_helper")

    vOFF, vZ = 1, 2
    T = 3
    vM, vL = 11, 12
    vAL, vP = 14, 16
    vU = 18
    vQ = 24
    vACC = 36
    vTK = 60
    vSLOT = 64
    sOFF = "s75"
    sCT = "s76"
    sSL = 60

    def kreg(slot, i):
        return vSLOT + slot * 24 + 4 * i

    def vreg(slot, i):
        return vSLOT + slot * 24 + 12 + 4 * i

    vmq = []

    def vwait(tag):
        i = max(k for k, t in enumerate(vmq) if t == tag)
        n = len(vmq) - 1 - i
        assert n <= 63
        A(f"s_waitcnt vmcnt({n})")
        del vmq[:i + 1]

    def issueK(slot, soff):
        for i in range(3):
            r = kreg(slot, i)
            A(f"buffer_load_dwordx4 v[{r}:{r+3}], v{vOFF}, {S_K}, {soff} offen offset:{128*i} nt")
            vmq.append(("K", slot))

    def issueV(slot, soff):
        for i in range(3):
            r = vreg(slot, i)
            A(f"buffer_load_dwordx4 v[{r}:{r+3}], v{vOFF}, {S_V}, {soff} offen offset:{128*i} nt")
            vmq.append(("V", slot))

    def atomic(slot):
        A(f"v_mov_b32 v{vTK+slot}, 1")
        A("s_mov_b64 exec, 1")
        A(f"buffer_atomic_add v{vTK+slot}, v{vZ}, {S_WS}, {sCT} offen sc0")
        A("s_mov_b64 exec, -1")
        vmq.append(("T", slot))

    def consumeK(slot, mid=None):
        t0, t1, t2, t3, t4 = T, T + 1, T + 2, T + 3, T + 4
        k = kreg(slot, 0)
        for e in range(6):
            A(f"v_dot2_f32_bf16 v{t0}, v{k+e}, v{vQ+e}, " + ("0" if e == 0 else f"v{t0}"))
            A(f"v_dot2_f32_bf16 v{t1}, v{k+6+e}, v{vQ+6+e}, " + ("0" if e == 0 else f"v{t1}"))
        if mid:
            mid()
        A(f"v_add_f32 v{t0}, v{t0}, v{t1}")
        A(f"v_add_f32_dpp v{t0}, v{t0}, v{t0} quad_perm:[1,0,3,2] {DPP}")
        A(f"v_add_f32_dpp v{t0}, v{t0}, v{t0} quad_perm:[2,3,0,1] {DPP}")
        A(f"v_add_f32_dpp v{t0}, v{t0}, v{t0} row_half_mirror {DPP}")
        rnd(t1, t0)
        A(f"v_mul_f32 v{t1}, {SCALE}, v{t1}")
        rnd(t1, t1)
        A(f"v_max_f32 v{t2}, v{vM}, v{t1}")
        A(f"v_sub_f32 v{t3}, v{vM}, v{t2}")
        A(f"v_sub_f32 v{t4}, v{t1}, v{t2}")
        A(f"v_mul_f32 v{t3}, {LOG2E}, v{t3}")
        A(f"v_mul_f32 v{t4}, {LOG2E}, v{t4}")
        A(f"v_exp_f32 v{vAL}, v{t3}")
        A(f"v_exp_f32 v{vP}, v{t4}")
        A(f"v_mov_b32 v{vM}, v{t2}")
        A(f"v_fma_f32 v{vL}, v{vL}, v{vAL}, v{vP}")
        for a in range(12):
            r = vACC + 2 * a
            A(f"v_pk_mul_f32 v[{r}:{r+1}], v[{r}:{r+1}], v[{vAL}:{vAL+1}] op_sel_hi:[1,0]")

    def consumeV(slot):
        v = vreg(slot, 0)
        for a in range(12):
            u = vU + 2 * (a & 1)
            r = vACC + 2 * a
            A(f"v_lshlrev_b32 v{u}, 16, v{v+a}")
            A(f"v_and_b32 v{u+1}, 0xffff0000, v{v+a}")
            A(f"v_pk_fma_f32 v[{r}:{r+1}], v[{u}:{u+1}], v[{vP}:{vP+1}], v[{r}:{r+1}] op_sel_hi:[1,0,1]")

    stamp(0)
    A(f"v_lshrrev_b32 v{T}, 3, v0")
    A(f"v_mul_u32_u24 v{T}, 384, v{T}")
    A(f"v_and_b32 v{T+1}, 7, v0")
    A(f"v_lshlrev_b32 v{T+2}, 4, v{T+1}")
    A(f"v_add_u32 v{vOFF}, v{T}, v{T+2}")
    A(f"v_mov_b32 v{vZ}, 0")
    A(f"s_lshl_b32 s77, {sB}, 5")
    A(f"s_add_u32 s77, s77, {sG}")
    A(f"s_mul_i32 s78, s77, {TASKB}")
    A(f"s_mul_i32 {sOFF}, {sJ}, 3072")
    A(f"s_lshl_b32 {sCT}, s77, 8")
    A(f"s_add_u32 {sCT}, {sCT}, {CT_OFF}")
    A(f"v_mov_b32 v{vM}, 0xff7fffff")
    A(f"v_mov_b32 v{vL}, 0")
    for a in range(24):
        A(f"v_mov_b32 v{vACC+a}, 0")
    A("s_waitcnt lgkmcnt(0)")
    srd(S_K, 6, TASKB, "s78")
    srd(S_V, 8, TASKB, "s78")
    srd(S_WS, 26, WS_SIZE)
    srd(S_DBG, 24, 256)
    A("s_cmp_lg_u32 s3, 4")
    A("s_cbranch_scc1 L_s_noreset")
    R4 = vSLOT + 7 * 24
    for k in range(4):
        A(f"v_mov_b32 v{R4+k}, -1")
    A(f"v_lshlrev_b32 v{T}, 4, v0")
    A("s_mul_i32 s78, s2, 3072")
    for k in range(3):
        A(f"buffer_store_dwordx4 v[{R4}:{R4+3}], v{T}, {S_WS}, s78 offen offset:{1024*k} sc1")
    A(f"s_lshl_b32 s78, s2, 10")
    A(f"s_add_u32 s78, s78, {OP_OFF}")
    for b in range(4):
        A(f"buffer_store_dwordx4 v[{R4}:{R4+3}], v{T}, {S_WS}, s78 offen sc1")
        A(f"s_add_u32 s78, s78, {32*8*1024}")
    A("s_and_b32 s78, s2, 31")
    A("s_mul_i32 s78, s78, 10240")
    A("s_lshr_b32 s79, s2, 5")
    A("s_lshl_b32 s79, s79, 11")
    A("s_add_u32 s78, s78, s79")
    A(f"s_add_u32 s78, s78, {YP_OFF}")
    A("s_cmp_lt_u32 s2, 160")
    A(f"s_cselect_b32 s78, s78, {OOB}")
    for k in range(2):
        A(f"buffer_store_dwordx4 v[{R4}:{R4+3}], v{T}, {S_WS}, s78 offen offset:{1024*k} sc1")
    A("s_sub_u32 s79, s2, 160")
    A("s_lshl_b32 s78, s79, 4")
    A(f"s_add_u32 s78, s78, {HB_OFF}")
    A("s_cmp_lt_u32 s79, 80")
    A(f"s_cselect_b32 s78, s78, {OOB}")
    A(f"v_mul_u32_u24 v{T+1}, 1280, v0")
    A("s_mov_b64 exec, 0xf")
    A(f"buffer_store_dwordx4 v[{R4}:{R4+3}], v{T+1}, {S_WS}, s78 offen sc1")
    A("s_mov_b64 exec, -1")
    A("s_and_b32 s78, s79, 7")
    A("s_mul_i32 s78, s78, 12")
    A("s_lshr_b32 s80, s79, 3")
    A("s_add_u32 s78, s78, s80")
    A("s_lshl_b32 s78, s78, 5")
    A(f"s_add_u32 s78, s78, {AC_OFF}")
    A("s_cmp_lt_u32 s79, 96")
    A(f"s_cselect_b32 s78, s78, {OOB}")
    A(f"v_lshrrev_b32 v{T+1}, 1, v0")
    A(f"v_mul_u32_u24 v{T+1}, 3072, v{T+1}")
    A(f"v_and_b32 v{T+2}, 1, v0")
    A(f"v_lshlrev_b32 v{T+2}, 4, v{T+2}")
    A(f"v_add_u32 v{T+1}, v{T+1}, v{T+2}")
    A("s_mov_b64 exec, 0xff")
    A(f"buffer_store_dwordx4 v[{R4}:{R4+3}], v{T+1}, {S_WS}, s78 offen sc1")
    A(f"s_lshl_b32 s78, {sJ}, 5")
    A(f"s_add_u32 s78, s78, {sG}")
    A("s_lshl_b32 s78, s78, 8")
    A(f"s_add_u32 s78, s78, {CT_OFF}")
    A(f"s_cmp_lt_u32 {sJ}, 4")
    A(f"s_cselect_b32 s78, s78, {OOB}")
    A("s_mov_b64 exec, 1")
    A(f"buffer_store_dword v{vZ}, v{vZ}, {S_WS}, s78 offen sc1")
    A("s_mov_b64 exec, -1")
    A.label("L_s_noreset")
    A("s_barrier")
    slot_of = lambda n: n
    for n in range(NS):
        if n >= PACE:
            vwait(("V", slot_of(n - PACE)))
        issueK(slot_of(n), sOFF)
        issueV(slot_of(n), sOFF)
        A(f"s_add_u32 {sOFF}, {sOFF}, {8*3072}")
        if n == PACE - 1:
            A("s_cmp_lg_u32 s3, 4")
            A("s_cbranch_scc1 L_s_noflag")
            A(f"s_waitcnt vmcnt({6*PACE})")
            A(f"v_mov_b32 v{T}, 1")
            A("s_mov_b64 exec, 1")
            A(f"buffer_store_byte v{T}, v{vZ}, {S_DBG}, s2 offen sc1")
            A("s_mov_b64 exec, -1")
            A.label("L_s_noflag")
    stamp(1)
    lds_wait(vZ, T, L_CNT + 4, 4)
    A(f"v_and_b32 v{T}, 7, v0")
    A(f"v_lshlrev_b32 v{T}, 4, v{T}")
    A(f"s_mul_i32 s78, {sB}, 384")
    A(f"v_add_u32 v{T}, s78, v{T}")
    for i in range(3):
        A(f"ds_read_b128 v[{vQ+4*i}:{vQ+4*i+3}], v{T} offset:{L_QL+128*i}")
    A("s_waitcnt lgkmcnt(0)")
    stamp(2)

    def vwait_opt(tag):
        if tag in vmq:
            vwait(tag)

    def static_step(slot, with_atomic=False, save=False):
        vwait_opt(("K", slot))

        def mid():
            if with_atomic:
                atomic(slot)
            issueK(slot, sOFF)
        consumeK(slot, mid)
        idx = [k for k, t in enumerate(vmq) if t == ("V", slot)]
        if idx:
            i = idx[2]
            A(f"s_waitcnt vmcnt({len(vmq)-1-i})")
            del vmq[:i + 1]
        consumeV(slot)
        issueV(slot, sOFF)
        if save:
            A(f"s_mov_b32 s{sSL+slot}, {sOFF}")
        A(f"s_add_u32 {sOFF}, {sOFF}, {8*3072}")

    for s in range(D):
        static_step(s)
    for s in range(D, NS):
        vwait_opt(("K", s))
        consumeK(s)
        vwait_opt(("V", s))
        consumeV(s)
    if nA > 0:
        A(f"s_mov_b32 s77, {nA}")
        A.label("L_loopA")
        shape = list(vmq)
        for s in range(D):
            static_step(s)
        assert vmq == shape, (vmq, shape)
        A("s_sub_u32 s77, s77, 1")
        A("s_cmp_lg_u32 s77, 0")
        A("s_cbranch_scc1 L_loopA")
    for s in range(D):
        static_step(s, with_atomic=True, save=True)
    stamp(3)
    A.label("L_loopB")
    shape = list(vmq)
    for s in range(D):
        A(f"s_cmp_ge_u32 s{sSL+s}, {TASKB}")
        A("s_cbranch_scc1 L_s_done")
        vwait(("K", s))
        A(f"v_readfirstlane_b32 s78, v{vTK+s}")

        def mid(s=s):
            A(f"s_min_u32 s78, s78, {POOL}")
            A(f"s_add_u32 s78, s78, {8*S0}")
            A(f"s_mul_i32 s{sSL+s}, s78, 3072")
            atomic(s)
            issueK(s, f"s{sSL+s}")
        consumeK(s, mid)
        idx = [k for k, t in enumerate(vmq) if t == ("V", s)]
        i = idx[2]
        A(f"s_waitcnt vmcnt({len(vmq)-1-i})")
        del vmq[:i + 1]
        consumeV(s)
        issueV(s, f"s{sSL+s}")
    assert vmq == shape, (vmq, shape)
    A("s_branch L_loopB")
    A.label("L_s_done")
    stamp(4)
    t0, t1, t2 = T, T + 1, T + 2
    A(f"v_max_f32_dpp v{t0}, v{vM}, v{vM} row_ror:8 {DPP}")
    allred16_32("v_max_f32", t0, t1)
    A(f"v_sub_f32 v{t1}, v{vM}, v{t0}")
    A(f"v_mul_f32 v{t1}, {LOG2E}, v{t1}")
    A(f"v_exp_f32 v{vAL}, v{t1}")
    A(f"v_mul_f32 v{vL}, v{vL}, v{vAL}")
    for a in range(12):
        r = vACC + 2 * a
        A(f"v_pk_mul_f32 v[{r}:{r+1}], v[{r}:{r+1}], v[{vAL}:{vAL+1}] op_sel_hi:[1,0]")
    A(f"v_add_f32_dpp v{vL}, v{vL}, v{vL} row_ror:8 {DPP}")
    allred16_32("v_add_f32", vL, t1)
    for a in range(12):
        A(f"v_permlane32_swap_b32 v{vACC+a}, v{vACC+12+a}")
    for a in range(12):
        A(f"v_add_f32 v{vACC+a}, v{vACC+a}, v{vACC+12+a}")
    for a in range(6):
        A(f"v_permlane16_swap_b32 v{vACC+a}, v{vACC+6+a}")
    for a in range(6):
        A(f"v_add_f32 v{vACC+a}, v{vACC+a}, v{vACC+6+a}")
    A(f"v_and_b32 v{t1}, 8, v0")
    A(f"v_cmp_ne_u32 vcc, 0, v{t1}")
    OUTQ = vQ
    for r in range(3):
        A(f"v_cndmask_b32 v{vU+r}, v{vACC+3+r}, v{vACC+r}, vcc")
        A(f"v_cndmask_b32 v{OUTQ+r}, v{vACC+r}, v{vACC+3+r}, vcc")
    for r in range(3):
        A(f"v_add_f32_dpp v{OUTQ+r}, v{vU+r}, v{OUTQ+r} row_ror:8 {DPP}")
    A(f"v_and_b32 v{t1}, 1, v0")
    A(f"v_cmp_ne_u32 vcc, 0, v{t1}")
    A(f"v_cndmask_b32 v{OUTQ+3}, v{t0}, v{vL}, vcc")
    for r in range(4):
        A(f"v_min_u32 v{OUTQ+r}, -2, v{OUTQ+r}")
    A(f"s_lshl_b32 s78, {sB}, 8")
    A("s_add_u32 s78, s78, s2")
    A("s_lshl_b32 s78, s78, 10")
    A(f"s_add_u32 s78, s78, {OP_OFF}")
    A(f"v_lshlrev_b32 v{t1}, 4, v0")
    A(f"buffer_store_dwordx4 v[{OUTQ}:{OUTQ+3}], v{t1}, {S_WS}, s78 offen sc1")
    stamp(5)
    A("s_barrier")
    stamp_flush(0, 36)
    A("s_endpgm")

    A.label("L_helper")
    stamp(0)
    if prio:
        A("s_setprio 2")
    hZ, hONE, hL4, hL16 = 1, 2, 3, 4
    hX = 8
    hF = 16
    hT = 26
    hA = 32
    hD = 80
    hB = 92
    hG = 128
    hW1 = 160
    hW2 = 208
    hAD = 5
    A(f"v_mov_b32 v{hZ}, 0")
    A(f"v_mov_b32 v{hONE}, 1")
    A(f"v_lshlrev_b32 v{hL4}, 2, v0")
    A(f"v_lshlrev_b32 v{hL16}, 4, v0")
    A(f"v_mul_u32_u24 v{hT}, 43, v0")
    A(f"v_lshrrev_b32 v{hT}, 8, v{hT}")
    A(f"v_mul_u32_u24 v{hT+1}, 6, v{hT}")
    A(f"v_sub_u32 v{hT+1}, v0, v{hT+1}")
    A(f"v_mul_u32_u24 v{hT}, 12288, v{hT}")
    A(f"v_lshlrev_b32 v{hT+1}, 4, v{hT+1}")
    A(f"v_add_u32 v{hT}, v{hT}, v{hT+1}")
    A("s_mul_i32 s75, s3, 1280")
    A(f"s_mul_i32 s76, {sJ}, {80*12288}")
    A(f"s_mul_i32 s77, {sG}, 384")
    A("s_add_u32 s76, s76, s77")
    A("s_mul_i32 s77, s3, 96")
    A("s_add_u32 s76, s76, s77")
    A("s_mul_i32 s83, s3, 12288")
    A("s_waitcnt lgkmcnt(0)")
    srd(S_X, 4, 5120)
    srd(S_WQ, 10, 640 * 6144 * 2)
    for u in range(5):
        A(f"buffer_load_dword v{hX+u}, v{hL4}, {S_X}, s75 offen offset:{256*u}")
    A("s_mov_b32 s78, -1")
    A("s_mov_b32 s79, 0x0fffffff")
    A("s_mov_b64 exec, s[78:79]")
    for u in range(8):
        A(f"s_add_u32 m0, s83, {960*u}")
        A(f"buffer_load_dwordx4 v{hT}, {S_WQ}, s76 offen nt lds")
        A(f"s_add_u32 s76, s76, {10*12288}")
    A("s_mov_b64 exec, -1")
    A("v_mov_b32 v6, 0")
    A("v_mov_b32 v7, 0")
    A(f"ds_write_b64 v{hZ}, v[6:7] offset:{L_CNT}")
    srd(S_WS, 26, WS_SIZE)
    srd(S_DBG, 24, 256)
    srd(S_WO, 12, 6144 * 640 * 2)
    srd(S_WG, 16, 640 * 1536 * 2)
    srd(S_WU, 18, 640 * 1536 * 2)
    srd(S_WD, 20, 1536 * 640 * 2)
    srd(S_OUT, 22, 5120)
    A("s_waitcnt lgkmcnt(0)")
    A("s_barrier")
    A("s_waitcnt vmcnt(8)")
    layernorm(hX, hF, hT)
    A(f"v_add_u32 v{hAD}, s75, v{hL4}")
    for u in range(5):
        A(f"ds_write_b32 v{hAD}, v{hX+u} offset:{L_XN+256*u}")
    A("s_waitcnt lgkmcnt(0)")
    lds_inc(hZ, hONE, L_CNT)
    A(f"v_lshrrev_b32 v{hT}, 4, v0")
    A(f"v_and_b32 v{hT+1}, 3, v0")
    A(f"v_mul_u32_u24 v{hAD}, 1280, v{hT+1}")
    A(f"v_lshlrev_b32 v{hT+2}, 3, v{hT}")
    A(f"v_add_u32 v{hAD}, v{hAD}, v{hT+2}")
    A(f"s_mul_i32 s77, {sJ}, 160")
    A(f"v_add_u32 v{hAD}, s77, v{hAD}")
    A(f"v_bfe_u32 v{hT+2}, v0, 2, 2")
    A(f"v_lshlrev_b32 v{hT+3}, 2, v{hT}")
    A(f"v_add_u32 v{hT+3}, v{hT+3}, v{hT+2}")
    A(f"v_mul_u32_u24 v{hAD+1}, 96, v{hT+3}")
    A(f"v_lshlrev_b32 v{hT+1}, 3, v{hT+1}")
    A(f"v_add_u32 v{hAD+1}, v{hAD+1}, v{hT+1}")
    A(f"v_add_u32 v{hAD+1}, s83, v{hAD+1}")
    lds_wait(hZ, hT, L_CNT, 4)
    for t in range(5):
        A(f"ds_read_b64 v[{hA+2*t}:{hA+2*t+1}], v{hAD} offset:{L_XN+32*t}")
    for k in range(12):
        A(f"v_mov_b32 v{hD+k}, 0")
    A("s_waitcnt vmcnt(0)")
    for tt in range(3):
        for t in range(5):
            r = hB + 2 * (tt * 5 + t)
            A(f"ds_read_b64_tr_b16 v[{r}:{r+1}], v{hAD+1} offset:{16*96*t+32*tt}")
    for tt in range(3):
        A(f"s_waitcnt lgkmcnt({10-5*tt})")
        for t in range(5):
            r = hB + 2 * (tt * 5 + t)
            A(f"v_mfma_f32_16x16x16_bf16 v[{hD+4*tt}:{hD+4*tt+3}], v[{hA+2*t}:{hA+2*t+1}], v[{r}:{r+1}], v[{hD+4*tt}:{hD+4*tt+3}]")
    A("s_mul_i32 s76, s2, 3072")
    A("s_mul_i32 s77, s3, 768")
    A("s_add_u32 s76, s76, s77")
    for k in range(12):
        A(f"v_min_u32 v{hD+k}, -2, v{hD+k}")
    A("s_mov_b64 exec, 0xffff")
    for tt in range(3):
        A(f"buffer_store_dwordx4 v[{hD+4*tt}:{hD+4*tt+3}], v{hL16}, {S_WS}, s76 offen offset:{256*tt} sc1")
    A("s_mov_b64 exec, -1")
    stamp(1)
    Lp, Ld = "L_gf", "L_gfd"
    A(f"s_lshl_b32 s76, {sG}, 3")
    A(f"s_mov_b32 s81, {spin_g}")
    A("s_mov_b32 s80, 0x01010101")
    A.label(Lp)
    A(f"buffer_load_dwordx2 v[{hT}:{hT+1}], v{hZ}, {S_DBG}, s76 offen sc1")
    A("s_waitcnt vmcnt(0)")
    A(f"v_and_b32 v{hT}, v{hT}, v{hT+1}")
    A(f"v_cmp_ne_u32 vcc, s80, v{hT}")
    A(f"s_cbranch_vccz {Ld}")
    A("s_sleep 1")
    A("s_sub_u32 s81, s81, 1")
    A("s_cmp_lg_u32 s81, 0")
    A(f"s_cbranch_scc1 {Lp}")
    A.label(Ld)
    A(f"s_mul_i32 s76, {sG}, {8*3072}")
    A("s_add_u32 s76, s76, s77")
    A("s_add_u32 s77, s76, 12288")
    A("s_mov_b32 s78, -1")
    A("s_mov_b32 s79, 0xffff")
    loads = []
    for jj in range(8):
        so = "s76" if jj < 4 else "s77"
        loads.append((jj, so))
    A("s_add_u32 s75, s76, 6144")
    A("s_add_u32 s82, s77, 6144")
    lt = []
    for jj in range(8):
        so = ["s76", "s76", "s75", "s75", "s77", "s77", "s82", "s82"][jj]
        lt.append(f"buffer_load_dwordx4 v[{hG+4*jj}:{hG+4*jj+3}], v{hL16}, {S_WS}, {so} offen offset:{3072*(jj&1)} sc1")
    poll(lt, range(hG, hG + 32), hT, mask="s[78:79]")
    for jj in range(1, 8):
        for b in range(4):
            A(f"v_add_f32 v{hG+b}, v{hG+b}, v{hG+4*jj+b}")
    A(f"v_cvt_pk_bf16_f32 v{hG+4}, v{hG}, v{hG+1}")
    A(f"v_cvt_pk_bf16_f32 v{hG+5}, v{hG+2}, v{hG+3}")
    A(f"v_lshlrev_b32 v{hAD}, 1, v0")
    A("s_mul_i32 s76, s3, 96")
    A(f"v_add_u32 v{hAD}, s76, v{hAD}")
    A("s_mov_b64 exec, s[78:79]")
    A(f"ds_write_b16 v{hAD}, v{hG+4} offset:{L_QL}")
    A(f"ds_write_b16_d16_hi v{hAD}, v{hG+4} offset:{L_QL+384}")
    A(f"ds_write_b16 v{hAD}, v{hG+5} offset:{L_QL+768}")
    A(f"ds_write_b16_d16_hi v{hAD}, v{hG+5} offset:{L_QL+1152}")
    A("s_mov_b64 exec, -1")
    A("s_waitcnt lgkmcnt(0)")
    lds_inc(hZ, hONE, L_CNT + 4)
    stamp(2)
    if prio:
        A("s_setprio 0")
    A(f"s_mov_b32 s81, {spin_g}")
    A.label("L_af")
    A(f"buffer_load_dword v{hT}, v{hL4}, {S_DBG}, 0 offen sc1")
    A("s_waitcnt vmcnt(0)")
    A(f"v_cmp_ne_u32 vcc, s80, v{hT}")
    A("s_cbranch_vccz L_afd")
    A("s_sleep 8")
    A("s_sub_u32 s81, s81, 1")
    A("s_cmp_lg_u32 s81, 0")
    A("s_cbranch_scc1 L_af")
    A.label("L_afd")

    def tr_addr(dst, rowbytes):
        A(f"v_lshrrev_b32 v{hT}, 4, v0")
        A(f"v_lshlrev_b32 v{hT}, 3, v{hT}")
        A(f"v_bfe_u32 v{hT+1}, v0, 2, 2")
        A(f"v_add_u32 v{hT}, v{hT}, v{hT+1}")
        A(f"v_mul_u32_u24 v{dst}, {rowbytes}, v{hT}")
        A(f"v_and_b32 v{hT+1}, 3, v0")
        A(f"v_lshlrev_b32 v{hT+1}, 3, v{hT+1}")
        A(f"v_add_u32 v{dst}, v{dst}, v{hT+1}")
        A(f"v_add_u32 v{dst}, s83, v{dst}")

    def dma(srdname, voff, soff, n, gstride, lds0=0):
        for u in range(n):
            A(f"s_add_u32 m0, s83, {lds0+1024*u}")
            A(f"buffer_load_dwordx4 v{voff}, {srdname}, {soff} offen nt lds")
            A(f"s_add_u32 {soff}, {soff}, {gstride}")

    A("s_cmp_ge_u32 s2, 160")
    A("s_cbranch_scc1 L_pf_ffn1")
    A(f"v_lshrrev_b32 v{hAD}, 2, v0")
    A(f"v_mul_u32_u24 v{hAD}, 1280, v{hAD}")
    A(f"v_and_b32 v{hT}, 3, v0")
    A(f"v_lshlrev_b32 v{hT}, 4, v{hT}")
    A(f"v_add_u32 v{hAD}, v{hAD}, v{hT}")
    A("s_and_b32 s76, s2, 31")
    A(f"s_mul_i32 s76, s76, {192*1280}")
    A("s_lshr_b32 s77, s2, 5")
    A("s_lshl_b32 s77, s77, 8")
    A("s_add_u32 s76, s76, s77")
    A("s_lshl_b32 s77, s3, 6")
    A("s_add_u32 s76, s76, s77")
    dma(S_WO, hAD, "s76", 12, 16 * 1280)
    tr_addr(hAD + 1, 64)
    A("s_waitcnt vmcnt(0)")
    for tt in range(2):
        for t in range(6):
            for hf in range(2):
                r = hW1 + 4 * (tt * 6 + t) + 2 * hf
                A(f"ds_read_b64_tr_b16 v[{r}:{r+1}], v{hAD+1} offset:{(32*t+4*hf)*64+32*tt}")
    A("s_waitcnt lgkmcnt(0)")
    A("s_cmp_ge_u32 s2, 40")
    A("s_cbranch_scc1 L_pf_done")
    A(f"v_lshrrev_b32 v{hAD}, 1, v0")
    A(f"v_mul_u32_u24 v{hAD}, 1280, v{hAD}")
    A(f"v_and_b32 v{hT}, 1, v0")
    A(f"v_lshlrev_b32 v{hT}, 4, v{hT}")
    A(f"v_add_u32 v{hAD}, v{hAD}, v{hT}")
    A(f"s_mul_i32 s76, {sJ}, 5")
    A(f"s_add_u32 s76, s76, {sG}")
    A("s_lshl_b32 s76, s76, 5")
    A(f"s_mul_i32 s77, s3, {384*1280}")
    A("s_add_u32 s76, s76, s77")
    dma(S_WD, hAD, "s76", 12, 32 * 1280)
    tr_addr(hAD + 1, 32)
    A("s_waitcnt vmcnt(0)")
    for t in range(12):
        for hf in range(2):
            r = hW2 + 4 * t + 2 * hf
            A(f"ds_read_b64_tr_b16 v[{r}:{r+1}], v{hAD+1} offset:{(32*t+4*hf)*32}")
    A("s_waitcnt lgkmcnt(0)")
    A("s_branch L_pf_done")
    A.label("L_pf_ffn1")
    A(f"v_lshrrev_b32 v{hAD}, 1, v0")
    A(f"v_mul_u32_u24 v{hAD}, 3072, v{hAD}")
    A(f"v_and_b32 v{hT}, 1, v0")
    A(f"v_lshlrev_b32 v{hT}, 4, v{hT}")
    A(f"v_add_u32 v{hAD}, v{hAD}, v{hT}")
    A(f"s_mul_i32 s76, {sJ}, 12")
    A(f"s_add_u32 s76, s76, {sG}")
    A("s_sub_u32 s76, s76, 20")
    A("s_lshl_b32 s76, s76, 5")
    A(f"s_mul_i32 s77, s3, {160*3072}")
    A("s_add_u32 s76, s76, s77")
    A("s_mov_b32 s77, s76")
    dma(S_WG, hAD, "s76", 5, 32 * 3072)
    dma(S_WU, hAD, "s77", 5, 32 * 3072, lds0=5120)
    tr_addr(hAD + 1, 32)
    A("s_waitcnt vmcnt(0)")
    for tile in range(2):
        for t in range(5):
            for hf in range(2):
                r = hW1 + 4 * (tile * 5 + t) + 2 * hf
                A(f"ds_read_b64_tr_b16 v[{r}:{r+1}], v{hAD+1} offset:{5120*tile+(32*t+4*hf)*32}")
    A("s_waitcnt lgkmcnt(0)")
    A.label("L_pf_done")

    hAF384, hAF1280, hOD = 122, 123, 124
    A(f"v_and_b32 v{hT}, 3, v0")
    A(f"v_lshrrev_b32 v{hT+1}, 4, v0")
    A(f"v_lshlrev_b32 v{hT+1}, 4, v{hT+1}")
    A(f"v_mul_u32_u24 v{hAF384}, 384, v{hT}")
    A(f"v_add_u32 v{hAF384}, v{hAF384}, v{hT+1}")
    A(f"v_mul_u32_u24 v{hAF1280}, 1280, v{hT}")
    A(f"v_add_u32 v{hAF1280}, v{hAF1280}, v{hT+1}")
    A(f"v_lshrrev_b32 v{hT}, 3, v0")
    A(f"v_mul_u32_u24 v{hT}, 3, v{hT}")
    A(f"v_and_b32 v{hT+1}, 7, v0")
    A(f"v_lshlrev_b32 v{hT+1}, 4, v{hT+1}")
    A("s_mul_i32 s76, s3, 384")
    A(f"v_add_u32 v{hT+1}, s76, v{hT+1}")
    for r in range(3):
        A(f"v_add_u32 v{hT+2}, {r}, v{hT}")
        A(f"v_lshrrev_b32 v{hT+3}, 3, v{hT+2}")
        A(f"v_lshlrev_b32 v{hT+3}, 7, v{hT+3}")
        A(f"v_and_b32 v{hT+2}, 7, v{hT+2}")
        A(f"v_lshlrev_b32 v{hT+2}, 1, v{hT+2}")
        A(f"v_add3_u32 v{hOD+r}, v{hT+1}, v{hT+2}, v{hT+3}")
    for k in range(12):
        A(f"v_mov_b32 v{hD+k}, 0")
    A("s_cmp_ge_u32 s2, 160")
    A("s_cbranch_scc1 L_tail_ffn1")

    A("s_and_b32 s76, s2, 31")
    A("s_lshl_b32 s77, s3, 5")
    A("s_add_u32 s77, s77, s76")
    A("s_lshl_b32 s77, s77, 13")
    A(f"s_add_u32 s77, s77, {OP_OFF}")
    A("s_add_u32 s78, s77, 4096")
    A(f"v_and_b32 v{hT}, 1, v0")
    A("s_barrier")
    stamp(3)
    lt = [f"buffer_load_dwordx4 v[{hG+4*jj}:{hG+4*jj+3}], v{hL16}, {S_WS}, {'s77' if jj < 4 else 's78'} offen offset:{1024*(jj&3)} sc1" for jj in range(8)]
    poll(lt, range(hG, hG + 32), hT)
    stamp(4)
    hMx = hB
    hWt = hB + 8
    A(f"v_and_b32 v{hT}, 1, v0")
    A(f"v_cmp_ne_u32 vcc, 0, v{hT}")
    for jj in range(8):
        A(f"v_mov_b32_dpp v{hMx+jj}, v{hG+4*jj+3} quad_perm:[1,0,3,2] {DPP}")
    for jj in range(8):
        A(f"v_cndmask_b32 v{hWt+jj}, v{hG+4*jj+3}, v{hMx+jj}, vcc")
        A(f"v_cndmask_b32 v{hMx+jj}, v{hMx+jj}, v{hG+4*jj+3}, vcc")
    A(f"v_max3_f32 v{hT}, v{hWt}, v{hWt+1}, v{hWt+2}")
    A(f"v_max3_f32 v{hT+1}, v{hWt+3}, v{hWt+4}, v{hWt+5}")
    A(f"v_max3_f32 v{hT}, v{hT}, v{hWt+6}, v{hWt+7}")
    A(f"v_max_f32 v{hT}, v{hT}, v{hT+1}")
    for jj in range(8):
        A(f"v_sub_f32 v{hWt+jj}, v{hWt+jj}, v{hT}")
    for jj in range(8):
        A(f"v_mul_f32 v{hWt+jj}, {LOG2E}, v{hWt+jj}")
    for jj in range(8):
        A(f"v_exp_f32 v{hWt+jj}, v{hWt+jj}")
    A(f"v_mul_f32 v{hT+1}, v{hWt}, v{hMx}")
    for r in range(3):
        A(f"v_mul_f32 v{hT+2+r}, v{hWt}, v{hG+r}")
    for jj in range(1, 8):
        A(f"v_fmac_f32 v{hT+1}, v{hWt+jj}, v{hMx+jj}")
        for r in range(3):
            A(f"v_fmac_f32 v{hT+2+r}, v{hWt+jj}, v{hG+4*jj+r}")
    A(f"v_rcp_f32 v{hT}, v{hT+1}")
    for r in range(3):
        A(f"v_mul_f32 v{hT+2+r}, v{hT+2+r}, v{hT}")
    A(f"v_cvt_pk_bf16_f32 v{hT}, v{hT+2}, v{hT+3}")
    A(f"v_cvt_pk_bf16_f32 v{hT+1}, v{hT+4}, v{hT+4}")
    A(f"ds_write_b16 v{hOD}, v{hT} offset:{L_OL}")
    A(f"ds_write_b16_d16_hi v{hOD+1}, v{hT} offset:{L_OL}")
    A(f"ds_write_b16 v{hOD+2}, v{hT+1} offset:{L_OL}")
    A("s_mul_i32 s76, s76, 10240")
    A("s_lshr_b32 s77, s2, 5")
    A("s_lshl_b32 s77, s77, 11")
    A("s_add_u32 s76, s76, s77")
    A("s_lshl_b32 s77, s3, 9")
    A("s_add_u32 s76, s76, s77")
    A(f"s_add_u32 s76, s76, {YP_OFF}")
    A("s_waitcnt lgkmcnt(0)")
    A("s_barrier")
    for t in range(6):
        A(f"ds_read_b128 v[{hA+4*t}:{hA+4*t+3}], v{hAF384} offset:{L_OL+64*t}")
    for t in range(6):
        A(f"s_waitcnt lgkmcnt({5-t})")
        for tt in range(2):
            r = hW1 + 4 * (tt * 6 + t)
            A(f"v_mfma_f32_16x16x32_bf16 v[{hD+4*tt}:{hD+4*tt+3}], v[{hA+4*t}:{hA+4*t+3}], v[{r}:{r+3}], v[{hD+4*tt}:{hD+4*tt+3}]")
    for k in range(8):
        A(f"v_min_u32 v{hD+k}, -2, v{hD+k}")
    A("s_mov_b64 exec, 0xffff")
    for tt in range(2):
        A(f"buffer_store_dwordx4 v[{hD+4*tt}:{hD+4*tt+3}], v{hL16}, {S_WS}, s76 offen offset:{256*tt} sc1")
    A("s_mov_b64 exec, -1")
    stamp(5)
    A("s_cmp_ge_u32 s2, 40")
    A("s_cbranch_scc1 L_h_end")

    hH = hB
    A(f"s_mul_i32 s76, {sJ}, 5")
    A(f"s_add_u32 s76, s76, {sG}")
    A("s_lshl_b32 s76, s76, 5")
    A(f"v_lshrrev_b32 v{hT}, 4, v0")
    A(f"v_mul_u32_u24 v{hAD}, 1280, v{hT}")
    A(f"v_and_b32 v{hT+1}, 14, v0")
    A(f"v_lshlrev_b32 v{hT+1}, 1, v{hT+1}")
    A(f"v_add_u32 v{hAD}, v{hAD}, v{hT+1}")
    A(f"s_add_u32 s77, s76, {HB_OFF}")
    for k in range(4):
        A(f"v_mov_b32 v{hD+8+k}, 0")
    A(f"v_and_b32 v{hT+1}, 3, v0")
    A(f"v_mul_u32_u24 v{hAD+1}, 3072, v{hT+1}")
    A(f"v_lshlrev_b32 v{hT}, 4, v{hT}")
    A(f"v_add_u32 v{hAD+1}, v{hAD+1}, v{hT}")
    A("s_mul_i32 s78, s3, 768")
    A(f"s_add_u32 s78, s78, {AC_OFF}")
    A("s_lshl_b32 s79, s3, 9")
    A(f"v_add_u32 v{hAD+2}, s79, v{hL16}")
    poll([f"buffer_load_dword v{hH}, v{hAD}, {S_WS}, s77 offen sc1"], [hH], hT, sleep=2)
    lt = [f"buffer_load_dwordx4 v[{hA+4*t}:{hA+4*t+3}], v{hAD+1}, {S_WS}, s78 offen offset:{64*t} sc1" for t in range(12)]
    poll(lt, range(hA, hA + 48), hT)
    stamp(6)
    for t in range(12):
        r = hW2 + 4 * t
        A(f"v_mfma_f32_16x16x32_bf16 v[{hD+8}:{hD+11}], v[{hA+4*t}:{hA+4*t+3}], v[{r}:{r+3}], v[{hD+8}:{hD+11}]")
    A("s_mov_b64 exec, 0xffff")
    A(f"ds_write_b128 v{hAD+2}, v[{hD+8}:{hD+11}] offset:{L_RED}")
    A("s_mov_b64 exec, -1")
    A(f"v_and_b32 v{hT}, 15, v0")
    A(f"v_lshlrev_b32 v{hT}, 4, v{hT}")
    A(f"v_lshrrev_b32 v{hT+1}, 4, v0")
    A(f"v_lshlrev_b32 v{hT+1}, 2, v{hT+1}")
    A(f"v_add_u32 v{hT}, v{hT}, v{hT+1}")
    A("s_waitcnt lgkmcnt(0)")
    A("s_barrier")
    A("s_cmp_lg_u32 s3, 0")
    A("s_cbranch_scc1 L_h_end")
    for ww in range(4):
        A(f"ds_read_b32 v{hF+ww}, v{hT} offset:{L_RED+512*ww}")
    A(f"v_and_b32 v{hT+2}, 1, v0")
    A(f"v_cmp_ne_u32 vcc, 0, v{hT+2}")
    A(f"v_lshlrev_b32 v{hT+3}, 16, v{hH}")
    A(f"v_and_b32 v{hT+4}, 0xffff0000, v{hH}")
    A(f"v_cndmask_b32 v{hT+3}, v{hT+3}, v{hT+4}, vcc")
    A("s_waitcnt lgkmcnt(0)")
    A(f"v_add_f32 v{hF}, v{hF}, v{hF+1}")
    A(f"v_add_f32 v{hF+2}, v{hF+2}, v{hF+3}")
    A(f"v_add_f32 v{hF}, v{hF}, v{hF+2}")
    rnd(hF, hF)
    A(f"v_add_f32 v{hF}, v{hF}, v{hT+3}")
    A(f"v_mov_b32_dpp v{hF+1}, v{hF} quad_perm:[1,0,3,2] {DPP}")
    A(f"v_cvt_pk_bf16_f32 v{hF}, v{hF}, v{hF+1}")
    A("s_mov_b32 s78, 0x55555555")
    A("s_mov_b32 s79, 0x55555555")
    A("s_mov_b64 exec, s[78:79]")
    A(f"buffer_store_dword v{hF}, v{hAD}, {S_OUT}, s76 offen")
    A("s_mov_b64 exec, -1")
    A("s_branch L_h_end")

    A.label("L_tail_ffn1")
    A("s_sub_u32 s76, s2, 160")
    A("s_lshl_b32 s76, s76, 2")
    A("s_add_u32 s76, s76, s3")
    A("s_lshl_b32 s77, s76, 2")
    A("s_cmp_lt_u32 s2, 240")
    A(f"s_cselect_b32 s77, s77, {OOB}")
    for b in range(4):
        A(f"buffer_load_dword v{hX+b}, v{hZ}, {S_X}, s77 offen offset:{1280*b}")
    A(f"v_lshrrev_b32 v{hT}, 1, v0")
    A(f"v_mul_u32_u24 v{hAD}, 10240, v{hT}")
    A(f"v_and_b32 v{hT}, 1, v0")
    A(f"v_lshlrev_b32 v{hT}, 4, v{hT}")
    A(f"v_add_u32 v{hAD}, v{hAD}, v{hT}")
    A("s_lshl_b32 s78, s76, 5")
    A(f"s_add_u32 s78, s78, {YP_OFF}")
    A(f"s_add_u32 s77, s77, {HB_OFF}")
    A("s_mul_i32 s75, s3, 1280")
    A(f"s_add_u32 s79, s75, {HB_OFF}")
    A(f"v_add_u32 v{hAD+1}, s75, v{hL4}")
    A("s_mul_i32 s82, s3, 320")
    A(f"v_add_u32 v{hAF1280}, s82, v{hAF1280}")
    A("s_lshl_b32 s82, s3, 9")
    A(f"v_add_u32 v{hAD+2}, s82, v{hL16}")
    A("s_waitcnt vmcnt(0)")
    A("s_barrier")
    stamp(3)
    A("s_cmp_ge_u32 s2, 240")
    A("s_cbranch_scc1 L_ffn1")
    poll([f"buffer_load_dwordx4 v[{hG}:{hG+3}], v{hAD}, {S_WS}, s78 offen sc1"], range(hG, hG + 4), hT)
    stamp(4)
    for pat in ("quad_perm:[2,3,0,1]", "row_ror:4", "row_ror:8"):
        for b in range(4):
            A(f"v_add_f32_dpp v{hG+b}, v{hG+b}, v{hG+b} {pat} {DPP}")
    for sw in ("v_permlane16_swap_b32", "v_permlane32_swap_b32"):
        for b in range(4):
            A(f"v_mov_b32 v{hG+4+b}, v{hG+b}")
        for b in range(4):
            A(f"{sw} v{hG+b}, v{hG+4+b}")
        for b in range(4):
            A(f"v_add_f32 v{hG+b}, v{hG+b}, v{hG+4+b}")
    for b in range(4):
        A(f"v_mov_b32_dpp v{hG+4+b}, v{hG+b} quad_perm:[1,0,3,2] {DPP}")
    for b in range(4):
        A(f"v_cvt_pk_bf16_f32 v{hG+b}, v{hG+b}, v{hG+4+b}")
    for b in range(4):
        A(f"v_lshlrev_b32 v{hF+2*b}, 16, v{hG+b}")
        A(f"v_and_b32 v{hF+2*b+1}, 0xffff0000, v{hG+b}")
        A(f"v_lshlrev_b32 v{hG+4+b}, 16, v{hX+b}")
        A(f"v_and_b32 v{hG+8+b}, 0xffff0000, v{hX+b}")
    for b in range(4):
        A(f"v_add_f32 v{hF+2*b}, v{hF+2*b}, v{hG+4+b}")
        A(f"v_add_f32 v{hF+2*b+1}, v{hF+2*b+1}, v{hG+8+b}")
    for b in range(4):
        A(f"v_cvt_pk_bf16_f32 v{hG+b}, v{hF+2*b}, v{hF+2*b+1}")
    for b in range(4):
        A(f"v_min_u32 v{hG+b}, -2, v{hG+b}")
    A("s_mov_b64 exec, 1")
    for b in range(4):
        A(f"buffer_store_dword v{hG+b}, v{hZ}, {S_WS}, s77 offen offset:{1280*b} sc1")
    A("s_mov_b64 exec, -1")
    A.label("L_ffn1")
    stamp(5)
    lt = [f"buffer_load_dword v{hX+u}, v{hL4}, {S_WS}, s79 offen offset:{256*u} sc1" for u in range(5)]
    poll(lt, range(hX, hX + 5), hT)
    stamp(6)
    layernorm(hX, hF, hT)
    for u in range(5):
        A(f"ds_write_b32 v{hAD+1}, v{hX+u} offset:{L_XN+256*u}")
    A(f"s_mul_i32 s76, {sJ}, 12")
    A(f"s_add_u32 s76, s76, {sG}")
    A("s_sub_u32 s76, s76, 20")
    A("s_lshl_b32 s76, s76, 5")
    A(f"s_add_u32 s76, s76, {AC_OFF}")
    A("s_waitcnt lgkmcnt(0)")
    A("s_barrier")
    for t in range(5):
        A(f"ds_read_b128 v[{hA+4*t}:{hA+4*t+3}], v{hAF1280} offset:{L_XN+64*t}")
    for t in range(5):
        A(f"s_waitcnt lgkmcnt({4-t})")
        for tile in range(2):
            r = hW1 + 4 * (tile * 5 + t)
            A(f"v_mfma_f32_16x16x32_bf16 v[{hD+4*tile}:{hD+4*tile+3}], v[{hA+4*t}:{hA+4*t+3}], v[{r}:{r+3}], v[{hD+4*tile}:{hD+4*tile+3}]")
    A(f"v_and_b32 v{hT}, 15, v0")
    A(f"v_lshlrev_b32 v{hT}, 4, v{hT}")
    A(f"v_lshrrev_b32 v{hT+1}, 4, v0")
    A(f"v_lshlrev_b32 v{hT+2}, 2, v{hT+1}")
    A(f"v_add_u32 v{hT}, v{hT}, v{hT+2}")
    A(f"v_mul_u32_u24 v{hAD}, 3072, v{hT+1}")
    A(f"v_and_b32 v{hT+1}, 14, v0")
    A(f"v_lshlrev_b32 v{hT+1}, 1, v{hT+1}")
    A(f"v_add_u32 v{hAD}, v{hAD}, v{hT+1}")
    A("s_mov_b64 exec, 0xffff")
    for tile in range(2):
        A(f"ds_write_b128 v{hAD+2}, v[{hD+4*tile}:{hD+4*tile+3}] offset:{L_RED+256*tile}")
    A("s_mov_b64 exec, -1")
    A("s_waitcnt lgkmcnt(0)")
    A("s_barrier")
    A("s_cmp_lg_u32 s3, 0")
    A("s_cbranch_scc1 L_h_end")
    for ww in range(4):
        for tile in range(2):
            A(f"ds_read_b32 v{hF+4*tile+ww}, v{hT} offset:{L_RED+512*ww+256*tile}")
    A("s_waitcnt lgkmcnt(0)")
    for tile in range(2):
        f = hF + 4 * tile
        A(f"v_add_f32 v{f}, v{f}, v{f+1}")
        A(f"v_add_f32 v{f+2}, v{f+2}, v{f+3}")
        A(f"v_add_f32 v{f}, v{f}, v{f+2}")
    rnd(hF, hF)
    rnd(hF + 4, hF + 4)
    A(f"v_mul_f32 v{hF+1}, 0xbfb8aa3b, v{hF}")
    A(f"v_exp_f32 v{hF+1}, v{hF+1}")
    A(f"v_add_f32 v{hF+1}, 1.0, v{hF+1}")
    A(f"v_rcp_f32 v{hF+1}, v{hF+1}")
    A(f"v_mul_f32 v{hF}, v{hF}, v{hF+1}")
    rnd(hF, hF)
    A(f"v_mul_f32 v{hF}, v{hF}, v{hF+4}")
    A(f"v_mov_b32_dpp v{hF+1}, v{hF} quad_perm:[1,0,3,2] {DPP}")
    A(f"v_cvt_pk_bf16_f32 v{hF}, v{hF}, v{hF+1}")
    A(f"v_min_u32 v{hF}, -2, v{hF}")
    A("s_mov_b32 s78, 0x55555555")
    A("s_mov_b32 s79, 0x55555555")
    A("s_mov_b64 exec, s[78:79]")
    A(f"buffer_store_dword v{hF}, v{hAD}, {S_WS}, s76 offen sc1")
    A("s_mov_b64 exec, -1")
    A.label("L_h_end")
    stamp(7)
    stamp_flush(1, 128)
    A.label("L_end")
    A("s_endpgm")
    body = A.text()
    s = wrap(body, HEADER, 256, 512, LDS_BYTES, 256, 102)
    s = s.replace("  .amdhsa_group_segment_fixed_size 0\n", "  .amdhsa_group_segment_fixed_size 0\n  .amdhsa_float_denorm_mode_32 3\n")
    return s


if __name__ == "__main__":
    kw = eval("dict(%s)" % (sys.argv[2] if len(sys.argv) > 2 else ""))
    open(sys.argv[1], "w").write(gen(**kw))
```

```python
import sys
sys.path.insert(0, "work")
from asmlib import *

HEADER = open("sequential_preLN__gqa_block_cached__swiglu_ffn__decode.s.ref").read().split("; Override launch")[0]

QP_OFF = 0x000000
OP_OFF = 0x200000
YP_OFF = 0x300000
HB_OFF = 0x380000
AC_OFF = 0x390000
CT_OFF = 0x3A0000
ZP_OFF = 0x400000
ST_OFF = 0x800000
WS_SIZE = 0x1000000
OOB = 0x80000000
TASKB = 4096 * 384

L_STAGE = 0
L_XN = 49152
L_QL = L_XN + 5120
L_OL = L_QL + 1536
L_RED = L_OL + 1536
L_CNT = L_RED + 6144
L_SBUF = L_CNT + 64

LOG2E = "0x3fb8aa3b"
SCALE = "0x3d93cd3a"
EPS = "0x3727c5ac"
INV640 = "0x3acccccd"
F640 = "0x44200000"

S_WS, S_K, S_V, S_X, S_WQ, S_DBG, S_WO, S_WG, S_WU, S_WD, S_OUT = [f"s[{28+4*i}:{31+4*i}]" for i in range(11)]
sG, sJ, sB = "s72", "s73", "s74"


def gen(D=3, S0=56, PACE=2, stamps=False, spin_g=200000, spin_l=4000000, b0_first=True, prio=True, psleep=1, nocompute=False, noweights=False, qsleep=2, qdelay=0, noqpoll=False, noqstore=False, lightpoll=False, NL=4, ffn_pol='nt', wo_pol='nt', wq_pol='nt', coop_wo=True, XF=0):
    NS = 8
    E = NS - D
    LDS_BYTES = L_SBUF + 4 * NL * 6144
    assert LDS_BYTES <= 163840
    NB = E + NL
    R0 = D * (1 + -(-NB // (2 * D)))
    assert (S0 - NS - NL) % D == 0
    nA = (S0 - NS - NL - R0) // D - 1
    assert nA >= 0
    POOL = 512 - 8 * S0 + XF
    assert XF % D == 0 and XF // D < nA
    A = Asm()
    nst = [0, 0]

    def srd(name, ptr_lo, size, add=None):
        r = int(name[2:name.index(":")])
        if add is None:
            A(f"s_mov_b32 s{r}, s{ptr_lo}")
            A(f"s_mov_b32 s{r+1}, s{ptr_lo+1}")
        else:
            A(f"s_add_u32 s{r}, s{ptr_lo}, {add}")
            A(f"s_addc_u32 s{r+1}, s{ptr_lo+1}, 0")
        A(f"s_mov_b32 s{r+2}, {size}")
        A(f"s_mov_b32 s{r+3}, 0x20000")

    def stamp(k, which="main"):
        if stamps and (which == stamps or (which == "main" and stamps is True) or k == 0):
            assert k < 8
            A(f"s_memrealtime s[{84+2*k}:{85+2*k}]")

    def stamp_flush(role, vt):
        if not stamps:
            return
        A("s_waitcnt lgkmcnt(0)")
        for k in range(16):
            A(f"v_mov_b32 v{vt+k}, s{84+k}")
        A("s_lshl_b32 s82, s2, 3")
        A("s_add_u32 s82, s82, s3")
        A("s_lshl_b32 s82, s82, 6")
        A(f"s_add_u32 s82, s82, {ST_OFF}")
        A(f"v_mov_b32 v{vt+16}, 0")
        A("s_mov_b64 exec, 1")
        for k in range(4):
            A(f"buffer_store_dwordx4 v[{vt+4*k}:{vt+4*k+3}], v{vt+16}, {S_WS}, s82 offen offset:{16*k}")
        A("s_mov_b64 exec, -1")

    DPP = "row_mask:0xf bank_mask:0xf"

    def allred16_32(op, x, t):
        A(f"v_mov_b32 v{t}, v{x}")
        A(f"v_permlane16_swap_b32 v{x}, v{t}")
        A(f"{op} v{x}, v{x}, v{t}")
        A(f"v_mov_b32 v{t}, v{x}")
        A(f"v_permlane32_swap_b32 v{x}, v{t}")
        A(f"{op} v{x}, v{x}, v{t}")

    def allred64(op, x, t):
        for pat in ("quad_perm:[1,0,3,2]", "quad_perm:[2,3,0,1]", "row_ror:4", "row_ror:8"):
            A(f"{op}_dpp v{x}, v{x}, v{x} {pat} {DPP}")
        allred16_32(op, x, t)

    def rnd(dst, src):
        A(f"v_cvt_pk_bf16_f32 v{dst}, v{src}, v{src}")
        A(f"v_lshlrev_b32 v{dst}, 16, v{dst}")

    def div640(x, t0, t1):
        A(f"v_mul_f32 v{t0}, {INV640}, v{x}")
        A(f"v_fma_f32 v{t1}, -v{t0}, s80, v{x}")
        A(f"v_mul_f32 v{t1}, {INV640}, v{t1}")
        A(f"v_add_f32 v{x}, v{t0}, v{t1}")

    def layernorm(src, f, t):
        A(f"s_mov_b32 s80, {F640}")
        for u in range(5):
            A(f"v_lshlrev_b32 v{f+2*u}, 16, v{src+u}")
            A(f"v_and_b32 v{f+2*u+1}, 0xffff0000, v{src+u}")
        A(f"v_add_f32 v{t}, v{f}, v{f+1}")
        A(f"v_add_f32 v{t+1}, v{f+2}, v{f+3}")
        A(f"v_add_f32 v{t+2}, v{f+4}, v{f+5}")
        A(f"v_add_f32 v{t+3}, v{f+6}, v{f+7}")
        A(f"v_add_f32 v{t+4}, v{f+8}, v{f+9}")
        A(f"v_add_f32 v{t}, v{t}, v{t+1}")
        A(f"v_add_f32 v{t+2}, v{t+2}, v{t+3}")
        A(f"v_add_f32 v{t}, v{t}, v{t+4}")
        A(f"v_add_f32 v{t}, v{t}, v{t+2}")
        allred64("v_add_f32", t, t + 1)
        div640(t, t + 1, t + 2)
        A(f"v_sub_f32 v{t+2}, v{f}, v{t}")
        A(f"v_mul_f32 v{t+1}, v{t+2}, v{t+2}")
        for i in range(1, 10):
            A(f"v_sub_f32 v{t+2+(i&1)}, v{f+i}, v{t}")
            A(f"v_fmac_f32 v{t+1}, v{t+2+(i&1)}, v{t+2+(i&1)}")
        allred64("v_add_f32", t + 1, t + 2)
        div640(t + 1, t + 2, t + 3)
        rnd(t, t)
        rnd(t + 1, t + 1)
        A(f"v_add_f32 v{t+1}, {EPS}, v{t+1}")
        rnd(t + 1, t + 1)
        A(f"v_sqrt_f32 v{t+1}, v{t+1}")
        rnd(t + 1, t + 1)
        A(f"v_rcp_f32 v{t+2}, v{t+1}")
        for u in range(5):
            a, b = f + 2 * u, f + 2 * u + 1
            A(f"v_sub_f32 v{a}, v{a}, v{t}")
            A(f"v_sub_f32 v{b}, v{b}, v{t}")
            A(f"v_cvt_pk_bf16_f32 v{b}, v{a}, v{b}")
            A(f"v_lshlrev_b32 v{a}, 16, v{b}")
            A(f"v_and_b32 v{b}, 0xffff0000, v{b}")
            A(f"v_mul_f32 v{t+3}, v{a}, v{t+2}")
            A(f"v_mul_f32 v{t+4}, v{b}, v{t+2}")
            A(f"v_fma_f32 v{a}, -v{t+3}, v{t+1}, v{a}")
            A(f"v_fma_f32 v{b}, -v{t+4}, v{t+1}, v{b}")
            A(f"v_fmac_f32 v{t+3}, v{a}, v{t+2}")
            A(f"v_fmac_f32 v{t+4}, v{b}, v{t+2}")
            A(f"v_cvt_pk_bf16_f32 v{src+u}, v{t+3}, v{t+4}")

    def poll(loads, regs, tmp, mask=None, sleep=0):
        Lp, Ld = A.newlabel("L_poll"), A.newlabel("L_pdone")
        A(f"s_mov_b32 s81, {spin_g}")
        A.label(Lp)
        if mask is not None:
            A(f"s_mov_b64 exec, {mask}")
        for l in loads:
            A(l)
        A("s_waitcnt vmcnt(0)")
        rs = list(regs)
        if len(rs) == 1:
            A(f"v_cmp_eq_u32 vcc, -1, v{rs[0]}")
        else:
            if len(rs) == 2:
                A(f"v_max_u32 v{tmp}, v{rs[0]}, v{rs[1]}")
                rs = []
            else:
                A(f"v_max3_u32 v{tmp}, v{rs[0]}, v{rs[1]}, v{rs[2]}")
                rs = rs[3:]
            while rs:
                if len(rs) >= 2:
                    A(f"v_max3_u32 v{tmp}, v{tmp}, v{rs[0]}, v{rs[1]}")
                    rs = rs[2:]
                else:
                    A(f"v_max_u32 v{tmp}, v{tmp}, v{rs[0]}")
                    rs = []
            A(f"v_cmp_eq_u32 vcc, -1, v{tmp}")
        if mask is not None:
            A("s_mov_b64 exec, -1")
        A(f"s_cbranch_vccz {Ld}")
        if sleep:
            A(f"s_sleep {sleep}")
        A("s_sub_u32 s81, s81, 1")
        A("s_cmp_lg_u32 s81, 0")
        A(f"s_cbranch_scc1 {Lp}")
        A.label(Ld)

    def lds_wait(addr_v, val_v, off, target, sleep=1):
        Lp, Ld = A.newlabel("L_lw"), A.newlabel("L_lwd")
        A(f"s_mov_b32 s81, {spin_l}")
        A.label(Lp)
        A(f"ds_read_b32 v{val_v}, v{addr_v} offset:{off}")
        A("s_waitcnt lgkmcnt(0)")
        A(f"v_readfirstlane_b32 s79, v{val_v}")
        A(f"s_cmp_ge_u32 s79, {target}")
        A(f"s_cbranch_scc1 {Ld}")
        A(f"s_sleep {sleep}")
        A("s_sub_u32 s81, s81, 1")
        A("s_cmp_lg_u32 s81, 0")
        A(f"s_cbranch_scc1 {Lp}")
        A.label(Ld)

    def lds_inc(zero_v, one_v, off):
        A("s_mov_b64 exec, 1")
        A(f"ds_add_u32 v{zero_v}, v{one_v} offset:{off}")
        A("s_mov_b64 exec, -1")

    A("s_cmp_ge_u32 s2, 256")
    A("s_cbranch_scc1 L_end")
    A("s_load_dwordx16 s[4:19], s[0:1], 0")
    A("s_load_dwordx8 s[20:27], s[0:1], 64")
    A("v_lshrrev_b32 v1, 6, v0")
    A("v_and_b32 v0, 63, v0")
    A("v_readfirstlane_b32 s3, v1")
    A(f"s_lshr_b32 {sG}, s2, 3")
    A(f"s_and_b32 {sJ}, s2, 7")
    A(f"s_and_b32 {sB}, s3, 3")
    if stamps:
        for k in range(16):
            A(f"s_mov_b32 s{84+k}, 0")
    A("s_cmp_lt_u32 s3, 4")
    A("s_cbranch_scc1 L_helper")

    vOFF, vZ = 1, 2
    T = 3
    vM, vL = 11, 12
    vAL, vP = 14, 16
    vU = 18
    vLB = 22
    vQ = 24
    vACC = 36
    vTK = 60
    vSLOT = 64
    sOFF = "s75"
    sCT = "s76"
    sSL = 60

    def kreg(slot, i):
        return vSLOT + slot * 24 + 4 * i

    def vreg(slot, i):
        return vSLOT + slot * 24 + 12 + 4 * i

    vmq = []

    def vwait(tag):
        i = max(k for k, t in enumerate(vmq) if t == tag)
        n = len(vmq) - 1 - i
        assert n <= 63
        A(f"s_waitcnt vmcnt({n})")
        del vmq[:i + 1]

    def issueK(slot, soff):
        for i in range(3):
            r = kreg(slot, i)
            A(f"buffer_load_dwordx4 v[{r}:{r+3}], v{vOFF}, {S_K}, {soff} offen offset:{128*i} nt")
            vmq.append(("K", slot))

    def issueV(slot, soff):
        for i in range(3):
            r = vreg(slot, i)
            A(f"buffer_load_dwordx4 v[{r}:{r+3}], v{vOFF}, {S_V}, {soff} offen offset:{128*i} nt")
            vmq.append(("V", slot))

    def atomic(slot):
        A(f"v_mov_b32 v{vTK+slot}, 1")
        A("s_mov_b64 exec, 1")
        A(f"buffer_atomic_add v{vTK+slot}, v{vZ}, {S_WS}, {sCT} offen sc0")
        A("s_mov_b64 exec, -1")
        vmq.append(("T", slot))

    def consumeK(slot, mid=None):
        t0, t1, t2, t3, t4 = T, T + 1, T + 2, T + 3, T + 4
        k = kreg(slot, 0)
        if nocompute:
            for e in range(0, 12, 4):
                A(f"v_xor_b32 v{vL}, v{vL}, v{k+e}")
            if mid:
                mid()
            return
        for e in range(6):
            A(f"v_dot2_f32_bf16 v{t0}, v{k+e}, v{vQ+e}, " + ("0" if e == 0 else f"v{t0}"))
            A(f"v_dot2_f32_bf16 v{t1}, v{k+6+e}, v{vQ+6+e}, " + ("0" if e == 0 else f"v{t1}"))
        if mid:
            mid()
        A(f"v_add_f32 v{t0}, v{t0}, v{t1}")
        A(f"v_add_f32_dpp v{t0}, v{t0}, v{t0} quad_perm:[1,0,3,2] {DPP}")
        A(f"v_add_f32_dpp v{t0}, v{t0}, v{t0} quad_perm:[2,3,0,1] {DPP}")
        A(f"v_add_f32_dpp v{t0}, v{t0}, v{t0} row_half_mirror {DPP}")
        rnd(t1, t0)
        A(f"v_mul_f32 v{t1}, {SCALE}, v{t1}")
        rnd(t1, t1)
        A(f"v_max_f32 v{t2}, v{vM}, v{t1}")
        A(f"v_sub_f32 v{t3}, v{vM}, v{t2}")
        A(f"v_sub_f32 v{t4}, v{t1}, v{t2}")
        A(f"v_mul_f32 v{t3}, {LOG2E}, v{t3}")
        A(f"v_mul_f32 v{t4}, {LOG2E}, v{t4}")
        A(f"v_exp_f32 v{vAL}, v{t3}")
        A(f"v_exp_f32 v{vP}, v{t4}")
        A(f"v_mov_b32 v{vM}, v{t2}")
        A(f"v_fma_f32 v{vL}, v{vL}, v{vAL}, v{vP}")
        for a in range(12):
            r = vACC + 2 * a
            A(f"v_pk_mul_f32 v[{r}:{r+1}], v[{r}:{r+1}], v[{vAL}:{vAL+1}] op_sel_hi:[1,0]")

    def consumeV(slot):
        v = vreg(slot, 0)
        if nocompute:
            for e in range(0, 12, 4):
                A(f"v_xor_b32 v{vL}, v{vL}, v{v+e}")
            return
        for a in range(12):
            u = vU + 2 * (a & 1)
            r = vACC + 2 * a
            A(f"v_lshlrev_b32 v{u}, 16, v{v+a}")
            A(f"v_and_b32 v{u+1}, 0xffff0000, v{v+a}")
            A(f"v_pk_fma_f32 v[{r}:{r+1}], v[{u}:{u+1}], v[{vP}:{vP+1}], v[{r}:{r+1}] op_sel_hi:[1,0,1]")

    stamp(0)
    A(f"v_lshrrev_b32 v{T}, 3, v0")
    A(f"v_mul_u32_u24 v{T}, 384, v{T}")
    A(f"v_and_b32 v{T+1}, 7, v0")
    A(f"v_lshlrev_b32 v{T+2}, 4, v{T+1}")
    A(f"v_add_u32 v{vOFF}, v{T}, v{T+2}")
    A(f"v_mov_b32 v{vZ}, 0")
    A(f"s_lshl_b32 s77, {sB}, 5")
    A(f"s_add_u32 s77, s77, {sG}")
    A(f"s_mul_i32 s78, s77, {TASKB}")
    A(f"s_mul_i32 {sOFF}, {sJ}, 3072")
    A(f"s_lshl_b32 {sCT}, s77, 8")
    A(f"s_add_u32 {sCT}, {sCT}, {CT_OFF}")
    A(f"v_mov_b32 v{vM}, 0xff7fffff")
    A(f"v_mov_b32 v{vL}, 0")
    for a in range(24):
        A(f"v_mov_b32 v{vACC+a}, 0")
    A("s_waitcnt lgkmcnt(0)")
    srd(S_K, 6, TASKB, "s78")
    srd(S_V, 8, TASKB, "s78")
    srd(S_WS, 26, WS_SIZE)
    A(f"s_lshl_b32 s83, {sB}, 8")
    A("s_add_u32 s83, s83, s2")
    A("s_lshl_b32 s83, s83, 10")
    A(f"s_add_u32 s83, s83, {OP_OFF}")
    A("s_barrier")
    A(f"s_mul_i32 s79, {sB}, {NL*6144}")
    A(f"s_add_u32 s79, s79, {L_SBUF}")
    last = lambda n: ("V", n) if n < NS else ("L", n - NS)
    for n in range(NS + NL):
        if n >= PACE:
            vwait(last(n - PACE))
            if n - PACE + 2 < 8:
                stamp(n - PACE + 2, "start")
        if n < NS:
            issueK(n, sOFF)
            issueV(n, sOFF)
        else:
            for kv in range(2):
                for i in range(3):
                    A(f"s_add_u32 m0, s79, {(n-NS)*6144 + (3*kv+i)*1024 - 128*i}")
                    A(f"buffer_load_dwordx4 v{vOFF}, {S_K if kv == 0 else S_V}, {sOFF} offen offset:{128*i} nt lds")
                    vmq.append(("L", n - NS))
        A(f"s_add_u32 {sOFF}, {sOFF}, {8*3072}")
    A(f"v_lshlrev_b32 v{vLB}, 4, v0")
    A(f"v_add_u32 v{vLB}, s79, v{vLB}")
    stamp(1)
    lds_wait(vZ, T, L_CNT + 4, 4)
    A(f"v_and_b32 v{T}, 7, v0")
    A(f"v_lshlrev_b32 v{T}, 4, v{T}")
    A(f"s_mul_i32 s78, {sB}, 384")
    A(f"v_add_u32 v{T}, s78, v{T}")
    for i in range(3):
        A(f"ds_read_b128 v[{vQ+4*i}:{vQ+4*i+3}], v{T} offset:{L_QL+128*i}")
    A("s_waitcnt lgkmcnt(0)")
    stamp(2)

    def vwait_opt(tag):
        if tag in vmq:
            vwait(tag)

    def static_step(slot, with_atomic=False, save=False):
        vwait_opt(("K", slot))

        def mid():
            if with_atomic:
                atomic(slot)
            issueK(slot, sOFF)
        consumeK(slot, mid)
        idx = [k for k, t in enumerate(vmq) if t == ("V", slot)]
        if idx:
            i = idx[2]
            A(f"s_waitcnt vmcnt({len(vmq)-1-i})")
            del vmq[:i + 1]
        consumeV(slot)
        issueV(slot, sOFF)
        if save:
            A(f"s_mov_b32 s{sSL+slot}, {sOFF}")
        A(f"s_add_u32 {sOFF}, {sOFF}, {8*3072}")

    for s in range(D):
        static_step(s)
    backlog = [("reg", D + e) for e in range(E)] + [("lds", i) for i in range(NL)]
    assert NL <= E
    nring = R0 - D
    done = 0
    for r in range(nring + 1):
        upto = len(backlog) if r == nring else (len(backlog) * (r + 1) + nring) // (nring + 1)
        while done < upto:
            kind, x = backlog[done]
            done += 1
            if kind == "reg":
                vwait_opt(("K", x))
                consumeK(x)
                vwait_opt(("V", x))
                consumeV(x)
                i = x - D
                if i < NL:
                    vwait_opt(("L", i))
                    for k in range(6):
                        rr = vSLOT + x * 24 + 4 * k
                        A(f"ds_read_b128 v[{rr}:{rr+3}], v{vLB} offset:{i*6144+1024*k}")
            else:
                A("s_waitcnt lgkmcnt(0)")
                consumeK(D + x)
                consumeV(D + x)
        if r < nring:
            static_step(r % D)
    A(f"v_mov_b32 v{T}, 1")
    lds_inc(vZ, T, L_CNT + 16)
    if nA > 0:
        A(f"s_cmp_eq_u32 {sJ}, 5")
        A(f"s_cselect_b32 s77, {nA - XF // D}, {nA}")
        A.label("L_loopA")
        shape = list(vmq)
        for s in range(D):
            static_step(s)
        assert vmq == shape, (vmq, shape)
        A("s_sub_u32 s77, s77, 1")
        A("s_cmp_lg_u32 s77, 0")
        A("s_cbranch_scc1 L_loopA")
    A(f"v_mov_b32 v{T}, 1")
    lds_inc(vZ, T, L_CNT + 12)
    for s in range(D):
        static_step(s, with_atomic=True, save=True)
    stamp(3)
    A.label("L_loopB")
    shape = list(vmq)
    for s in range(D):
        A(f"s_cmp_ge_u32 s{sSL+s}, {TASKB}")
        A("s_cbranch_scc1 L_s_done")
        vwait(("K", s))
        A(f"v_readfirstlane_b32 s78, v{vTK+s}")

        def mid(s=s):
            A(f"s_min_u32 s78, s78, {POOL}")
            if XF:
                A("s_lshl_b32 s79, s78, 3")
                A(f"s_add_u32 s79, s79, {8*(S0-XF)+5}")
                A(f"s_add_u32 s80, s78, {8*S0-XF}")
                A(f"s_cmp_lt_u32 s78, {XF}")
                A("s_cselect_b32 s78, s79, s80")
            else:
                A(f"s_add_u32 s78, s78, {8*S0}")
            A(f"s_mul_i32 s{sSL+s}, s78, 3072")
            atomic(s)
            issueK(s, f"s{sSL+s}")
        consumeK(s, mid)
        idx = [k for k, t in enumerate(vmq) if t == ("V", s)]
        i = idx[2]
        A(f"s_waitcnt vmcnt({len(vmq)-1-i})")
        del vmq[:i + 1]
        consumeV(s)
        issueV(s, f"s{sSL+s}")
    assert vmq == shape, (vmq, shape)
    A("s_branch L_loopB")
    A.label("L_s_done")
    stamp(4)
    t0, t1, t2 = T, T + 1, T + 2
    A(f"v_max_f32_dpp v{t0}, v{vM}, v{vM} row_ror:8 {DPP}")
    allred16_32("v_max_f32", t0, t1)
    A(f"v_sub_f32 v{t1}, v{vM}, v{t0}")
    A(f"v_mul_f32 v{t1}, {LOG2E}, v{t1}")
    A(f"v_exp_f32 v{vAL}, v{t1}")
    A(f"v_mul_f32 v{vL}, v{vL}, v{vAL}")
    for a in range(12):
        r = vACC + 2 * a
        A(f"v_pk_mul_f32 v[{r}:{r+1}], v[{r}:{r+1}], v[{vAL}:{vAL+1}] op_sel_hi:[1,0]")
    A(f"v_add_f32_dpp v{vL}, v{vL}, v{vL} row_ror:8 {DPP}")
    allred16_32("v_add_f32", vL, t1)
    for a in range(12):
        A(f"v_permlane32_swap_b32 v{vACC+a}, v{vACC+12+a}")
    for a in range(12):
        A(f"v_add_f32 v{vACC+a}, v{vACC+a}, v{vACC+12+a}")
    for a in range(6):
        A(f"v_permlane16_swap_b32 v{vACC+a}, v{vACC+6+a}")
    for a in range(6):
        A(f"v_add_f32 v{vACC+a}, v{vACC+a}, v{vACC+6+a}")
    A(f"v_and_b32 v{t1}, 8, v0")
    A(f"v_cmp_ne_u32 vcc, 0, v{t1}")
    OUTQ = vQ
    for r in range(3):
        A(f"v_cndmask_b32 v{vU+r}, v{vACC+3+r}, v{vACC+r}, vcc")
        A(f"v_cndmask_b32 v{OUTQ+r}, v{vACC+r}, v{vACC+3+r}, vcc")
    for r in range(3):
        A(f"v_add_f32_dpp v{OUTQ+r}, v{vU+r}, v{OUTQ+r} row_ror:8 {DPP}")
    A(f"v_and_b32 v{t1}, 1, v0")
    A(f"v_cmp_ne_u32 vcc, 0, v{t1}")
    A(f"v_cndmask_b32 v{OUTQ+3}, v{t0}, v{vL}, vcc")
    for r in range(4):
        A(f"v_min_u32 v{OUTQ+r}, -2, v{OUTQ+r}")
    A(f"v_lshlrev_b32 v{t1}, 4, v0")
    A(f"buffer_store_dwordx4 v[{OUTQ}:{OUTQ+3}], v{t1}, {S_WS}, s83 offen sc1")
    stamp(5)
    A("s_barrier")
    stamp_flush(0, 36)
    A("s_endpgm")

    A.label("L_helper")
    stamp(0)
    if prio:
        A("s_setprio 2")
    hZ, hONE, hL4, hL16 = 1, 2, 3, 4
    hX = 8
    hF = 16
    hT = 26
    hA = 32
    hD = 80
    hB = 92
    hG = 128
    hW1 = 160
    hW2 = 208
    hAD = 5
    hNC = 14
    hWDA = 127
    A(f"v_mov_b32 v{hZ}, 0")
    A(f"v_mov_b32 v{hONE}, 1")
    A(f"v_lshlrev_b32 v{hL4}, 2, v0")
    A(f"v_lshlrev_b32 v{hL16}, 4, v0")
    A(f"v_mul_u32_u24 v{hT}, 43, v0")
    A(f"v_lshrrev_b32 v{hT}, 8, v{hT}")
    A(f"v_mul_u32_u24 v{hT+1}, 6, v{hT}")
    A(f"v_sub_u32 v{hT+1}, v0, v{hT+1}")
    A(f"v_mul_u32_u24 v{hT}, 12288, v{hT}")
    A(f"v_lshlrev_b32 v{hT+1}, 4, v{hT+1}")
    A(f"v_add_u32 v{hT}, v{hT}, v{hT+1}")
    A("s_mul_i32 s75, s3, 1280")
    A(f"s_mul_i32 s76, {sJ}, {80*12288}")
    A(f"s_mul_i32 s77, {sG}, 384")
    A("s_add_u32 s76, s76, s77")
    A("s_mul_i32 s77, s3, 96")
    A("s_add_u32 s76, s76, s77")
    A("s_mul_i32 s83, s3, 12288")
    A("s_waitcnt lgkmcnt(0)")
    srd(S_X, 4, 5120)
    srd(S_WQ, 10, 640 * 6144 * 2)
    srd(S_DBG, 24, 256)
    A("s_add_u32 s77, s2, s3")
    A("s_cmp_lg_u32 s77, 0")
    A("s_cbranch_scc1 L_notag")
    A("s_memrealtime s[78:79]")
    A("s_waitcnt lgkmcnt(0)")
    A("s_or_b32 s78, s78, 1")
    A("s_or_b32 s79, s79, 0x80000000")
    A(f"v_mov_b32 v{hNC}, s78")
    A(f"v_mov_b32 v{hNC+1}, s79")
    A("s_mov_b64 exec, 1")
    A(f"buffer_store_dwordx2 v[{hNC}:{hNC+1}], v{hZ}, {S_DBG}, 0 offen sc1")
    A("s_mov_b64 exec, -1")
    A.label("L_notag")
    for u in range(5):
        A(f"buffer_load_dword v{hX+u}, v{hL4}, {S_X}, s75 offen offset:{256*u}")
    A("s_mov_b32 s78, -1")
    A("s_mov_b32 s79, 0x0fffffff")
    A("s_mov_b64 exec, s[78:79]")
    for u in range(8):
        A(f"s_add_u32 m0, s83, {960*u}")
        A(f"buffer_load_dwordx4 v{hT}, {S_WQ}, s76 offen {wq_pol} lds")
        A(f"s_add_u32 s76, s76, {10*12288}")
    A("s_mov_b64 exec, -1")
    srd(S_WS, 26, WS_SIZE)
    for k in range(4):
        A(f"v_mov_b32 v{hG+k}, -1")
    A("s_lshl_b32 s76, s3, 8")
    A("s_add_u32 s76, s76, s2")
    A("s_lshl_b32 s76, s76, 10")
    A(f"s_add_u32 s76, s76, {OP_OFF}")
    A(f"buffer_store_dwordx4 v[{hG}:{hG+3}], v{hL16}, {S_WS}, s76 offen sc1")
    A("s_lshl_b32 s76, s3, 5")
    A(f"s_add_u32 s76, s76, {sG}")
    A("s_lshl_b32 s76, s76, 8")
    A(f"s_add_u32 s76, s76, {CT_OFF}")
    A(f"s_cmp_eq_u32 {sJ}, 0")
    A(f"s_cselect_b32 s76, s76, {OOB}")
    A("s_mov_b64 exec, 1")
    A(f"buffer_store_dword v{hZ}, v{hZ}, {S_WS}, s76 offen sc1")
    A("s_mov_b64 exec, -1")
    A("v_mov_b32 v6, 0")
    A("v_mov_b32 v7, 0")
    A(f"ds_write_b64 v{hZ}, v[6:7] offset:{L_CNT}")
    A(f"ds_write_b64 v{hZ}, v[6:7] offset:{L_CNT+8}")
    A(f"ds_write_b64 v{hZ}, v[6:7] offset:{L_CNT+16}")
    A(f"ds_write_b64 v{hZ}, v[6:7] offset:{L_CNT+24}")
    srd(S_WO, 12, 6144 * 640 * 2)
    srd(S_WG, 16, 640 * 1536 * 2)
    srd(S_WU, 18, 640 * 1536 * 2)
    srd(S_WD, 20, 1536 * 640 * 2)
    srd(S_OUT, 22, 5120)
    A("s_waitcnt lgkmcnt(0)")
    A("s_barrier")
    A("s_waitcnt vmcnt(10)")
    stamp(1, "start")
    layernorm(hX, hF, hT)
    A(f"v_add_u32 v{hAD}, s75, v{hL4}")
    for u in range(5):
        A(f"ds_write_b32 v{hAD}, v{hX+u} offset:{L_XN+256*u}")
    A("s_waitcnt lgkmcnt(0)")
    lds_inc(hZ, hONE, L_CNT)
    A(f"v_lshrrev_b32 v{hT}, 4, v0")
    A(f"v_and_b32 v{hT+1}, 3, v0")
    A(f"v_mul_u32_u24 v{hAD}, 1280, v{hT+1}")
    A(f"v_lshlrev_b32 v{hT+2}, 3, v{hT}")
    A(f"v_add_u32 v{hAD}, v{hAD}, v{hT+2}")
    A(f"s_mul_i32 s77, {sJ}, 160")
    A(f"v_add_u32 v{hAD}, s77, v{hAD}")
    A(f"v_bfe_u32 v{hT+2}, v0, 2, 2")
    A(f"v_lshlrev_b32 v{hT+3}, 2, v{hT}")
    A(f"v_add_u32 v{hT+3}, v{hT+3}, v{hT+2}")
    A(f"v_mul_u32_u24 v{hAD+1}, 96, v{hT+3}")
    A(f"v_lshlrev_b32 v{hT+1}, 3, v{hT+1}")
    A(f"v_add_u32 v{hAD+1}, v{hAD+1}, v{hT+1}")
    A(f"v_add_u32 v{hAD+1}, s83, v{hAD+1}")
    lds_wait(hZ, hT, L_CNT, 4)
    for t in range(5):
        A(f"ds_read_b64 v[{hA+2*t}:{hA+2*t+1}], v{hAD} offset:{L_XN+32*t}")
    A(f"buffer_load_dwordx2 v[{hNC}:{hNC+1}], v{hZ}, {S_DBG}, 0 offen sc1")
    for k in range(12):
        A(f"v_mov_b32 v{hD+k}, 0")
    stamp(2, "start")
    A("s_waitcnt vmcnt(3)")
    stamp(3, "start")
    for tt in range(3):
        for t in range(5):
            r = hB + 2 * (tt * 5 + t)
            A(f"ds_read_b64_tr_b16 v[{r}:{r+1}], v{hAD+1} offset:{16*96*t+32*tt}")
    for tt in range(3):
        A(f"s_waitcnt lgkmcnt({10-5*tt})")
        for t in range(5):
            r = hB + 2 * (tt * 5 + t)
            A(f"v_mfma_f32_16x16x16_bf16 v[{hD+4*tt}:{hD+4*tt+3}], v[{hA+2*t}:{hA+2*t+1}], v[{r}:{r+1}], v[{hD+4*tt}:{hD+4*tt+3}]")
    A("v_cmp_lt_u32 vcc, 15, v0")
    for tt in range(3):
        A(f"v_cndmask_b32 v{hD+4*tt}, v{hD+4*tt}, v{hD+4*tt+2}, vcc")
        A(f"v_cndmask_b32 v{hD+4*tt+1}, v{hD+4*tt+1}, v{hD+4*tt+3}, vcc")
    A("s_waitcnt vmcnt(0)")
    stamp(4, "start")
    A(f"s_mov_b32 s81, {spin_g}")
    A.label("L_gf")
    A(f"v_readfirstlane_b32 s78, v{hNC}")
    A(f"v_readfirstlane_b32 s79, v{hNC+1}")
    A("s_cmp_eq_u32 s78, 0")
    A("s_cselect_b32 s80, 0, s79")
    A("s_cmp_lg_u32 s80, 0")
    A("s_cbranch_scc1 L_gfd")
    A("s_sleep 2")
    A(f"buffer_load_dwordx2 v[{hNC}:{hNC+1}], v{hZ}, {S_DBG}, 0 offen sc1")
    A("s_waitcnt vmcnt(0)")
    A("s_sub_u32 s81, s81, 1")
    A("s_cmp_lg_u32 s81, 0")
    A("s_cbranch_scc1 L_gf")
    A.label("L_gfd")
    stamp(5, "start")
    for tt in range(3):
        A(f"v_mov_b32 v{hD+4*tt+2}, v{hNC}")
        A(f"v_mov_b32 v{hD+4*tt+3}, v{hNC+1}")
    A("s_mul_i32 s76, s2, 6144")
    A("s_mul_i32 s77, s3, 1536")
    A("s_add_u32 s76, s76, s77")
    A("s_mov_b32 exec_hi, 0")
    for tt in range(3):
        if not noqstore:
            A(f"buffer_store_dwordx4 v[{hD+4*tt}:{hD+4*tt+3}], v{hL16}, {S_WS}, s76 offen offset:{512*tt} sc1")
    A("s_mov_b32 exec_hi, -1")
    for k in range(qdelay):
        A("s_sleep 16")
    stamp(1)
    A(f"s_mul_i32 s76, {sG}, {8*6144}")
    A("s_add_u32 s76, s76, s77")
    A(f"v_bfe_u32 v{hT}, v0, 4, 1")
    A(f"v_mul_u32_u24 v{hAD}, 768, v{hT}")
    A(f"v_lshrrev_b32 v{hT}, 5, v0")
    A(f"v_lshl_add_u32 v{hAD}, v{hT}, 5, v{hAD}")
    A(f"v_and_b32 v{hT}, 15, v0")
    A(f"v_lshl_add_u32 v{hAD}, v{hT}, 1, v{hAD}")
    A("s_mul_i32 s77, s3, 96")
    A(f"v_add_u32 v{hAD}, s77, v{hAD}")
    hGB = hA
    if noqpoll:
        A("s_branch L_qgd")
    if not lightpoll:
        A("s_branch L_qld")
    A(f"v_mul_u32_u24 v{hAD+1}, 6144, v0")
    A(f"s_mov_b32 s81, {spin_g}")
    A("s_mov_b64 exec, 0xff")
    A.label("L_ql")
    A(f"buffer_load_dwordx2 v[{hT}:{hT+1}], v{hAD+1}, {S_WS}, s76 offen offset:{1536-8} sc1")
    A("s_waitcnt vmcnt(0)")
    A(f"v_cmp_ne_u64 vcc, v[{hT}:{hT+1}], v[{hNC}:{hNC+1}]")
    A("s_cbranch_vccz L_qld")
    A(f"s_sleep {qsleep}")
    A("s_sub_u32 s81, s81, 1")
    A("s_cmp_lg_u32 s81, 0")
    A("s_cbranch_scc1 L_ql")
    A.label("L_qld")
    A("s_mov_b64 exec, -1")
    A(f"s_mov_b32 s81, {spin_g}")
    A.label("L_qg")
    A("s_mov_b32 s77, s76")
    for jj in range(8):
        A(f"buffer_load_dwordx4 v[{hG+4*jj}:{hG+4*jj+3}], v{hL16}, {S_WS}, s77 offen sc1")
        A("s_mov_b32 exec_hi, 0")
        A(f"buffer_load_dwordx4 v[{hGB+4*jj}:{hGB+4*jj+3}], v{hL16}, {S_WS}, s77 offen offset:1024 sc1")
        A("s_mov_b32 exec_hi, -1")
        A("s_add_u32 s77, s77, 6144")
    A("s_waitcnt vmcnt(0)")
    A(f"v_xor_b32 v{hT}, v{hG+2}, v{hNC}")
    A(f"v_xor_b32 v{hT+1}, v{hG+3}, v{hNC+1}")
    for jj in range(1, 8):
        A(f"v_xor_b32 v{hT+2}, v{hG+4*jj+2}, v{hNC}")
        A(f"v_xor_b32 v{hT+3}, v{hG+4*jj+3}, v{hNC+1}")
        A(f"v_or3_b32 v{hT}, v{hT}, v{hT+2}, v{hT+3}")
    A("s_mov_b32 exec_hi, 0")
    for jj in range(8):
        A(f"v_xor_b32 v{hT+2}, v{hGB+4*jj+2}, v{hNC}")
        A(f"v_xor_b32 v{hT+3}, v{hGB+4*jj+3}, v{hNC+1}")
        A(f"v_or3_b32 v{hT+1}, v{hT+1}, v{hT+2}, v{hT+3}")
    A("s_mov_b32 exec_hi, -1")
    A(f"v_or_b32 v{hT}, v{hT}, v{hT+1}")
    A(f"v_cmp_ne_u32 vcc, 0, v{hT}")
    A("s_cbranch_vccz L_qgd")
    A("s_sleep 1")
    A("s_sub_u32 s81, s81, 1")
    A("s_cmp_lg_u32 s81, 0")
    A("s_cbranch_scc1 L_qg")
    A.label("L_qgd")
    stamp(6, "start")
    for jj in range(1, 8):
        for e in range(2):
            A(f"v_add_f32 v{hG+e}, v{hG+e}, v{hG+4*jj+e}")
            A(f"v_add_f32 v{hGB+e}, v{hGB+e}, v{hGB+4*jj+e}")
    A(f"v_cvt_pk_bf16_f32 v{hG+4}, v{hG}, v{hG+1}")
    A(f"v_cvt_pk_bf16_f32 v{hG+5}, v{hGB}, v{hGB+1}")
    A(f"ds_write_b16 v{hAD}, v{hG+4} offset:{L_QL}")
    A(f"ds_write_b16_d16_hi v{hAD}, v{hG+4} offset:{L_QL+384}")
    A("s_mov_b32 exec_hi, 0")
    A(f"ds_write_b16 v{hAD}, v{hG+5} offset:{L_QL+64}")
    A(f"ds_write_b16_d16_hi v{hAD}, v{hG+5} offset:{L_QL+64+384}")
    A("s_mov_b32 exec_hi, -1")
    A("s_waitcnt lgkmcnt(0)")
    lds_inc(hZ, hONE, L_CNT + 4)
    stamp(2)
    if prio:
        A("s_setprio 0")
    def tr_addr(dst, rowbytes, k16=False, base="s83"):
        A(f"v_lshrrev_b32 v{hT}, 4, v0")
        A(f"v_lshlrev_b32 v{hT}, {2 if k16 else 3}, v{hT}")
        A(f"v_bfe_u32 v{hT+1}, v0, 2, 2")
        A(f"v_add_u32 v{hT}, v{hT}, v{hT+1}")
        A(f"v_mul_u32_u24 v{dst}, {rowbytes}, v{hT}")
        A(f"v_and_b32 v{hT+1}, 3, v0")
        A(f"v_lshlrev_b32 v{hT+1}, 3, v{hT+1}")
        A(f"v_add_u32 v{dst}, v{dst}, v{hT+1}")
        A(f"v_add_u32 v{dst}, {base}, v{dst}")

    def count_in(tag):
        A("s_waitcnt vmcnt(0)")
        lds_inc(hZ, hONE, L_CNT + 8)
        A("s_cmp_lg_u32 s3, 0")
        A(f"s_cbranch_scc1 L_nocount_{tag}")
        lds_wait(hZ, hT, L_CNT + 8, 4)
        A("s_mov_b64 exec, 1")
        A(f"buffer_atomic_add v{hONE}, v{hZ}, {S_DBG}, 0 offen offset:128")
        A("s_mov_b64 exec, -1")
        A.label(f"L_nocount_{tag}")

    def check_all_reset(tag):
        lds_wait(hZ, hT, L_CNT + 12, 1, sleep=32)
        A(f"s_mov_b32 s81, {spin_g}")
        A("s_movk_i32 s80, 0x100")
        A.label(f"L_af_{tag}")
        A(f"buffer_load_dword v{hT}, v{hZ}, {S_DBG}, 0 offen offset:128 sc1")
        A("s_waitcnt vmcnt(0)")
        A(f"v_cmp_ne_u32 vcc, s80, v{hT}")
        A(f"s_cbranch_vccz L_afd_{tag}")
        A("s_sleep 32")
        A("s_sub_u32 s81, s81, 1")
        A("s_cmp_lg_u32 s81, 0")
        A(f"s_cbranch_scc1 L_af_{tag}")
        A.label(f"L_afd_{tag}")

    for k in range(4):
        A(f"v_mov_b32 v{hG+k}, -1")
    A(f"s_cmp_eq_u32 {sJ}, 5")
    A("s_cbranch_scc1 L_role_ffn")
    A(f"s_cmp_gt_u32 {sJ}, 5")
    A("s_cbranch_scc1 L_role_red")

    A(f"s_mul_i32 s32, {sG}, 10240")
    A(f"s_lshl_b32 s77, {sJ}, 11")
    A("s_add_u32 s32, s32, s77")
    A("s_lshl_b32 s77, s3, 9")
    A("s_add_u32 s32, s32, s77")
    A(f"s_add_u32 s32, s32, {YP_OFF}")
    A("s_mov_b32 exec_hi, 0")
    A(f"buffer_store_dwordx4 v[{hG}:{hG+3}], v{hL16}, {S_WS}, s32 offen sc1")
    A("s_mov_b32 exec_hi, -1")
    count_in("wo")
    if not noweights:
        if coop_wo:
            A(f"v_lshrrev_b32 v{hAD}, 4, v0")
            A(f"v_mul_u32_u24 v{hAD}, 1280, v{hAD}")
            A(f"v_and_b32 v{hT}, 15, v0")
            A(f"v_lshl_add_u32 v{hAD}, v{hT}, 4, v{hAD}")
            A(f"s_mul_i32 s76, {sG}, {192*1280}")
            A(f"s_lshl_b32 s77, {sJ}, 8")
            A("s_add_u32 s76, s76, s77")
            A(f"s_mul_i32 s77, s3, {48*1280}")
            A("s_add_u32 s76, s76, s77")
            for u in range(12):
                A(f"s_add_u32 m0, s83, {1024*u}")
                A(f"buffer_load_dwordx4 v{hAD}, {S_WO}, s76 offen {wo_pol} lds")
                A(f"s_add_u32 s76, s76, {4*1280}")
            A("s_lshl_b32 s77, s3, 6")
            tr_addr(hAD + 1, 256, base="s77")
            A("s_waitcnt vmcnt(0)")
            lds_inc(hZ, hONE, L_CNT + 20)
            lds_wait(hZ, hT, L_CNT + 20, 4, sleep=4)
            rb = 256
        else:
            A(f"v_lshrrev_b32 v{hAD}, 2, v0")
            A(f"v_mul_u32_u24 v{hAD}, 1280, v{hAD}")
            A(f"v_and_b32 v{hT}, 3, v0")
            A(f"v_lshl_add_u32 v{hAD}, v{hT}, 4, v{hAD}")
            A(f"s_mul_i32 s76, {sG}, {192*1280}")
            A(f"s_lshl_b32 s77, {sJ}, 8")
            A("s_add_u32 s76, s76, s77")
            A("s_lshl_b32 s77, s3, 6")
            A("s_add_u32 s76, s76, s77")
            for u in range(12):
                A(f"s_add_u32 m0, s83, {1024*u}")
                A(f"buffer_load_dwordx4 v{hAD}, {S_WO}, s76 offen {wo_pol} lds")
                A(f"s_add_u32 s76, s76, {16*1280}")
            tr_addr(hAD + 1, 64)
            A("s_waitcnt vmcnt(0)")
            rb = 64
        for tt in range(2):
            for t in range(6):
                for hf in range(2):
                    r = hW1 + 4 * (tt * 6 + t) + 2 * hf
                    A(f"ds_read_b64_tr_b16 v[{r}:{r+1}], v{hAD+1} offset:{(32*t+4*hf)*rb+32*tt}")
    hAF, hOD = 122, 124
    A(f"v_and_b32 v{hT}, 3, v0")
    A(f"v_lshrrev_b32 v{hT+1}, 4, v0")
    A(f"v_lshlrev_b32 v{hT+1}, 4, v{hT+1}")
    A(f"v_mul_u32_u24 v{hAF}, 384, v{hT}")
    A(f"v_add_u32 v{hAF}, v{hAF}, v{hT+1}")
    A(f"v_lshrrev_b32 v{hT}, 3, v0")
    A(f"v_mul_u32_u24 v{hT}, 3, v{hT}")
    A(f"v_and_b32 v{hT+1}, 7, v0")
    A(f"v_lshlrev_b32 v{hT+1}, 4, v{hT+1}")
    A("s_mul_i32 s76, s3, 384")
    A(f"v_add_u32 v{hT+1}, s76, v{hT+1}")
    for r in range(3):
        A(f"v_add_u32 v{hT+2}, {r}, v{hT}")
        A(f"v_lshrrev_b32 v{hT+3}, 3, v{hT+2}")
        A(f"v_lshlrev_b32 v{hT+3}, 7, v{hT+3}")
        A(f"v_and_b32 v{hT+2}, 7, v{hT+2}")
        A(f"v_lshlrev_b32 v{hT+2}, 1, v{hT+2}")
        A(f"v_add3_u32 v{hOD+r}, v{hT+1}, v{hT+2}, v{hT+3}")
    A("s_lshl_b32 s77, s3, 5")
    A(f"s_add_u32 s77, s77, {sG}")
    A("s_lshl_b32 s77, s77, 13")
    A(f"s_add_u32 s77, s77, {OP_OFF}")
    A("s_add_u32 s78, s77, 4096")
    A(f"v_and_b32 v{hT}, 1, v0")
    A(f"v_cmp_ne_u32 s[34:35], 0, v{hT}")
    A("s_waitcnt lgkmcnt(0)")
    A("s_barrier")
    stamp(3)
    lt = [f"buffer_load_dwordx4 v[{hG+4*jj}:{hG+4*jj+3}], v{hL16}, {S_WS}, {'s77' if jj < 4 else 's78'} offen offset:{1024*(jj&3)} sc1" for jj in range(8)]
    poll(lt, range(hG, hG + 32), hT, sleep=psleep)
    stamp(4)
    hMx = hB
    hWt = hB + 8
    for jj in range(8):
        A(f"v_mov_b32_dpp v{hMx+jj}, v{hG+4*jj+3} quad_perm:[1,0,3,2] {DPP}")
    for jj in range(8):
        A(f"v_cndmask_b32 v{hWt+jj}, v{hG+4*jj+3}, v{hMx+jj}, s[34:35]")
        A(f"v_cndmask_b32 v{hMx+jj}, v{hMx+jj}, v{hG+4*jj+3}, s[34:35]")
    A(f"v_max3_f32 v{hT}, v{hWt}, v{hWt+1}, v{hWt+2}")
    A(f"v_max3_f32 v{hT+1}, v{hWt+3}, v{hWt+4}, v{hWt+5}")
    A(f"v_max3_f32 v{hT}, v{hT}, v{hWt+6}, v{hWt+7}")
    A(f"v_max_f32 v{hT}, v{hT}, v{hT+1}")
    for jj in range(8):
        A(f"v_sub_f32 v{hWt+jj}, v{hWt+jj}, v{hT}")
    for jj in range(8):
        A(f"v_mul_f32 v{hWt+jj}, {LOG2E}, v{hWt+jj}")
    for jj in range(8):
        A(f"v_exp_f32 v{hWt+jj}, v{hWt+jj}")
    A(f"v_mul_f32 v{hT+1}, v{hWt}, v{hMx}")
    for r in range(3):
        A(f"v_mul_f32 v{hT+2+r}, v{hWt}, v{hG+r}")
    for jj in range(1, 8):
        A(f"v_fmac_f32 v{hT+1}, v{hWt+jj}, v{hMx+jj}")
        for r in range(3):
            A(f"v_fmac_f32 v{hT+2+r}, v{hWt+jj}, v{hG+4*jj+r}")
    A(f"v_rcp_f32 v{hT}, v{hT+1}")
    for r in range(3):
        A(f"v_mul_f32 v{hT+2+r}, v{hT+2+r}, v{hT}")
    A(f"v_cvt_pk_bf16_f32 v{hT}, v{hT+2}, v{hT+3}")
    A(f"v_cvt_pk_bf16_f32 v{hT+1}, v{hT+4}, v{hT+4}")
    A(f"ds_write_b16 v{hOD}, v{hT} offset:{L_OL}")
    A(f"ds_write_b16_d16_hi v{hOD+1}, v{hT} offset:{L_OL}")
    A(f"ds_write_b16 v{hOD+2}, v{hT+1} offset:{L_OL}")
    A("s_waitcnt lgkmcnt(0)")
    A("s_barrier")
    for t in range(6):
        A(f"ds_read_b128 v[{hA+4*t}:{hA+4*t+3}], v{hAF} offset:{L_OL+64*t}")
    for t in range(6):
        A(f"s_waitcnt lgkmcnt({5-t})")
        for tt in range(2):
            r = hW1 + 4 * (tt * 6 + t)
            c = "0" if t == 0 else f"v[{hD+4*tt}:{hD+4*tt+3}]"
            A(f"v_mfma_f32_16x16x32_bf16 v[{hD+4*tt}:{hD+4*tt+3}], v[{hA+4*t}:{hA+4*t+3}], v[{r}:{r+3}], {c}")
    for k in range(8):
        A(f"v_min_u32 v{hD+k}, -2, v{hD+k}")
    A("s_mov_b64 exec, 0xffff")
    for tt in range(2):
        A(f"buffer_store_dwordx4 v[{hD+4*tt}:{hD+4*tt+3}], v{hL16}, {S_WS}, s32 offen offset:{256*tt} sc1")
    A("s_mov_b64 exec, -1")
    stamp(5)
    A("s_branch L_h_end")

    A.label("L_role_red")
    A(f"s_lshl_b32 s33, {sG}, 1")
    A(f"s_add_u32 s33, s33, {sJ}")
    A("s_sub_u32 s33, s33, 6")
    A("s_lshl_b32 s77, s3, 6")
    A("s_add_u32 s33, s33, s77")
    A("s_lshl_b32 s34, s33, 6")
    A(f"s_add_u32 s34, s34, {HB_OFF}")
    A("s_cmp_lt_u32 s33, 80")
    A(f"s_cselect_b32 s76, s34, {OOB}")
    A("s_mov_b64 exec, 0xf")
    A(f"buffer_store_dwordx4 v[{hG}:{hG+3}], v{hL16}, {S_WS}, s76 offen sc1")
    A("s_mov_b64 exec, -1")
    count_in("red")
    A("s_cmp_ge_u32 s33, 80")
    A("s_cbranch_scc1 L_h_end")
    A("s_lshl_b32 s35, s33, 4")
    A(f"v_and_b32 v{hT+2}, 6, v0")
    A(f"v_lshlrev_b32 v{hAD}, 1, v{hT+2}")
    for bb in range(4):
        A(f"buffer_load_dword v{hX+bb}, v{hAD}, {S_X}, s35 offen offset:{1280*bb}")
    A(f"v_lshlrev_b32 v{hAD+2}, 3, v{hT+2}")
    A(f"v_lshrrev_b32 v{hT+2}, 3, v0")
    A(f"v_mul_u32_u24 v{hAD+1}, 10240, v{hT+2}")
    A(f"v_and_b32 v{hT+2}, 7, v0")
    A(f"v_lshl_add_u32 v{hAD+1}, v{hT+2}, 4, v{hAD+1}")
    check_all_reset("red")
    hRS = hB
    for bb in range(4):
        A(f"v_lshlrev_b32 v{hRS+2*bb}, 16, v{hX+bb}")
        A(f"v_and_b32 v{hRS+2*bb+1}, 0xffff0000, v{hX+bb}")
    A("s_barrier")
    stamp(3)

    def reduce32(base_off, st):
        A("s_lshl_b32 s76, s33, 7")
        A(f"s_add_u32 s76, s76, {base_off}")
        for u in range(1, 4):
            A(f"s_add_u32 s{76+u}, s76, {81920*u}")
        lt = [f"buffer_load_dwordx4 v[{hG+4*u}:{hG+4*u+3}], v{hAD+1}, {S_WS}, s{76+u} offen sc1" for u in range(4)]
        poll(lt, range(hG, hG + 16), hT, sleep=psleep)
        stamp(st)
        for bb in range(4):
            A(f"v_add_f32 v{hG+bb}, v{hG+bb}, v{hG+4+bb}")
            A(f"v_add_f32 v{hG+8+bb}, v{hG+8+bb}, v{hG+12+bb}")
        for bb in range(4):
            A(f"v_add_f32 v{hG+bb}, v{hG+bb}, v{hG+8+bb}")
        for bb in range(4):
            A(f"v_add_f32_dpp v{hG+bb}, v{hG+bb}, v{hG+bb} row_ror:8 {DPP}")
        for sw in ("v_permlane16_swap_b32", "v_permlane32_swap_b32"):
            for bb in range(4):
                A(f"v_mov_b32 v{hG+4+bb}, v{hG+bb}")
            for bb in range(4):
                A(f"{sw} v{hG+bb}, v{hG+4+bb}")
            for bb in range(4):
                A(f"v_add_f32 v{hG+bb}, v{hG+bb}, v{hG+4+bb}")
        for bb in range(4):
            A(f"v_mov_b32_dpp v{hG+4+bb}, v{hG+bb} quad_perm:[1,0,3,2] {DPP}")
        for bb in range(4):
            A(f"v_cvt_pk_bf16_f32 v{hG+bb}, v{hG+bb}, v{hG+4+bb}")
        for bb in range(4):
            A(f"v_lshlrev_b32 v{hF+2*bb}, 16, v{hG+bb}")
            A(f"v_and_b32 v{hF+2*bb+1}, 0xffff0000, v{hG+bb}")
        for bb in range(4):
            A(f"v_add_f32 v{hF+2*bb}, v{hF+2*bb}, v{hRS+2*bb}")
            A(f"v_add_f32 v{hF+2*bb+1}, v{hF+2*bb+1}, v{hRS+2*bb+1}")
        for bb in range(4):
            A(f"v_cvt_pk_bf16_f32 v{hG+bb}, v{hF+2*bb}, v{hF+2*bb+1}")

    reduce32(YP_OFF, 4)
    for bb in range(4):
        A(f"v_min_u32 v{hG+16+bb}, -2, v{hG+bb}")
    A("s_mov_b64 exec, 0x55")
    A(f"buffer_store_dwordx4 v[{hG+16}:{hG+19}], v{hAD+2}, {S_WS}, s34 offen sc1")
    A("s_mov_b64 exec, -1")
    stamp(5)
    for bb in range(4):
        A(f"v_lshlrev_b32 v{hRS+2*bb}, 16, v{hG+bb}")
        A(f"v_and_b32 v{hRS+2*bb+1}, 0xffff0000, v{hG+bb}")
    reduce32(ZP_OFF, 6)
    A("s_mov_b64 exec, 0x55")
    for bb in range(4):
        A(f"buffer_store_dword v{hG+bb}, v{hAD}, {S_OUT}, s35 offen offset:{1280*bb}")
    A("s_mov_b64 exec, -1")
    A("s_branch L_h_end")

    A.label("L_role_ffn")
    fA, fD, fWD, fWG = 32, 52, 76, 136
    fD2 = fWG
    fAD = 6
    A(f"s_mul_i32 s32, {sG}, 10240")
    A("s_mul_i32 s77, s3, 2560")
    A("s_add_u32 s32, s32, s77")
    A(f"s_add_u32 s32, s32, {ZP_OFF}")
    A(f"buffer_store_dwordx4 v[{hG}:{hG+3}], v{hL16}, {S_WS}, s32 offen sc1")
    A(f"buffer_store_dwordx4 v[{hG}:{hG+3}], v{hL16}, {S_WS}, s32 offen offset:1024 sc1")
    A("s_mov_b32 exec_hi, 0")
    A(f"buffer_store_dwordx4 v[{hG}:{hG+3}], v{hL16}, {S_WS}, s32 offen offset:2048 sc1")
    A("s_mov_b32 exec_hi, -1")
    count_in("ffn")
    if not noweights:
        A(f"v_mul_u32_u24 v{hT}, 43, v0")
        A(f"v_lshrrev_b32 v{hT}, 8, v{hT}")
        A(f"v_mul_u32_u24 v{hT+1}, 6, v{hT}")
        A(f"v_sub_u32 v{hT+1}, v0, v{hT+1}")
        A(f"v_mul_u32_u24 v{hAD}, 3072, v{hT}")
        A(f"v_lshl_add_u32 v{hAD}, v{hT+1}, 4, v{hAD}")
        tr_addr(hAD + 1, 96)
        for mi, srdn in enumerate((S_WG, S_WU)):
            A(f"s_mul_i32 s76, {sG}, 96")
            A(f"s_mul_i32 s77, s3, {160*3072}")
            A("s_add_u32 s76, s76, s77")
            for (t0, nt) in ((0, 3), (3, 2)):
                A("s_mov_b32 exec_hi, 0xffff")
                for u in range(4 * nt):
                    A(f"s_add_u32 m0, s83, {768*u}")
                    A(f"buffer_load_dwordx4 v{hAD}, {srdn}, s76 offen {ffn_pol} lds")
                    A(f"s_add_u32 s76, s76, {8*3072}")
                A("s_mov_b32 exec_hi, -1")
                A("s_waitcnt vmcnt(0)")
                for tile in range(3):
                    for t in range(nt):
                        for hf in range(2):
                            r = fWG + 4 * ((mi * 3 + tile) * 5 + t0 + t) + 2 * hf
                            A(f"ds_read_b64_tr_b16 v[{r}:{r+1}], v{hAD+1} offset:{(32*t+4*hf)*96+32*tile}")
                A("s_waitcnt lgkmcnt(0)")
        A(f"s_mul_i32 s76, {sG}, {48*1280}")
        A("s_mul_i32 s77, s3, 15360")
        A("s_add_u32 s76, s76, s77")
        A(f"s_add_u32 s77, s77, {L_SBUF}")
        lds_wait(hZ, hT, L_CNT + 16, 4, sleep=16)
        for u in range(15):
            A(f"s_add_u32 m0, s77, {1024*u}")
            A(f"buffer_load_dwordx4 v{hL16}, {S_WD}, s76 offen {ffn_pol} lds")
            A("s_add_u32 s76, s76, 1024")
        A("s_mul_i32 s77, s3, 320")
        A(f"s_add_u32 s77, s77, {L_SBUF}")
        tr_addr(hAD + 1, 1280, k16=True, base="s77")
        A("s_waitcnt vmcnt(0)")
        lds_inc(hZ, hONE, L_CNT + 20)
        lds_wait(hZ, hT, L_CNT + 20, 4, sleep=4)
        for nt in range(10):
            for t in range(3):
                r = fWD + 2 * (nt * 3 + t)
                A(f"ds_read_b64_tr_b16 v[{r}:{r+1}], v{hAD+1} offset:{16*t*1280+32*nt}")
        A("s_waitcnt lgkmcnt(0)")
    check_all_reset("ffn")
    fXW, fAF, fRW, fRR, fAW, fA2 = 5, 6, 7, 13, 14, 15
    A("s_mul_i32 s75, s3, 1280")
    A("s_lshl_b32 s79, s3, 2")
    A(f"s_add_u32 s79, s79, {HB_OFF}")
    A("s_add_u32 s78, s79, 4096")
    A(f"v_add_u32 v{fXW}, s75, v{hL4}")
    A(f"v_and_b32 v{hT}, 3, v0")
    A(f"v_lshrrev_b32 v{hT+1}, 4, v0")
    A(f"v_mul_u32_u24 v{fAF}, 1280, v{hT}")
    A(f"v_lshl_add_u32 v{fAF}, v{hT+1}, 4, v{fAF}")
    A("s_mul_i32 s82, s3, 320")
    A(f"v_add_u32 v{fAF}, s82, v{fAF}")
    A("s_mul_i32 s82, s3, 1536")
    A(f"v_add_u32 v{fRW}, s82, v{hL16}")
    A(f"v_and_b32 v{hT+2}, 15, v0")
    A(f"v_lshlrev_b32 v{fRR}, 4, v{hT+2}")
    A(f"v_lshl_add_u32 v{fRR}, v{hT+1}, 2, v{fRR}")
    A("s_lshl_b32 s82, s3, 8")
    A(f"v_add_u32 v{fRR}, s82, v{fRR}")
    A(f"v_mul_u32_u24 v{fAW}, 96, v{hT+1}")
    A(f"v_lshl_add_u32 v{fAW}, v{hT+2}, 1, v{fAW}")
    A("s_lshl_b32 s82, s3, 5")
    A(f"v_add_u32 v{fAW}, s82, v{fAW}")
    A(f"v_mul_u32_u24 v{fA2}, 96, v{hT}")
    A(f"v_lshl_add_u32 v{fA2}, v{hT+1}, 3, v{fA2}")
    A("s_barrier")
    stamp(3)
    lt = [f"buffer_load_dword v{hX+u}, v{hL16}, {S_WS}, {'s79' if u < 4 else 's78'} offen offset:{1024*(u&3)} sc1" for u in range(5)]
    poll(lt, range(hX, hX + 5), hT, sleep=psleep)
    stamp(4)
    layernorm(hX, hF, hT)
    for u in range(5):
        A(f"ds_write_b32 v{fXW}, v{hX+u} offset:{L_XN+256*u}")
    A("s_waitcnt lgkmcnt(0)")
    A("s_barrier")
    for t in range(5):
        A(f"ds_read_b128 v[{fA+4*t}:{fA+4*t+3}], v{fAF} offset:{L_XN+64*t}")
    for t in range(5):
        A(f"s_waitcnt lgkmcnt({4-t})")
        for tile in range(6):
            r = fWG + 4 * (tile * 5 + t)
            c = "0" if t == 0 else f"v[{fD+4*tile}:{fD+4*tile+3}]"
            A(f"v_mfma_f32_16x16x32_bf16 v[{fD+4*tile}:{fD+4*tile+3}], v[{fA+4*t}:{fA+4*t+3}], v[{r}:{r+3}], {c}")
    A("s_mov_b64 exec, 0xffff")
    for tile in range(6):
        A(f"ds_write_b128 v{fRW}, v[{fD+4*tile}:{fD+4*tile+3}] offset:{L_RED+256*tile}")
    A("s_mov_b64 exec, -1")
    A("s_waitcnt lgkmcnt(0)")
    A("s_barrier")
    A("s_cmp_eq_u32 s3, 3")
    A("s_cbranch_scc1 L_noact")
    for ww in range(4):
        for gu in range(2):
            A(f"ds_read_b32 v{hF+4*gu+ww}, v{fRR} offset:{L_RED+1536*ww+768*gu}")
    A("s_waitcnt lgkmcnt(0)")
    for gu in range(2):
        f = hF + 4 * gu
        A(f"v_add_f32 v{f}, v{f}, v{f+1}")
        A(f"v_add_f32 v{f+2}, v{f+2}, v{f+3}")
        A(f"v_add_f32 v{f}, v{f}, v{f+2}")
    rnd(hF, hF)
    rnd(hF + 4, hF + 4)
    A(f"v_mul_f32 v{hF+1}, 0xbfb8aa3b, v{hF}")
    A(f"v_exp_f32 v{hF+1}, v{hF+1}")
    A(f"v_add_f32 v{hF+1}, 1.0, v{hF+1}")
    A(f"v_rcp_f32 v{hF+1}, v{hF+1}")
    A(f"v_mul_f32 v{hF}, v{hF}, v{hF+1}")
    rnd(hF, hF)
    A(f"v_mul_f32 v{hF}, v{hF}, v{hF+4}")
    A(f"v_cvt_pk_bf16_f32 v{hF}, v{hF}, v{hF}")
    A(f"ds_write_b16 v{fAW}, v{hF} offset:{L_OL}")
    A("s_waitcnt lgkmcnt(0)")
    A.label("L_noact")
    A("s_barrier")
    for t in range(3):
        A(f"ds_read_b64 v[{fA+2*t}:{fA+2*t+1}], v{fA2} offset:{L_OL+32*t}")
    for t in range(3):
        A(f"s_waitcnt lgkmcnt({2-t})")
        for nt in range(10):
            r = fWD + 2 * (nt * 3 + t)
            c = "0" if t == 0 else f"v[{fD2+4*nt}:{fD2+4*nt+3}]"
            A(f"v_mfma_f32_16x16x16_bf16 v[{fD2+4*nt}:{fD2+4*nt+3}], v[{fA+2*t}:{fA+2*t+1}], v[{r}:{r+1}], {c}")
    A("s_mov_b64 exec, 0xffff")
    for nt in range(10):
        for k in range(4):
            A(f"v_min_u32 v{fD2+4*nt+k}, -2, v{fD2+4*nt+k}")
        A(f"buffer_store_dwordx4 v[{fD2+4*nt}:{fD2+4*nt+3}], v{hL16}, {S_WS}, s32 offen offset:{256*nt} sc1")
    A("s_mov_b64 exec, -1")
    stamp(5)
    A.label("L_h_end")
    stamp(7)
    stamp_flush(1, 32)
    A.label("L_end")
    A("s_endpgm")
    body = A.text()
    s = wrap(body, HEADER, 256, 512, LDS_BYTES, 256, 102)
    s = s.replace("  .amdhsa_group_segment_fixed_size 0\n", "  .amdhsa_group_segment_fixed_size 0\n  .amdhsa_float_denorm_mode_32 3\n")
    return s


if __name__ == "__main__":
    kw = eval("dict(%s)" % (sys.argv[2] if len(sys.argv) > 2 else ""))
    open(sys.argv[1], "w").write(gen(**kw))
```

```python
import sys
sys.path.insert(0, "work")
from asmlib import *

HEADER = open("sequential_preLN__gqa_block_cached__swiglu_ffn__decode.s.ref").read().split("; Override launch")[0]
DOC = """; One persistent launch, 256 workgroups x 8 waves (one workgroup per CU).  G = wg>>3, j = wg&7.
;             fragments in registers and run the tail: j<5 wo block, j>=6 reducers (+residual), j==5 SwiGLU FFN slice.
"""

QP_OFF = 0x000000
OP_OFF = 0x200000
YP_OFF = 0x400000
ZP_OFF = 0x500000
HB_OFF = 0x600000
CT_OFF = 0x610000
ST_OFF = 0x800000
WS_SIZE = 0x1000000
OOB = 0x80000000
TASKB = 4096 * 384

L_STAGE = 0
L_XN = 49152
L_QL = L_XN + 5120
L_OL = L_QL + 1536
L_RED = L_OL + 1536
L_CNT = L_RED + 6144
L_SBUF = L_CNT + 64
C_SYNC0, C_SYNC1, C_QRDY, C_SFREE, C_WSYNC, L_TAG = [L_CNT + x for x in (0, 4, 8, 12, 16, 24)]

LOG2E = "0x3fb8aa3b"
SCALE = "0x3d93cd3a"
EPS = "0x3727c5ac"
INV640 = "0x3acccccd"
F640 = "0x44200000"

S_WS, S_K, S_V, S_X, S_WQ, S_DBG, S_WO, S_WG, S_WU, S_WD, S_OUT = [f"s[{28+4*i}:{31+4*i}]" for i in range(11)]
sG, sJ, sB, sH = "s72", "s73", "s74", "s82"
DPP = "row_mask:0xf bank_mask:0xf"


def gen(D=2, S0=56, XF=16, PACE=2, NL=4, stamps=False, spin_g=200000, spin_l=4000000, prio=True, psleep=1, qsleep=2,
        mix=True, nocompute=False, noweights=False, noqx=False, touch_op=False, touch_y=False, selpoll=True, ln1=True, satom=True):
    NS = 8
    E = NS - D
    NL1 = min(NL, 4)
    assert NL <= 6
    LDS_BYTES = L_SBUF + 4 * 4 * 6144
    assert LDS_BYTES <= 163840
    NB = E + NL
    R0 = D * (1 + -(-NB // (2 * D)))
    assert (S0 - NS - NL) % D == 0
    nA = (S0 - NS - NL - R0) // D - 1
    POOL = 512 - 8 * S0 + XF
    assert XF % D == 0 and XF // D < nA and NL <= E
    A = Asm()

    def srd(name, ptr_lo, size, add=None):
        r = int(name[2:name.index(":")])
        if add is None:
            A(f"s_mov_b32 s{r}, s{ptr_lo}")
            A(f"s_mov_b32 s{r+1}, s{ptr_lo+1}")
        else:
            A(f"s_add_u32 s{r}, s{ptr_lo}, {add}")
            A(f"s_addc_u32 s{r+1}, s{ptr_lo+1}, 0")
        A(f"s_mov_b32 s{r+2}, {size}")
        A(f"s_mov_b32 s{r+3}, 0x20000")

    def stamp(k, which="main"):
        if stamps and (which == stamps or (which == "main" and stamps is True) or k == 0):
            A(f"s_memrealtime s[{84+2*k}:{85+2*k}]")

    def stamp_flush(vt):
        if not stamps:
            return
        A("s_waitcnt lgkmcnt(0)")
        for k in range(16):
            A(f"v_mov_b32 v{vt+k}, s{84+k}")
        A("s_lshl_b32 s81, s2, 3")
        A("s_add_u32 s81, s81, s3")
        A("s_lshl_b32 s81, s81, 6")
        A(f"s_add_u32 s81, s81, {ST_OFF}")
        A(f"v_mov_b32 v{vt+16}, 0")
        A("s_mov_b64 exec, 1")
        for k in range(4):
            A(f"buffer_store_dwordx4 v[{vt+4*k}:{vt+4*k+3}], v{vt+16}, {S_WS}, s81 offen offset:{16*k}")
        A("s_mov_b64 exec, -1")

    def allred16_32(op, x, t):
        A(f"v_mov_b32 v{t}, v{x}")
        A(f"v_permlane16_swap_b32 v{x}, v{t}")
        A(f"{op} v{x}, v{x}, v{t}")
        A(f"v_mov_b32 v{t}, v{x}")
        A(f"v_permlane32_swap_b32 v{x}, v{t}")
        A(f"{op} v{x}, v{x}, v{t}")

    def allred64(op, x, t):
        for pat in ("quad_perm:[1,0,3,2]", "quad_perm:[2,3,0,1]", "row_ror:4", "row_ror:8"):
            A(f"{op}_dpp v{x}, v{x}, v{x} {pat} {DPP}")
        allred16_32(op, x, t)

    def rnd(dst, src):
        A(f"v_cvt_pk_bf16_f32 v{dst}, v{src}, v{src}")
        A(f"v_lshlrev_b32 v{dst}, 16, v{dst}")

    def div640(x, t0, t1):
        A(f"v_mul_f32 v{t0}, {INV640}, v{x}")
        A(f"v_fma_f32 v{t1}, -v{t0}, s80, v{x}")
        A(f"v_mul_f32 v{t1}, {INV640}, v{t1}")
        A(f"v_add_f32 v{x}, v{t0}, v{t1}")

    def layernorm(src, dst, f, t):
        A(f"s_mov_b32 s80, {F640}")
        for u in range(5):
            A(f"v_lshlrev_b32 v{f+2*u}, 16, v{src[u]}")
            A(f"v_and_b32 v{f+2*u+1}, 0xffff0000, v{src[u]}")
        A(f"v_add_f32 v{t}, v{f}, v{f+1}")
        A(f"v_add_f32 v{t+1}, v{f+2}, v{f+3}")
        A(f"v_add_f32 v{t+2}, v{f+4}, v{f+5}")
        A(f"v_add_f32 v{t+3}, v{f+6}, v{f+7}")
        A(f"v_add_f32 v{t+4}, v{f+8}, v{f+9}")
        A(f"v_add_f32 v{t}, v{t}, v{t+1}")
        A(f"v_add_f32 v{t+2}, v{t+2}, v{t+3}")
        A(f"v_add_f32 v{t}, v{t}, v{t+4}")
        A(f"v_add_f32 v{t}, v{t}, v{t+2}")
        if ln1:
            A(f"v_readfirstlane_b32 s79, v{f}")
            A(f"v_subrev_f32 v{t+2}, s79, v{f}")
            A(f"v_mul_f32 v{t+1}, v{t+2}, v{t+2}")
            for i in range(1, 10):
                A(f"v_subrev_f32 v{t+2+(i&1)}, s79, v{f+i}")
                A(f"v_fmac_f32 v{t+1}, v{t+2+(i&1)}, v{t+2+(i&1)}")
            for pat in ("quad_perm:[1,0,3,2]", "quad_perm:[2,3,0,1]", "row_ror:4", "row_ror:8"):
                for x in (t, t + 1):
                    A(f"v_add_f32_dpp v{x}, v{x}, v{x} {pat} {DPP}")
            for sw in ("v_permlane16_swap_b32", "v_permlane32_swap_b32"):
                for x in (t, t + 1):
                    A(f"v_mov_b32 v{x+2}, v{x}")
                for x in (t, t + 1):
                    A(f"{sw} v{x}, v{x+2}")
                for x in (t, t + 1):
                    A(f"v_add_f32 v{x}, v{x}, v{x+2}")
            div640(t, t + 2, t + 3)
            div640(t + 1, t + 4, t + 5)
            A(f"v_subrev_f32 v{t+2}, s79, v{t}")
            A(f"v_fma_f32 v{t+1}, -v{t+2}, v{t+2}, v{t+1}")
            A(f"v_max_f32 v{t+1}, 0, v{t+1}")
        else:
            allred64("v_add_f32", t, t + 1)
            div640(t, t + 1, t + 2)
            A(f"v_sub_f32 v{t+2}, v{f}, v{t}")
            A(f"v_mul_f32 v{t+1}, v{t+2}, v{t+2}")
            for i in range(1, 10):
                A(f"v_sub_f32 v{t+2+(i&1)}, v{f+i}, v{t}")
                A(f"v_fmac_f32 v{t+1}, v{t+2+(i&1)}, v{t+2+(i&1)}")
            allred64("v_add_f32", t + 1, t + 2)
            div640(t + 1, t + 2, t + 3)
        rnd(t, t)
        rnd(t + 1, t + 1)
        A(f"v_add_f32 v{t+1}, {EPS}, v{t+1}")
        rnd(t + 1, t + 1)
        A(f"v_sqrt_f32 v{t+1}, v{t+1}")
        rnd(t + 1, t + 1)
        A(f"v_rcp_f32 v{t+2}, v{t+1}")
        for u in range(5):
            a, b = f + 2 * u, f + 2 * u + 1
            A(f"v_sub_f32 v{a}, v{a}, v{t}")
            A(f"v_sub_f32 v{b}, v{b}, v{t}")
            A(f"v_cvt_pk_bf16_f32 v{b}, v{a}, v{b}")
            A(f"v_lshlrev_b32 v{a}, 16, v{b}")
            A(f"v_and_b32 v{b}, 0xffff0000, v{b}")
            A(f"v_mul_f32 v{t+3}, v{a}, v{t+2}")
            A(f"v_mul_f32 v{t+4}, v{b}, v{t+2}")
            A(f"v_fma_f32 v{a}, -v{t+3}, v{t+1}, v{a}")
            A(f"v_fma_f32 v{b}, -v{t+4}, v{t+1}, v{b}")
            A(f"v_fmac_f32 v{t+3}, v{a}, v{t+2}")
            A(f"v_fmac_f32 v{t+4}, v{b}, v{t+2}")
            A(f"v_cvt_pk_bf16_f32 v{dst+u}, v{t+3}, v{t+4}")

    def poll_tagged(loads, tagpairs, tag, tmp, sleep=0, mask=None):
        Lp, Ld = A.newlabel("L_poll"), A.newlabel("L_pdone")
        A(f"s_mov_b32 s81, {spin_g}")
        if mask is not None:
            A(f"s_mov_b64 exec, {mask}")
        A.label(Lp)
        for l in loads:
            A(l)
        A("s_waitcnt vmcnt(0)")
        if len(tagpairs) == 1:
            r = tagpairs[0]
            A(f"v_cmp_ne_u64 vcc, v[{r}:{r+1}], v[{tag}:{tag+1}]")
        else:
            for i, r in enumerate(tagpairs):
                if i == 0:
                    A(f"v_xor_b32 v{tmp}, v{r}, v{tag}")
                    A(f"v_xor_b32 v{tmp+1}, v{r+1}, v{tag+1}")
                else:
                    A(f"v_xor_b32 v{tmp+2}, v{r}, v{tag}")
                    A(f"v_xor_b32 v{tmp+3}, v{r+1}, v{tag+1}")
                    A(f"v_or3_b32 v{tmp+(i&1)}, v{tmp+(i&1)}, v{tmp+2}, v{tmp+3}")
            A(f"v_or_b32 v{tmp}, v{tmp}, v{tmp+1}")
            A(f"v_cmp_ne_u32 vcc, 0, v{tmp}")
        A(f"s_cbranch_vccz {Ld}")
        if sleep:
            A(f"s_sleep {sleep}")
        A("s_sub_u32 s81, s81, 1")
        A("s_cmp_lg_u32 s81, 0")
        A(f"s_cbranch_scc1 {Lp}")
        A.label(Ld)
        if mask is not None:
            A("s_mov_b64 exec, -1")

    def poll_sel(groups, tag, sleep=0):
        Lp, Ld = A.newlabel("L_poll"), A.newlabel("L_pdone")
        A(f"s_mov_b32 s81, {spin_g}")
        for loads, _ in groups:
            for l in loads:
                A(l)
        A.label(Lp)
        A("s_waitcnt vmcnt(0)")
        for i, (_, pairs) in enumerate(groups):
            m = f"s[{4+2*i}:{5+2*i}]"
            for k, r in enumerate(pairs):
                if k == 0:
                    A(f"v_cmp_ne_u64 {m}, v[{r}:{r+1}], v[{tag}:{tag+1}]")
                else:
                    A(f"v_cmp_ne_u64 vcc, v[{r}:{r+1}], v[{tag}:{tag+1}]")
                    A(f"s_or_b64 {m}, {m}, vcc")
        A("s_or_b64 s[38:39], s[4:5], s[6:7]")
        for i in range(2, len(groups)):
            A(f"s_or_b64 s[38:39], s[38:39], s[{4+2*i}:{5+2*i}]")
        A(f"s_cbranch_scc0 {Ld}")
        if sleep:
            A(f"s_sleep {sleep}")
        for i, (loads, _) in enumerate(groups):
            A(f"s_mov_b64 exec, s[{4+2*i}:{5+2*i}]")
            for l in loads:
                A(l)
        A("s_mov_b64 exec, -1")
        A("s_sub_u32 s81, s81, 1")
        A("s_cmp_lg_u32 s81, 0")
        A(f"s_cbranch_scc1 {Lp}")
        A("s_waitcnt vmcnt(0)")
        A.label(Ld)

    def lds_wait(addr_v, val_v, off, target, sleep=1):
        Lp, Ld = A.newlabel("L_lw"), A.newlabel("L_lwd")
        A(f"s_mov_b32 s81, {spin_l}")
        A.label(Lp)
        A(f"ds_read_b32 v{val_v}, v{addr_v} offset:{off}")
        A("s_waitcnt lgkmcnt(0)")
        A(f"v_readfirstlane_b32 s79, v{val_v}")
        A(f"s_cmp_ge_u32 s79, {target}")
        A(f"s_cbranch_scc1 {Ld}")
        A(f"s_sleep {sleep}")
        A("s_sub_u32 s81, s81, 1")
        A("s_cmp_lg_u32 s81, 0")
        A(f"s_cbranch_scc1 {Lp}")
        A.label(Ld)

    def lds_inc(zero_v, one_v, off):
        A("s_mov_b64 exec, 1")
        A(f"ds_add_u32 v{zero_v}, v{one_v} offset:{off}")
        A("s_mov_b64 exec, -1")

    A("s_cmp_ge_u32 s2, 256")
    A("s_cbranch_scc1 L_end")
    A("s_load_dwordx16 s[4:19], s[0:1], 0")
    A("s_load_dwordx8 s[20:27], s[0:1], 64")
    A("v_lshrrev_b32 v1, 6, v0")
    A("v_and_b32 v0, 63, v0")
    A("v_readfirstlane_b32 s3, v1")
    A(f"s_lshr_b32 {sG}, s2, 3")
    A(f"s_and_b32 {sJ}, s2, 7")
    A(f"s_and_b32 {sB}, s3, 3")
    if mix:
        A(f"s_mul_i32 {sH}, {sB}, {sJ}")
        A(f"s_add_u32 {sH}, {sH}, {sG}")
        A(f"s_and_b32 {sH}, {sH}, 31")
    else:
        A(f"s_mov_b32 {sH}, {sG}")
    if stamps:
        for k in range(16):
            A(f"s_mov_b32 s{84+k}, 0")
    A("s_cmp_lt_u32 s3, 4")
    A("s_cbranch_scc1 L_helper")

    vOFF, vZ = 1, 2
    T = 3
    vTAG = 8
    vM, vL = 11, 12
    vAL, vP = 14, 16
    vU = 18
    vLB = 22
    vQ = 24
    vACC = 36
    vTK = 60
    vSLOT = 64
    sOFF, sCT, sOP = "s75", "s76", "s83"
    sSL = 60

    kreg = lambda slot, i: vSLOT + slot * 24 + 4 * i
    vreg = lambda slot, i: vSLOT + slot * 24 + 12 + 4 * i
    vmq = []

    def vwait(tag, first=False):
        idx = [k for k, t in enumerate(vmq) if t == tag]
        if not idx:
            return
        i = idx[2] if first else idx[-1]
        n = len(vmq) - 1 - i
        assert n <= 63
        A(f"s_waitcnt vmcnt({n})")
        del vmq[:i + 1]

    def issueK(slot, soff):
        for i in range(3):
            r = kreg(slot, i)
            A(f"buffer_load_dwordx4 v[{r}:{r+3}], v{vOFF}, {S_K}, {soff} offen offset:{128*i} nt")
            vmq.append(("K", slot))

    def issueV(slot, soff):
        for i in range(3):
            r = vreg(slot, i)
            A(f"buffer_load_dwordx4 v[{r}:{r+3}], v{vOFF}, {S_V}, {soff} offen offset:{128*i} nt")
            vmq.append(("V", slot))

    def atomic(slot):
        A(f"v_mov_b32 v{vTK+slot}, 1")
        A("s_mov_b64 exec, 1")
        A(f"buffer_atomic_add v{vTK+slot}, v{vZ}, {S_WS}, {sCT} offen sc0")
        A("s_mov_b64 exec, -1")
        vmq.append(("T", slot))

    def consumeK(slot, mid=None):
        t0, t1, t2, t3, t4 = T, T + 1, T + 2, T + 3, T + 4
        k = kreg(slot, 0)
        if nocompute:
            for e in range(0, 12, 4):
                A(f"v_xor_b32 v{vL}, v{vL}, v{k+e}")
            if mid:
                mid()
            return
        for e in range(6):
            A(f"v_dot2_f32_bf16 v{t0}, v{k+e}, v{vQ+e}, " + ("0" if e == 0 else f"v{t0}"))
            A(f"v_dot2_f32_bf16 v{t1}, v{k+6+e}, v{vQ+6+e}, " + ("0" if e == 0 else f"v{t1}"))
        if mid:
            mid()
        A(f"v_add_f32 v{t0}, v{t0}, v{t1}")
        A(f"v_add_f32_dpp v{t0}, v{t0}, v{t0} quad_perm:[1,0,3,2] {DPP}")
        A(f"v_add_f32_dpp v{t0}, v{t0}, v{t0} quad_perm:[2,3,0,1] {DPP}")
        A(f"v_add_f32_dpp v{t0}, v{t0}, v{t0} row_half_mirror {DPP}")
        rnd(t1, t0)
        A(f"v_mul_f32 v{t1}, {SCALE}, v{t1}")
        rnd(t1, t1)
        A(f"v_max_f32 v{t2}, v{vM}, v{t1}")
        A(f"v_sub_f32 v{t3}, v{vM}, v{t2}")
        A(f"v_sub_f32 v{t4}, v{t1}, v{t2}")
        A(f"v_mul_f32 v{t3}, {LOG2E}, v{t3}")
        A(f"v_mul_f32 v{t4}, {LOG2E}, v{t4}")
        A(f"v_exp_f32 v{vAL}, v{t3}")
        A(f"v_exp_f32 v{vP}, v{t4}")
        A(f"v_mov_b32 v{vM}, v{t2}")
        A(f"v_fma_f32 v{vL}, v{vL}, v{vAL}, v{vP}")
        for a in range(12):
            r = vACC + 2 * a
            A(f"v_pk_mul_f32 v[{r}:{r+1}], v[{r}:{r+1}], v[{vAL}:{vAL+1}] op_sel_hi:[1,0]")

    def consumeV(slot):
        v = vreg(slot, 0)
        if nocompute:
            for e in range(0, 12, 4):
                A(f"v_xor_b32 v{vL}, v{vL}, v{v+e}")
            return
        for a in range(12):
            u = vU + 2 * (a & 1)
            r = vACC + 2 * a
            A(f"v_lshlrev_b32 v{u}, 16, v{v+a}")
            A(f"v_and_b32 v{u+1}, 0xffff0000, v{v+a}")
            A(f"v_pk_fma_f32 v[{r}:{r+1}], v[{u}:{u+1}], v[{vP}:{vP+1}], v[{r}:{r+1}] op_sel_hi:[1,0,1]")

    stamp(0)
    A(f"v_lshrrev_b32 v{T}, 3, v0")
    A(f"v_mul_u32_u24 v{T}, 384, v{T}")
    A(f"v_and_b32 v{T+1}, 7, v0")
    A(f"v_lshl_add_u32 v{vOFF}, v{T+1}, 4, v{T}")
    A(f"v_mov_b32 v{vZ}, 0")
    A(f"s_lshl_b32 s77, {sB}, 5")
    A(f"s_add_u32 s77, s77, {sH}")
    A(f"s_mul_i32 s78, s77, {TASKB}")
    A(f"s_mul_i32 {sOFF}, {sJ}, 3072")
    A(f"s_lshl_b32 {sCT}, s77, 8")
    A(f"s_add_u32 {sCT}, {sCT}, {CT_OFF}")
    A(f"s_lshl_b32 {sOP}, s77, 3")
    A(f"s_add_u32 {sOP}, {sOP}, {sJ}")
    A(f"s_lshl_b32 {sOP}, {sOP}, 11")
    A(f"s_add_u32 {sOP}, {sOP}, {OP_OFF}")
    A(f"s_mul_i32 s77, {sB}, {4*6144}")
    A(f"s_add_u32 s77, s77, {L_SBUF}")
    A(f"s_mul_i32 s80, {sB}, 12288")
    A(f"v_lshlrev_b32 v{vLB+1}, 4, v0")
    A(f"v_add_u32 v{vLB}, s77, v{vLB+1}")
    A(f"v_add_u32 v{vLB+1}, s80, v{vLB+1}")
    A("s_waitcnt lgkmcnt(0)")
    srd(S_K, 6, TASKB, "s78")
    srd(S_V, 8, TASKB, "s78")
    srd(S_WS, 26, WS_SIZE)
    A(f"s_add_u32 s66, s26, {sCT}")
    A("s_addc_u32 s67, s27, 0")
    A("s_barrier")
    last = lambda n: ("V", n) if n < NS else ("L", n - NS)
    for n in range(NS + NL):
        if n >= PACE:
            vwait(last(n - PACE))
            if n - PACE + 2 < 8:
                stamp(n - PACE + 2, "start")
        if n < NS:
            issueK(n, sOFF)
            issueV(n, sOFF)
        else:
            li = n - NS
            if li == 4:
                lds_wait(vZ, T, C_SYNC1, 4)
            for kv in range(2):
                for i in range(3):
                    A(f"s_add_u32 m0, {'s77' if li < 4 else 's80'}, {(li&3)*6144 + (3*kv+i)*1024 - 128*i}")
                    A(f"buffer_load_dwordx4 v{vOFF}, {S_K if kv == 0 else S_V}, {sOFF} offen offset:{128*i} nt lds")
                    vmq.append(("L", n - NS))
        A(f"s_add_u32 {sOFF}, {sOFF}, {8*3072}")
        if n == 0:
            A(f"v_mov_b32 v{vM}, 0xff7fffff")
            A(f"v_mov_b32 v{vL}, 0")
            for a in range(24):
                A(f"v_mov_b32 v{vACC+a}, 0")
    stamp(1)
    lds_wait(vZ, T, C_QRDY, 4)
    A(f"v_and_b32 v{T}, 7, v0")
    A(f"v_lshlrev_b32 v{T}, 4, v{T}")
    A(f"s_mul_i32 s78, {sB}, 384")
    A(f"v_add_u32 v{T}, s78, v{T}")
    for i in range(3):
        A(f"ds_read_b128 v[{vQ+4*i}:{vQ+4*i+3}], v{T} offset:{L_QL+128*i}")
    A(f"ds_read_b64 v[{vTAG}:{vTAG+1}], v{vZ} offset:{L_TAG}")
    A("s_waitcnt lgkmcnt(0)")
    if touch_op:
        A(f"v_lshlrev_b32 v{T}, 4, v0")
        A(f"buffer_store_dwordx4 v[{vACC}:{vACC+3}], v{T}, {S_WS}, {sOP} offen sc1")
        A(f"buffer_store_dwordx4 v[{vACC}:{vACC+3}], v{T}, {S_WS}, {sOP} offen offset:1024 sc1")
    stamp(2)

    def static_step(slot, with_atomic=False, save=False):
        vwait(("K", slot))

        def mid():
            if with_atomic:
                atomic(slot)
            issueK(slot, sOFF)
        consumeK(slot, mid)
        vwait(("V", slot), first=True)
        consumeV(slot)
        issueV(slot, sOFF)
        if save:
            A(f"s_mov_b32 s{sSL+slot}, {sOFF}")
        A(f"s_add_u32 {sOFF}, {sOFF}, {8*3072}")

    for s in range(D):
        static_step(s)
    backlog = [("reg", D + e) for e in range(E)] + [("lds", i) for i in range(NL)]
    nring = R0 - D
    done = 0
    for r in range(nring + 1):
        upto = len(backlog) if r == nring else (len(backlog) * (r + 1) + nring) // (nring + 1)
        while done < upto:
            kind, x = backlog[done]
            done += 1
            if kind == "reg":
                vwait(("K", x))
                consumeK(x)
                vwait(("V", x))
                consumeV(x)
                i = x - D
                if i < NL:
                    vwait(("L", i))
                    for k in range(6):
                        rr = vSLOT + x * 24 + 4 * k
                        A(f"ds_read_b128 v[{rr}:{rr+3}], v{vLB+(i>>2)} offset:{(i&3)*6144+1024*k}")
            else:
                A("s_waitcnt lgkmcnt(0)")
                if x == 0:
                    pass
                consumeK(D + x)
                consumeV(D + x)
        if r < nring:
            static_step(r % D)
    A(f"v_mov_b32 v{T}, 1")
    lds_inc(vZ, T, C_SFREE)
    A(f"s_cmp_eq_u32 {sJ}, 5")
    A(f"s_cselect_b32 s77, {nA - XF // D}, {nA}")
    A.label("L_loopA")
    shape = list(vmq)
    for s in range(D):
        static_step(s)
    assert vmq == shape, (vmq, shape)
    A("s_sub_u32 s77, s77, 1")
    A("s_cmp_lg_u32 s77, 0")
    A("s_cbranch_scc1 L_loopA")
    def satomic():
        A(f"s_mov_b32 s65, {D}")
        A("s_atomic_add s65, s[66:67], 0 glc")

    if satom:
        satomic()
    for s in range(D):
        static_step(s, with_atomic=not satom, save=True)
    stamp(3)
    A.label("L_loopB")
    shape = list(vmq)
    for s in range(D):
        A(f"s_cmp_ge_u32 s{sSL+s}, {TASKB}")
        A("s_cbranch_scc1 L_s_done")
        if satom and s == 0:
            A("s_waitcnt lgkmcnt(0)")
            A("s_mov_b32 s64, s65")
            satomic()
        vwait(("K", s))
        if satom:
            A(f"s_add_u32 s78, s64, {s}")
        else:
            A(f"v_readfirstlane_b32 s78, v{vTK+s}")

        def mid(s=s):
            A(f"s_min_u32 s78, s78, {POOL}")
            if XF:
                A("s_lshl_b32 s79, s78, 3")
                A(f"s_add_u32 s79, s79, {8*(S0-XF)+5}")
                A(f"s_add_u32 s80, s78, {8*S0-XF}")
                A(f"s_cmp_lt_u32 s78, {XF}")
                A("s_cselect_b32 s78, s79, s80")
            else:
                A(f"s_add_u32 s78, s78, {8*S0}")
            A(f"s_mul_i32 s{sSL+s}, s78, 3072")
            if not satom:
                atomic(s)
            issueK(s, f"s{sSL+s}")
        consumeK(s, mid)
        vwait(("V", s), first=True)
        consumeV(s)
        issueV(s, f"s{sSL+s}")
    assert vmq == shape, (vmq, shape)
    A("s_branch L_loopB")
    A.label("L_s_done")
    stamp(4)
    t0, t1 = T, T + 1
    A(f"v_max_f32_dpp v{t0}, v{vM}, v{vM} row_ror:8 {DPP}")
    allred16_32("v_max_f32", t0, t1)
    A(f"v_sub_f32 v{t1}, v{vM}, v{t0}")
    A(f"v_mul_f32 v{t1}, {LOG2E}, v{t1}")
    A(f"v_exp_f32 v{vAL}, v{t1}")
    A(f"v_mul_f32 v{vL}, v{vL}, v{vAL}")
    for a in range(12):
        r = vACC + 2 * a
        A(f"v_pk_mul_f32 v[{r}:{r+1}], v[{r}:{r+1}], v[{vAL}:{vAL+1}] op_sel_hi:[1,0]")
    A(f"v_add_f32_dpp v{vL}, v{vL}, v{vL} row_ror:8 {DPP}")
    allred16_32("v_add_f32", vL, t1)
    for a in range(12):
        A(f"v_permlane32_swap_b32 v{vACC+a}, v{vACC+12+a}")
    for a in range(12):
        A(f"v_add_f32 v{vACC+a}, v{vACC+a}, v{vACC+12+a}")
    for a in range(6):
        A(f"v_permlane16_swap_b32 v{vACC+a}, v{vACC+6+a}")
    for a in range(6):
        A(f"v_add_f32 v{vACC+a}, v{vACC+a}, v{vACC+6+a}")
    A(f"v_and_b32 v{t1}, 8, v0")
    A(f"v_cmp_ne_u32 vcc, 0, v{t1}")
    O0, O1 = vQ, vQ + 4
    dst = [O0, O0 + 1, O1]
    for r in range(3):
        A(f"v_cndmask_b32 v{vU+r}, v{vACC+3+r}, v{vACC+r}, vcc")
        A(f"v_cndmask_b32 v{dst[r]}, v{vACC+r}, v{vACC+3+r}, vcc")
    A(f"v_and_b32 v{t1}, 1, v0")
    A(f"v_cmp_ne_u32 vcc, 0, v{t1}")
    for r in range(3):
        A(f"v_add_f32_dpp v{dst[r]}, v{vU+r}, v{dst[r]} row_ror:8 {DPP}")
    A(f"v_cndmask_b32 v{O1+1}, v{t0}, v{vL}, vcc")
    for o in (O0, O1):
        A(f"v_mov_b32 v{o+2}, v{vTAG}")
        A(f"v_mov_b32 v{o+3}, v{vTAG+1}")
    A(f"v_lshlrev_b32 v{t1}, 4, v0")
    A(f"buffer_store_dwordx4 v[{O0}:{O0+3}], v{t1}, {S_WS}, {sOP} offen sc1")
    A(f"buffer_store_dwordx4 v[{O1}:{O1+3}], v{t1}, {S_WS}, {sOP} offen offset:1024 sc1")
    stamp(5)
    A("s_barrier")
    stamp_flush(36)
    A("s_endpgm")

    A.label("L_helper")
    stamp(0)
    if prio:
        A("s_setprio 2")
    hZ, hONE, hL4, hL16 = 1, 2, 3, 4
    hAD = 5
    hX = 8
    hNC = 14
    hF = 16
    hT = 26
    hA = 32
    hD = 80
    hB = 92
    hG = 128
    hW1 = 160
    A(f"v_mov_b32 v{hZ}, 0")
    A(f"v_mov_b32 v{hONE}, 1")
    A(f"v_lshlrev_b32 v{hL4}, 2, v0")
    A(f"v_lshlrev_b32 v{hL16}, 4, v0")
    for i in range(3):
        A(f"v_add_u32 v{hT}, {64*i}, v0")
        A(f"v_mul_u32_u24 v{hT+1}, 2731, v{hT}")
        A(f"v_lshrrev_b32 v{hT+1}, 16, v{hT+1}")
        A(f"v_mul_u32_u24 v{hT+2}, 24, v{hT+1}")
        A(f"v_sub_u32 v{hT}, v{hT}, v{hT+2}")
        A(f"v_mul_u32_u24 v{hT+1}, 12288, v{hT+1}")
        A(f"v_lshl_add_u32 v{hAD+i}, v{hT}, 4, v{hT+1}")
    A("s_mul_i32 s75, s3, 1280")
    A(f"s_mul_i32 s76, {sJ}, {80*12288}")
    A(f"s_mul_i32 s77, {sG}, 384")
    A("s_add_u32 s76, s76, s77")
    A(f"s_mul_i32 s77, s3, {8*12288}")
    A("s_add_u32 s76, s76, s77")
    A("s_mul_i32 s83, s3, 3072")
    A("s_waitcnt lgkmcnt(0)")
    srd(S_X, 4, 5120)
    srd(S_WQ, 10, 640 * 6144 * 2)
    for u in range(5):
        A(f"buffer_load_dword v{hX+u}, v{hL4}, {S_X}, s75 offen offset:{256*u}")
    for blk in range(3):
        if blk == 2:
            A("s_cmp_lt_u32 s3, 2")
            A(f"s_cselect_b32 s76, s76, {OOB}")
        for i in range(3):
            A(f"s_add_u32 m0, s83, {blk*4*3072 + 1024*i}")
            A(f"buffer_load_dwordx4 v{hAD+i}, {S_WQ}, s76 offen nt lds")
        A(f"s_add_u32 s76, s76, {32*12288}")
    srd(S_DBG, 24, 256)
    srd(S_WS, 26, WS_SIZE)
    A("s_add_u32 s77, s2, s3")
    A("s_cmp_lg_u32 s77, 0")
    A("s_cbranch_scc1 L_notag")
    A("s_memrealtime s[78:79]")
    A("s_waitcnt lgkmcnt(0)")
    A("s_or_b32 s78, s78, 1")
    A("s_or_b32 s79, s79, 0x80000000")
    A(f"v_mov_b32 v{hNC}, s78")
    A(f"v_mov_b32 v{hNC+1}, s79")
    A("s_mov_b64 exec, 1")
    A(f"buffer_store_dwordx2 v[{hNC}:{hNC+1}], v{hZ}, {S_DBG}, 0 offen sc1")
    A("s_mov_b64 exec, -1")
    A.label("L_notag")
    A("s_lshl_b32 s76, s3, 5")
    A(f"s_add_u32 s76, s76, {sG}")
    A("s_lshl_b32 s76, s76, 8")
    A(f"s_add_u32 s76, s76, {CT_OFF}")
    A(f"s_cmp_eq_u32 {sJ}, 0")
    A(f"s_cselect_b32 s76, s76, {OOB}")
    A("s_mov_b64 exec, 1")
    A(f"buffer_store_dword v{hZ}, v{hZ}, {S_WS}, s76 offen sc1")
    A("s_mov_b64 exec, -1")
    for k in range(4):
        A(f"v_mov_b32 v{hG+k}, 0")
    A(f"ds_write_b128 v{hZ}, v[{hG}:{hG+3}] offset:{L_CNT}")
    A(f"ds_write_b32 v{hZ}, v{hG} offset:{L_CNT+16}")
    A("s_waitcnt lgkmcnt(0)")
    A("s_barrier")
    srd(S_WO, 12, 6144 * 640 * 2)
    srd(S_WG, 16, 640 * 1536 * 2)
    srd(S_WU, 18, 640 * 1536 * 2)
    srd(S_WD, 20, 1536 * 640 * 2)
    srd(S_OUT, 22, 5120)
    A("s_waitcnt vmcnt(10)")
    stamp(1, "start")
    layernorm([hX + u for u in range(5)], hX, hF, hT)
    A(f"v_add_u32 v{hAD}, s75, v{hL4}")
    for u in range(5):
        A(f"ds_write_b32 v{hAD}, v{hX+u} offset:{L_XN+256*u}")
    A(f"buffer_load_dwordx2 v[{hNC}:{hNC+1}], v{hZ}, {S_DBG}, 0 offen sc1")
    A(f"v_lshrrev_b32 v{hT}, 4, v0")
    A(f"v_and_b32 v{hT+1}, 3, v0")
    A(f"v_mul_u32_u24 v{hAD}, 1280, v{hT+1}")
    A(f"v_lshl_add_u32 v{hAD}, v{hT}, 3, v{hAD}")
    A(f"s_mul_i32 s77, {sJ}, 160")
    A(f"v_add_u32 v{hAD}, s77, v{hAD}")
    A(f"v_bfe_u32 v{hT+2}, v0, 2, 2")
    A(f"v_lshl_add_u32 v{hT+3}, v{hT}, 2, v{hT+2}")
    A(f"v_mul_u32_u24 v{hAD+1}, 384, v{hT+3}")
    A(f"v_lshl_add_u32 v{hAD+1}, v{hT+1}, 3, v{hAD+1}")
    A("s_mul_i32 s77, s3, 96")
    A(f"v_add_u32 v{hAD+1}, s77, v{hAD+1}")
    A("s_mul_i32 s77, s3, 192")
    A(f"v_add_u32 v{hAD+2}, s77, v{hL4}")
    A("s_waitcnt vmcnt(2) lgkmcnt(0)")
    stamp(2, "start")
    lds_inc(hZ, hONE, C_SYNC0)
    lds_wait(hZ, hT, C_SYNC0, 4)
    stamp(3, "start")
    for t in range(5):
        A(f"ds_read_b64 v[{hA+2*t}:{hA+2*t+1}], v{hAD} offset:{L_XN+32*t}")
    for tt in range(3):
        for t in range(5):
            r = hB + 2 * (tt * 5 + t)
            A(f"ds_read_b64_tr_b16 v[{r}:{r+1}], v{hAD+1} offset:{16*384*t+32*tt}")
    for tt in range(3):
        A(f"s_waitcnt lgkmcnt({10-5*tt})")
        for t in range(5):
            r = hB + 2 * (tt * 5 + t)
            c = "0" if t == 0 else f"v[{hD+4*tt}:{hD+4*tt+3}]"
            A(f"v_mfma_f32_16x16x16_bf16 v[{hD+4*tt}:{hD+4*tt+3}], v[{hA+2*t}:{hA+2*t+1}], v[{r}:{r+1}], {c}")
    A("s_mov_b64 exec, 0xffff")
    for tt in range(3):
        for b in range(4):
            A(f"ds_write_b32 v{hAD+2}, v{hD+4*tt+b} offset:{L_RED+768*b+64*tt}")
    A("s_mov_b64 exec, -1")
    A("s_lshl_b32 s76, s2, 12")
    A("s_lshl_b32 s77, s3, 10")
    A("s_add_u32 s76, s76, s77")
    A("s_mul_i32 s78, s3, 768")
    A(f"v_add_u32 v{hAD}, s78, v{hL16}")
    A("s_waitcnt lgkmcnt(0)")
    lds_inc(hZ, hONE, C_SYNC1)
    lds_wait(hZ, hT, C_SYNC1, 4)
    A(f"ds_read_b128 v[{hD}:{hD+3}], v{hAD} offset:{L_RED}")
    A("s_waitcnt lgkmcnt(0)")
    A("s_mov_b32 exec_hi, 0xffff")
    if not noqx:
        A(f"buffer_store_dwordx4 v[{hD}:{hD+3}], v{hL16}, {S_WS}, s76 offen sc1")
    A("s_mov_b32 exec_hi, -1")
    stamp(4, "start")
    A(f"s_lshl_b32 s78, {sH}, 15")
    A("s_add_u32 s78, s78, s77")
    A(f"v_lshlrev_b32 v{hAD+1}, 12, v0")
    A("s_mul_i32 s77, s3, 384")
    A(f"v_lshl_add_u32 v{hAD}, v0, 3, s77")
    A("s_waitcnt vmcnt(0)")
    stamp(5, "start")
    A(f"s_mov_b32 s81, {spin_g}")
    A.label("L_gf")
    A(f"v_readfirstlane_b32 s79, v{hNC}")
    A(f"v_readfirstlane_b32 s80, v{hNC+1}")
    A("s_cmp_eq_u32 s79, 0")
    A("s_cselect_b32 s80, 0, s80")
    A("s_cmp_lg_u32 s80, 0")
    A("s_cbranch_scc1 L_gfd")
    A("s_sleep 2")
    A(f"buffer_load_dwordx2 v[{hNC}:{hNC+1}], v{hZ}, {S_DBG}, 0 offen sc1")
    A("s_waitcnt vmcnt(0)")
    A("s_sub_u32 s81, s81, 1")
    A("s_cmp_lg_u32 s81, 0")
    A("s_cbranch_scc1 L_gf")
    A.label("L_gfd")
    A("s_mov_b64 exec, 1")
    if not noqx:
        A(f"buffer_store_dwordx2 v[{hNC}:{hNC+1}], v{hZ}, {S_WS}, s76 offen offset:768 sc1")
    A(f"ds_write_b64 v{hZ}, v[{hNC}:{hNC+1}] offset:{L_TAG}")
    A("s_mov_b64 exec, -1")
    stamp(1)
    if not noqx:
        poll_tagged([f"buffer_load_dwordx2 v[{hT}:{hT+1}], v{hAD+1}, {S_WS}, s78 offen offset:768 sc1"], [hT], hNC, hT + 2,
                    sleep=qsleep, mask="0xff")
        stamp(6, "start")
        A("s_mov_b32 exec_hi, 0xffff")
        for jj in range(8):
            A(f"buffer_load_dwordx4 v[{hG+4*jj}:{hG+4*jj+3}], v{hL16}, {S_WS}, s78 offen sc1")
            A("s_add_u32 s78, s78, 4096")
        for jj in range(1, 8):
            A(f"s_waitcnt vmcnt({7-jj})")
            for e in range(4):
                A(f"v_add_f32 v{hG+e}, v{hG+e}, v{hG+4*jj+e}")
    A("s_mov_b32 exec_hi, 0xffff")
    A(f"v_cvt_pk_bf16_f32 v{hG+4}, v{hG}, v{hG+1}")
    A(f"v_cvt_pk_bf16_f32 v{hG+5}, v{hG+2}, v{hG+3}")
    A(f"ds_write_b64 v{hAD}, v[{hG+4}:{hG+5}] offset:{L_QL}")
    A("s_mov_b32 exec_hi, -1")
    A("s_waitcnt lgkmcnt(0)")
    lds_inc(hZ, hONE, C_QRDY)
    stamp(2)
    stamp(7, "start")
    if prio:
        A("s_setprio 0")

    def tr_addr(dst, rowbytes, base, k16=False):
        A(f"v_lshrrev_b32 v{hT}, 4, v0")
        A(f"v_lshlrev_b32 v{hT}, {2 if k16 else 3}, v{hT}")
        A(f"v_bfe_u32 v{hT+1}, v0, 2, 2")
        A(f"v_add_u32 v{hT}, v{hT}, v{hT+1}")
        A(f"v_mul_u32_u24 v{dst}, {rowbytes}, v{hT}")
        A(f"v_and_b32 v{hT+1}, 3, v0")
        A(f"v_lshl_add_u32 v{dst}, v{hT+1}, 3, v{dst}")
        A(f"v_add_u32 v{dst}, {base}, v{dst}")

    def split_halves(d):
        A(f"v_cndmask_b32 v{d}, v{d}, v{d+2}, s[34:35]")
        A(f"v_cndmask_b32 v{d+1}, v{d+1}, v{d+3}, s[34:35]")
        A(f"v_mov_b32 v{d+2}, v{hNC}")
        A(f"v_mov_b32 v{d+3}, v{hNC+1}")

    hGO = 13
    A(f"v_and_b32 v{hT}, 15, v0")
    A(f"v_lshlrev_b32 v{hGO}, 5, v{hT}")
    A(f"v_and_b32 v{hT}, 16, v0")
    A(f"v_add_u32 v{hGO}, v{hGO}, v{hT}")
    A("v_cmp_lt_u32 s[34:35], 15, v0")
    A("s_mul_i32 s83, s3, 12288")
    A(f"s_cmp_eq_u32 {sJ}, 5")
    A("s_cbranch_scc1 L_role_ffn")
    A(f"s_cmp_gt_u32 {sJ}, 5")
    A("s_cbranch_scc1 L_role_red")

    A(f"s_mul_i32 s32, {sG}, 20480")
    A(f"s_lshl_b32 s77, {sJ}, 12")
    A("s_add_u32 s32, s32, s77")
    A("s_lshl_b32 s77, s3, 10")
    A("s_add_u32 s32, s32, s77")
    A(f"s_add_u32 s32, s32, {YP_OFF}")
    if touch_y:
        for k in range(4):
            A(f"v_mov_b32 v{hG+k}, 0")
        A(f"buffer_store_dwordx4 v[{hG}:{hG+3}], v{hL16}, {S_WS}, s32 offen sc1")
    if not noweights:
        A(f"v_lshrrev_b32 v{hAD}, 4, v0")
        A(f"v_mul_u32_u24 v{hAD}, 1280, v{hAD}")
        A(f"v_and_b32 v{hT}, 15, v0")
        A(f"v_lshl_add_u32 v{hAD}, v{hT}, 4, v{hAD}")
        A(f"s_mul_i32 s76, {sG}, {192*1280}")
        A(f"s_lshl_b32 s77, {sJ}, 8")
        A("s_add_u32 s76, s76, s77")
        A(f"s_mul_i32 s77, s3, {48*1280}")
        A("s_add_u32 s76, s76, s77")
        if NL > 4:
            lds_wait(hZ, hT, C_SFREE, 4, sleep=16)
        for u in range(12):
            A(f"s_add_u32 m0, s83, {1024*u}")
            A(f"buffer_load_dwordx4 v{hAD}, {S_WO}, s76 offen nt lds")
            A(f"s_add_u32 s76, s76, {4*1280}")
        A("s_lshl_b32 s77, s3, 6")
        tr_addr(hAD + 1, 256, "s77")
        A("s_waitcnt vmcnt(0)")
        lds_inc(hZ, hONE, C_WSYNC)
        lds_wait(hZ, hT, C_WSYNC, 4, sleep=4)
        for tt in range(2):
            for t in range(6):
                for hf in range(2):
                    r = hW1 + 4 * (tt * 6 + t) + 2 * hf
                    A(f"ds_read_b64_tr_b16 v[{r}:{r+1}], v{hAD+1} offset:{(32*t+4*hf)*256+32*tt}")
    hAF, hOD = 122, 124
    A(f"v_and_b32 v{hT}, 3, v0")
    A(f"v_lshrrev_b32 v{hT+1}, 4, v0")
    A(f"v_mul_u32_u24 v{hAF}, 384, v{hT}")
    A(f"v_lshl_add_u32 v{hAF}, v{hT+1}, 4, v{hAF}")
    A(f"v_lshrrev_b32 v{hT}, 3, v0")
    A(f"v_mul_u32_u24 v{hT}, 3, v{hT}")
    A(f"v_and_b32 v{hT+1}, 7, v0")
    A(f"v_lshlrev_b32 v{hT+1}, 4, v{hT+1}")
    A("s_mul_i32 s76, s3, 384")
    A(f"v_add_u32 v{hT+1}, s76, v{hT+1}")
    for r in range(3):
        A(f"v_add_u32 v{hT+2}, {r}, v{hT}")
        A(f"v_lshrrev_b32 v{hT+3}, 3, v{hT+2}")
        A(f"v_lshlrev_b32 v{hT+3}, 7, v{hT+3}")
        A(f"v_and_b32 v{hT+2}, 7, v{hT+2}")
        A(f"v_lshlrev_b32 v{hT+2}, 1, v{hT+2}")
        A(f"v_add3_u32 v{hOD+r}, v{hT+1}, v{hT+2}, v{hT+3}")
    A("s_lshl_b32 s76, s3, 5")
    A(f"s_add_u32 s76, s76, {sG}")
    A("s_lshl_b32 s76, s76, 14")
    A(f"s_add_u32 s76, s76, {OP_OFF}")
    for k in range(1, 4):
        A(f"s_add_u32 s{76+k}, s76, {4096*k}")
    A(f"v_and_b32 v{hT}, 1, v0")
    A(f"v_cmp_ne_u32 s[36:37], 0, v{hT}")
    A("s_waitcnt lgkmcnt(0)")
    A("s_barrier")
    stamp(3)
    g0 = lambda jj: hG + 4 * jj
    g1 = lambda jj: hA + 4 * jj
    lt = []
    for jj in range(8):
        for k, g in enumerate((g0(jj), g1(jj))):
            lt.append(f"buffer_load_dwordx4 v[{g}:{g+3}], v{hL16}, {S_WS}, s{76+(jj>>1)} offen offset:{2048*(jj&1)+1024*k} sc1")
    if selpoll:
        poll_sel([(lt[2*jj:2*jj+2], [g0(jj) + 2, g1(jj) + 2]) for jj in range(8)], hNC, sleep=psleep)
    else:
        poll_tagged(lt, [g0(jj) + 2 for jj in range(8)] + [g1(jj) + 2 for jj in range(8)], hNC, hT, sleep=psleep)
    stamp(4)
    hMx, hWt = hB, hB + 8
    for jj in range(8):
        A(f"v_mov_b32_dpp v{hMx+jj}, v{g1(jj)+1} quad_perm:[1,0,3,2] {DPP}")
    for jj in range(8):
        A(f"v_cndmask_b32 v{hWt+jj}, v{g1(jj)+1}, v{hMx+jj}, s[36:37]")
        A(f"v_cndmask_b32 v{hMx+jj}, v{hMx+jj}, v{g1(jj)+1}, s[36:37]")
    A(f"v_max3_f32 v{hT}, v{hWt}, v{hWt+1}, v{hWt+2}")
    A(f"v_max3_f32 v{hT+1}, v{hWt+3}, v{hWt+4}, v{hWt+5}")
    A(f"v_max3_f32 v{hT}, v{hT}, v{hWt+6}, v{hWt+7}")
    A(f"v_max_f32 v{hT}, v{hT}, v{hT+1}")
    for jj in range(8):
        A(f"v_sub_f32 v{hWt+jj}, v{hWt+jj}, v{hT}")
    for jj in range(8):
        A(f"v_mul_f32 v{hWt+jj}, {LOG2E}, v{hWt+jj}")
    for jj in range(8):
        A(f"v_exp_f32 v{hWt+jj}, v{hWt+jj}")
    oreg = lambda jj, r: (g0(jj), g0(jj) + 1, g1(jj))[r]
    A(f"v_mul_f32 v{hT+1}, v{hWt}, v{hMx}")
    for r in range(3):
        A(f"v_mul_f32 v{hT+2+r}, v{hWt}, v{oreg(0, r)}")
    for jj in range(1, 8):
        A(f"v_fmac_f32 v{hT+1}, v{hWt+jj}, v{hMx+jj}")
        for r in range(3):
            A(f"v_fmac_f32 v{hT+2+r}, v{hWt+jj}, v{oreg(jj, r)}")
    A(f"v_rcp_f32 v{hT}, v{hT+1}")
    for r in range(3):
        A(f"v_mul_f32 v{hT+2+r}, v{hT+2+r}, v{hT}")
    A(f"v_cvt_pk_bf16_f32 v{hT}, v{hT+2}, v{hT+3}")
    A(f"v_cvt_pk_bf16_f32 v{hT+1}, v{hT+4}, v{hT+4}")
    A(f"ds_write_b16 v{hOD}, v{hT} offset:{L_OL}")
    A(f"ds_write_b16_d16_hi v{hOD+1}, v{hT} offset:{L_OL}")
    A(f"ds_write_b16 v{hOD+2}, v{hT+1} offset:{L_OL}")
    A("s_waitcnt lgkmcnt(0)")
    A("s_barrier")
    for t in range(6):
        A(f"ds_read_b128 v[{hA+4*t}:{hA+4*t+3}], v{hAF} offset:{L_OL+64*t}")
    for t in range(6):
        A(f"s_waitcnt lgkmcnt({5-t})")
        for tt in range(2):
            r = hW1 + 4 * (tt * 6 + t)
            c = "0" if t == 0 else f"v[{hD+4*tt}:{hD+4*tt+3}]"
            A(f"v_mfma_f32_16x16x32_bf16 v[{hD+4*tt}:{hD+4*tt+3}], v[{hA+4*t}:{hA+4*t+3}], v[{r}:{r+3}], {c}")
    A("s_mov_b32 exec_hi, 0")
    for tt in range(2):
        split_halves(hD + 4 * tt)
        A(f"buffer_store_dwordx4 v[{hD+4*tt}:{hD+4*tt+3}], v{hGO}, {S_WS}, s32 offen offset:{512*tt} sc1")
    A("s_mov_b32 exec_hi, -1")
    stamp(5)
    A("s_branch L_h_end")

    A.label("L_role_red")
    A(f"s_lshl_b32 s33, {sG}, 1")
    A(f"s_add_u32 s33, s33, {sJ}")
    A("s_sub_u32 s33, s33, 6")
    A("s_lshl_b32 s77, s3, 6")
    A("s_add_u32 s33, s33, s77")
    A("s_cmp_ge_u32 s33, 80")
    A("s_cbranch_scc1 L_h_end")
    A("s_lshl_b32 s36, s33, 7")
    A(f"s_add_u32 s36, s36, {HB_OFF}")
    A("s_lshl_b32 s37, s33, 4")
    if touch_y:
        for k in range(4):
            A(f"v_mov_b32 v{hG+k}, 0")
        A("s_mov_b64 exec, 0xff")
        A(f"buffer_store_dwordx4 v[{hG}:{hG+3}], v{hL16}, {S_WS}, s36 offen sc1")
        A("s_mov_b64 exec, -1")
    A(f"v_and_b32 v{hT+2}, 1, v0")
    A(f"v_mul_u32_u24 v{hAD}, 2560, v{hT+2}")
    A(f"v_and_b32 v{hT+3}, 14, v0")
    A(f"v_add_u32 v{hAD}, v{hAD}, v{hT+3}")
    A(f"buffer_load_ushort v{hX}, v{hAD}, {S_X}, s37 offen")
    A(f"buffer_load_ushort v{hX+1}, v{hAD}, {S_X}, s37 offen offset:1280")
    A(f"v_bfe_u32 v{hT+3}, v0, 2, 2")
    A(f"v_lshlrev_b32 v{hAD+2}, 5, v{hT+3}")
    A(f"v_lshl_add_u32 v{hAD+2}, v{hT+2}, 4, v{hAD+2}")
    A(f"v_lshrrev_b32 v{hT+2}, 4, v0")
    A(f"v_mul_u32_u24 v{hAD+1}, 20480, v{hT+2}")
    A(f"v_and_b32 v{hT+2}, 15, v0")
    A(f"v_lshl_add_u32 v{hAD+1}, v{hT+2}, 4, v{hAD+1}")
    hRS = hB
    A("s_waitcnt vmcnt(0)")
    A(f"v_lshlrev_b32 v{hRS}, 16, v{hX}")
    A(f"v_lshlrev_b32 v{hRS+1}, 16, v{hX+1}")
    A("s_barrier")
    stamp(3)

    def reduce32(base_off, st):
        A("s_lshl_b32 s76, s33, 8")
        A(f"s_add_u32 s76, s76, {base_off}")
        lt = []
        for u in range(8):
            lt.append(f"buffer_load_dwordx4 v[{hG+4*u}:{hG+4*u+3}], v{hAD+1}, {S_WS}, s76 offen sc1")
            lt.append(f"s_add_u32 s76, s76, {4*20480}" if u < 7 else f"s_sub_u32 s76, s76, {7*4*20480}")
        if selpoll:
            for u in range(8):
                A(f"s_add_u32 s{20+u}, s76, {4*20480*u}")
            poll_sel([([f"buffer_load_dwordx4 v[{hG+4*u}:{hG+4*u+3}], v{hAD+1}, {S_WS}, s{20+u} offen sc1"], [hG + 4 * u + 2]) for u in range(8)],
                     hNC, sleep=psleep)
        else:
            poll_tagged(lt, [hG + 4 * u + 2 for u in range(8)], hNC, hT, sleep=psleep)
        stamp(st)
        for st2 in (4, 2, 1):
            for u in range(st2):
                for e in range(2):
                    A(f"v_add_f32 v{hG+4*u+e}, v{hG+4*u+e}, v{hG+4*(u+st2)+e}")
        for sw in ("v_permlane16_swap_b32", "v_permlane32_swap_b32"):
            for e in range(2):
                A(f"v_mov_b32 v{hG+4+e}, v{hG+e}")
            for e in range(2):
                A(f"{sw} v{hG+e}, v{hG+4+e}")
            for e in range(2):
                A(f"v_add_f32 v{hG+e}, v{hG+e}, v{hG+4+e}")
        A(f"v_cvt_pk_bf16_f32 v{hG}, v{hG}, v{hG+1}")
        A(f"v_lshlrev_b32 v{hG+2}, 16, v{hG}")
        A(f"v_and_b32 v{hG+3}, 0xffff0000, v{hG}")
        A(f"v_add_f32 v{hG+2}, v{hG+2}, v{hRS}")
        A(f"v_add_f32 v{hG+3}, v{hG+3}, v{hRS+1}")
        A(f"v_cvt_pk_bf16_f32 v{hG}, v{hG+2}, v{hG+3}")
        A(f"v_lshlrev_b32 v{hRS}, 16, v{hG}")
        A(f"v_and_b32 v{hRS+1}, 0xffff0000, v{hG}")
        A(f"v_mov_b32_dpp v{hG+1}, v{hG} quad_perm:[2,3,0,1] {DPP}")
        A(f"v_and_b32 v{hD}, 0xffff, v{hG}")
        A(f"v_lshl_or_b32 v{hD}, v{hG+1}, 16, v{hD}")
        A(f"v_and_b32 v{hG+1}, 0xffff0000, v{hG+1}")
        A(f"v_lshrrev_b32 v{hD+1}, 16, v{hG}")
        A(f"v_or_b32 v{hD+1}, v{hD+1}, v{hG+1}")

    reduce32(YP_OFF, 4)
    A(f"v_mov_b32 v{hD+2}, v{hNC}")
    A(f"v_mov_b32 v{hD+3}, v{hNC+1}")
    A("s_mov_b64 exec, 0x3333")
    A(f"buffer_store_dwordx4 v[{hD}:{hD+3}], v{hAD+2}, {S_WS}, s36 offen sc1")
    A("s_mov_b64 exec, -1")
    stamp(5)
    reduce32(ZP_OFF, 6)
    A("s_mov_b64 exec, 0x3333")
    A(f"buffer_store_dword v{hD}, v{hAD}, {S_OUT}, s37 offen")
    A(f"buffer_store_dword v{hD+1}, v{hAD}, {S_OUT}, s37 offen offset:1280")
    A("s_mov_b64 exec, -1")
    A("s_branch L_h_end")

    A.label("L_role_ffn")
    fA, fD, fWD, fWG = 32, 52, 76, 136
    fD2 = fWG
    A(f"s_mul_i32 s32, {sG}, 20480")
    A("s_mul_i32 s77, s3, 5120")
    A("s_add_u32 s32, s32, s77")
    A(f"s_add_u32 s32, s32, {ZP_OFF}")
    A("s_add_u32 s33, s32, 4096")
    if touch_y:
        for k in range(4):
            A(f"v_mov_b32 v{hG+k}, 0")
        for k in range(5):
            A(f"buffer_store_dwordx4 v[{hG}:{hG+3}], v{hL16}, {S_WS}, {'s32' if k < 4 else 's33'} offen offset:{1024*(k&3)} sc1")
    if not noweights:
        A(f"v_mul_u32_u24 v{hT}, 43, v0")
        A(f"v_lshrrev_b32 v{hT}, 8, v{hT}")
        A(f"v_mul_u32_u24 v{hT+1}, 6, v{hT}")
        A(f"v_sub_u32 v{hT+1}, v0, v{hT+1}")
        A(f"v_mul_u32_u24 v{hAD}, 3072, v{hT}")
        A(f"v_lshl_add_u32 v{hAD}, v{hT+1}, 4, v{hAD}")
        tr_addr(hAD + 1, 96, "s83")
        if NL > 4:
            lds_wait(hZ, hT, C_SFREE, 4, sleep=16)
        for mi, srdn in enumerate((S_WG, S_WU)):
            A(f"s_mul_i32 s76, {sG}, 96")
            A(f"s_mul_i32 s77, s3, {160*3072}")
            A("s_add_u32 s76, s76, s77")
            for (t0_, nt) in ((0, 3), (3, 2)):
                A("s_mov_b32 exec_hi, 0xffff")
                for u in range(4 * nt):
                    A(f"s_add_u32 m0, s83, {768*u}")
                    A(f"buffer_load_dwordx4 v{hAD}, {srdn}, s76 offen nt lds")
                    A(f"s_add_u32 s76, s76, {8*3072}")
                A("s_mov_b32 exec_hi, -1")
                A("s_waitcnt vmcnt(0)")
                for tile in range(3):
                    for t in range(nt):
                        for hf in range(2):
                            r = fWG + 4 * ((mi * 3 + tile) * 5 + t0_ + t) + 2 * hf
                            A(f"ds_read_b64_tr_b16 v[{r}:{r+1}], v{hAD+1} offset:{(32*t+4*hf)*96+32*tile}")
                A("s_waitcnt lgkmcnt(0)")
        A(f"s_mul_i32 s76, {sG}, {48*1280}")
        A("s_mul_i32 s77, s3, 15360")
        A("s_add_u32 s76, s76, s77")
        A(f"s_add_u32 s77, s77, {L_SBUF}")
        lds_wait(hZ, hT, C_SFREE, 4, sleep=16)
        for u in range(15):
            A(f"s_add_u32 m0, s77, {1024*u}")
            A(f"buffer_load_dwordx4 v{hL16}, {S_WD}, s76 offen nt lds")
            A("s_add_u32 s76, s76, 1024")
        A("s_mul_i32 s77, s3, 320")
        A(f"s_add_u32 s77, s77, {L_SBUF}")
        tr_addr(hAD + 1, 1280, "s77", k16=True)
        A("s_waitcnt vmcnt(0)")
        lds_inc(hZ, hONE, C_WSYNC)
        lds_wait(hZ, hT, C_WSYNC, 4, sleep=4)
        for nt in range(10):
            for t in range(3):
                r = fWD + 2 * (nt * 3 + t)
                A(f"ds_read_b64_tr_b16 v[{r}:{r+1}], v{hAD+1} offset:{16*t*1280+32*nt}")
        A("s_waitcnt lgkmcnt(0)")
    fXW, fAF, fRW, fRR, fAW, fA2, fHL = 5, 6, 7, 72, 73, 74, 75
    fD = 52
    fRR, fAW, fA2, fHL = 1, 2, 3, 4
    A("s_mul_i32 s75, s3, 1280")
    A("s_lshr_b32 s79, s3, 1")
    A("s_lshl_b32 s79, s79, 4")
    A(f"s_add_u32 s76, s79, {HB_OFF}")
    A("s_add_u32 s77, s76, 4096")
    A("s_add_u32 s78, s76, 8192")
    A(f"v_add_u32 v{fXW}, s75, v{hL4}")
    A(f"v_and_b32 v{hT}, 3, v0")
    A(f"v_lshrrev_b32 v{hT+1}, 4, v0")
    A(f"v_mul_u32_u24 v{fAF}, 1280, v{hT}")
    A(f"v_lshl_add_u32 v{fAF}, v{hT+1}, 4, v{fAF}")
    A("s_mul_i32 s79, s3, 320")
    A(f"v_add_u32 v{fAF}, s79, v{fAF}")
    A("s_mul_i32 s79, s3, 1536")
    A(f"v_add_u32 v{fRW}, s79, v{hL16}")
    A(f"v_and_b32 v{hT+2}, 15, v0")
    A(f"v_lshlrev_b32 v{fRR}, 4, v{hT+2}")
    A(f"v_lshl_add_u32 v{fRR}, v{hT+1}, 2, v{fRR}")
    A("s_lshl_b32 s79, s3, 8")
    A(f"v_add_u32 v{fRR}, s79, v{fRR}")
    A(f"v_mul_u32_u24 v{fAW}, 96, v{hT+1}")
    A(f"v_lshl_add_u32 v{fAW}, v{hT+2}, 1, v{fAW}")
    A("s_lshl_b32 s79, s3, 5")
    A(f"v_add_u32 v{fAW}, s79, v{fAW}")
    A(f"v_mul_u32_u24 v{fA2}, 96, v{hT}")
    A(f"v_lshl_add_u32 v{fA2}, v{hT+1}, 3, v{fA2}")
    A(f"v_lshlrev_b32 v{fHL}, 5, v0")
    A("s_bitcmp1_b32 s3, 0")
    A("s_cselect_b64 s[36:37], -1, 0")
    A("s_barrier")
    stamp(3)
    lt = [f"buffer_load_dwordx4 v[{fA+4*u}:{fA+4*u+3}], v{fHL}, {S_WS}, s{76+(u>>1)} offen offset:{2048*(u&1)} sc1" for u in range(5)]
    if selpoll:
        poll_sel([([lt[u]], [fA + 4 * u + 2]) for u in range(5)], hNC, sleep=psleep)
    else:
        poll_tagged(lt, [fA + 4 * u + 2 for u in range(5)], hNC, hT, sleep=psleep)
    stamp(4)
    for u in range(5):
        A(f"v_cndmask_b32 v{hX+u}, v{fA+4*u}, v{fA+4*u+1}, s[36:37]")
    layernorm([hX + u for u in range(5)], hX, hF, hT)
    for u in range(5):
        A(f"ds_write_b32 v{fXW}, v{hX+u} offset:{L_XN+256*u}")
    A("s_waitcnt lgkmcnt(0)")
    A("s_barrier")
    for t in range(5):
        A(f"ds_read_b128 v[{fA+4*t}:{fA+4*t+3}], v{fAF} offset:{L_XN+64*t}")
    for t in range(5):
        A(f"s_waitcnt lgkmcnt({4-t})")
        for tile in range(6):
            r = fWG + 4 * (tile * 5 + t)
            c = "0" if t == 0 else f"v[{fD+4*tile}:{fD+4*tile+3}]"
            A(f"v_mfma_f32_16x16x32_bf16 v[{fD+4*tile}:{fD+4*tile+3}], v[{fA+4*t}:{fA+4*t+3}], v[{r}:{r+3}], {c}")
    A("s_mov_b64 exec, 0xffff")
    for tile in range(6):
        A(f"ds_write_b128 v{fRW}, v[{fD+4*tile}:{fD+4*tile+3}] offset:{L_RED+256*tile}")
    A("s_mov_b64 exec, -1")
    A("s_waitcnt lgkmcnt(0)")
    A("s_barrier")
    A("s_cmp_eq_u32 s3, 3")
    A("s_cbranch_scc1 L_noact")
    for ww in range(4):
        for gu in range(2):
            A(f"ds_read_b32 v{hF+4*gu+ww}, v{fRR} offset:{L_RED+1536*ww+768*gu}")
    A("s_waitcnt lgkmcnt(0)")
    for gu in range(2):
        f = hF + 4 * gu
        A(f"v_add_f32 v{f}, v{f}, v{f+1}")
        A(f"v_add_f32 v{f+2}, v{f+2}, v{f+3}")
        A(f"v_add_f32 v{f}, v{f}, v{f+2}")
    rnd(hF, hF)
    rnd(hF + 4, hF + 4)
    A(f"v_mul_f32 v{hF+1}, 0xbfb8aa3b, v{hF}")
    A(f"v_exp_f32 v{hF+1}, v{hF+1}")
    A(f"v_add_f32 v{hF+1}, 1.0, v{hF+1}")
    A(f"v_rcp_f32 v{hF+1}, v{hF+1}")
    A(f"v_mul_f32 v{hF}, v{hF}, v{hF+1}")
    rnd(hF, hF)
    A(f"v_mul_f32 v{hF}, v{hF}, v{hF+4}")
    A(f"v_cvt_pk_bf16_f32 v{hF}, v{hF}, v{hF}")
    A(f"ds_write_b16 v{fAW}, v{hF} offset:{L_OL}")
    A("s_waitcnt lgkmcnt(0)")
    A.label("L_noact")
    A("s_barrier")
    for t in range(3):
        A(f"ds_read_b64 v[{fA+2*t}:{fA+2*t+1}], v{fA2} offset:{L_OL+32*t}")
    for t in range(3):
        A(f"s_waitcnt lgkmcnt({2-t})")
        for nt in range(10):
            r = fWD + 2 * (nt * 3 + t)
            c = "0" if t == 0 else f"v[{fD2+4*nt}:{fD2+4*nt+3}]"
            A(f"v_mfma_f32_16x16x16_bf16 v[{fD2+4*nt}:{fD2+4*nt+3}], v[{fA+2*t}:{fA+2*t+1}], v[{r}:{r+1}], {c}")
    A("s_mov_b32 exec_hi, 0")
    for nt in range(10):
        split_halves(fD2 + 4 * nt)
        A(f"buffer_store_dwordx4 v[{fD2+4*nt}:{fD2+4*nt+3}], v{hGO}, {S_WS}, {'s32' if nt < 8 else 's33'} offen offset:{512*(nt&7)} sc1")
    A("s_mov_b32 exec_hi, -1")
    stamp(5)
    A.label("L_h_end")
    stamp(7)
    stamp_flush(32)
    A.label("L_end")
    A("s_endpgm")
    s = wrap(A.text(), HEADER + DOC, 256, 512, LDS_BYTES, 256, 102)
    s = s.replace("  .amdhsa_group_segment_fixed_size 0\n", "  .amdhsa_group_segment_fixed_size 0\n  .amdhsa_float_denorm_mode_32 3\n")
    return s


if __name__ == "__main__":
    kw = eval("dict(%s)" % (sys.argv[2] if len(sys.argv) > 2 else ""))
    open(sys.argv[1], "w").write(gen(**kw))
```

```python
import re

KNAME = "sequential_preLN__gqa_block_cached__swiglu_ffn__decode_kernel"

_REG = re.compile(r"\b([vsa])(\d+)\b|\b([vsa])\[(\d+):(\d+)\]|\b(vcc|exec|m0|exec_hi|exec_lo)\b")

TRANS = ("v_exp_f32", "v_log_f32", "v_rcp_f32", "v_rsq_f32", "v_sqrt_f32", "v_sin_f32", "v_cos_f32")


def regs_of(tok):
    out = []
    for m in _REG.finditer(tok):
        if m.group(1):
            out.append(m.group(1) + m.group(2))
        elif m.group(3):
            out += [m.group(3) + str(i) for i in range(int(m.group(4)), int(m.group(5)) + 1)]
        else:
            out.append(m.group(6))
    return out


def split_ops(s):
    ops, depth, cur = [], 0, ""
    for ch in s:
        if ch == "[":
            depth += 1
        if ch == "]":
            depth -= 1
        if ch == "," and depth == 0:
            ops.append(cur.strip())
            cur = ""
        else:
            cur += ch
    if cur.strip():
        ops.append(cur.strip())
    return ops


class Ins:
    def __init__(self, text):
        self.text = text
        t = text.split(";")[0].strip()
        parts = t.split(None, 1)
        self.mn = parts[0]
        rest = parts[1] if len(parts) > 1 else ""
        ops = split_ops(rest)
        self.mods = ""
        if ops:
            last = ops[-1].split(None, 1)
            ops[-1] = last[0]
            self.mods = last[1] if len(last) > 1 else ""
        self.ops = ops
        mn = self.mn
        self.valu = mn.startswith("v_") and not mn.startswith("v_mfma")
        self.mfma = mn.startswith("v_mfma")
        self.salu = mn.startswith("s_")
        self.vmem = mn.startswith(("buffer_", "global_", "flat_"))
        self.ds = mn.startswith("ds_")
        self.trans = mn.replace("_e32", "").replace("_e64", "") in TRANS
        self.dot = mn.startswith("v_dot")
        self.dpp = "_dpp" in mn or "quad_perm" in self.mods or "row_" in self.mods
        self.perml = mn.startswith("v_permlane")
        self.rdlane = mn.startswith(("v_readlane", "v_readfirstlane"))
        self.states = 1
        if mn == "s_nop":
            self.states = int(ops[0], 0) + 1
        self.dst, self.src = [], []
        R = [regs_of(o) for o in ops]
        if self.valu or self.mfma:
            if self.perml:
                self.dst = R[0] + R[1]
                self.src = R[0] + R[1]
            else:
                self.dst = list(R[0])
                k = 1
                if mn.startswith(("v_add_co", "v_sub_co", "v_addc_co", "v_subb_co", "v_div_scale", "v_subrev_co")):
                    self.dst += R[1]
                    k = 2
                for r in R[k:]:
                    self.src += r
                if mn.startswith(("v_fmac", "v_dot2c", "v_writelane", "v_pk_fmac")):
                    self.src += R[0]
                if mn.startswith("v_cndmask") and len(ops) == 3:
                    self.src.append("vcc")
                if mn.startswith("v_div_fmas"):
                    self.src.append("vcc")
        elif self.vmem:
            is_store = "store" in mn or ("atomic" in mn)
            lds = " lds" in (" " + self.mods + " ").replace(" lds ", " lds") or self.mods.endswith("lds") or "_lds_" in mn
            self.lds_dma = lds
            if is_store or lds:
                for r in R:
                    self.src += r
                if "atomic" in mn and "sc0" in self.mods:
                    self.dst = list(R[0])
            else:
                self.dst = list(R[0])
                for r in R[1:]:
                    self.src += r
            if lds:
                self.src.append("m0")
        elif self.ds:
            if mn.startswith(("ds_write", "ds_add", "ds_store")) and "rtn" not in mn:
                for r in R:
                    self.src += r
            else:
                self.dst = list(R[0])
                for r in R[1:]:
                    self.src += r
        elif self.salu:
            if mn.startswith(("s_cmp", "s_cbranch", "s_branch", "s_waitcnt", "s_nop", "s_barrier", "s_sleep",
                              "s_setprio", "s_endpgm", "s_bitcmp")):
                for r in R:
                    self.src += r
            else:
                self.dst = list(R[0]) if R else []
                for r in R[1:]:
                    self.src += r
                if "saveexec" in mn:
                    self.dst.append("exec")
        self.wide_store = self.vmem and ("store" in mn) and ("x3" in mn or "x4" in mn)
        self.store_data = R[0] if self.wide_store and mn.startswith("buffer") else (R[1] if self.wide_store else [])
        if self.mfma:
            self.passes = 8 if "32x32" in mn else 4
            self.srcC = R[3]
            self.srcAB = R[1] + R[2]


def need(p, c):
    n = 0
    pd, cs, cd = set(p.dst), set(c.src), set(c.dst)
    raw = pd & cs
    vraw = {r for r in raw if r[0] in "va" and r != "vcc"}
    sraw = {r for r in raw if r[0] == "s" or r == "vcc"}
    if p.valu:
        if vraw:
            if c.dpp:
                n = max(n, 2)
            if c.rdlane:
                n = max(n, 1)
            if c.perml:
                n = max(n, 2)
            if c.mfma:
                n = max(n, 2)
            if p.trans and not c.trans:
                n = max(n, 1)
            if "sdwa" in p.mn:
                n = max(n, 1)
        if p.dot and ((pd & (cs | cd)) and not (c.mn == p.mn and not (pd & set(sum([regs_of(o) for o in c.ops[1:3]], []))))):
            n = max(n, 3)
        if sraw:
            if c.valu or c.mfma:
                n = max(n, 2)
                if c.mn.startswith(("v_readlane", "v_writelane")):
                    n = max(n, 4)
                if c.mn.startswith("v_div_fmas"):
                    n = max(n, 4)
            if c.vmem:
                n = max(n, 5)
            if c.salu:
                n = max(n, 1)
        if "exec" in pd:
            n = max(n, 5)
    if p.mfma:
        full = {4: 8, 8: 12}[p.passes]
        if c.mfma:
            if pd & set(c.srcAB):
                n = max(n, full)
            if pd & set(c.srcC):
                if not (list(p.dst) == list(c.srcC) and p.passes == c.passes):
                    n = max(n, {4: 6, 8: 10}[p.passes])
        else:
            if pd & (cs | cd):
                n = max(n, full)
            if c.valu and (set(p.srcC) & cd):
                n = max(n, {4: 3, 8: 7}[p.passes])
    if p.wide_store and (set(p.store_data) & cd):
        n = max(n, 2)
    if p.salu and "m0" in pd and "m0" in cs:
        n = max(n, 1)
    return n


class Asm:
    def __init__(self):
        self.lines = []
        self.hist = []
        self.label_heads = {}
        self.seq = []
        self.uid = 0
        self.pad_every = 0
        self.pad_cnt = 0
        self.pad_next = None

    def raw(self, s):
        self.lines.append(s)

    def comment(self, s):
        self.lines.append("    ; " + s)

    def label(self, name):
        self.lines.append(name + ":")
        self.label_heads[name] = len(self.seq)

    def newlabel(self, base="L"):
        self.uid += 1
        return "%s_%d" % (base, self.uid)

    def _required(self, hist, c):
        dist = 0
        req = 0
        for p in reversed(hist):
            k = need(p, c)
            if k > dist:
                req = max(req, k - dist)
            dist += p.states
            if dist >= 20:
                break
        return req

    def __call__(self, text):
        for t in text.strip().split("\n"):
            t = t.strip()
            if not t or t.startswith(";"):
                continue
            if t.endswith(":"):
                self.label(t[:-1])
                continue
            self._emit(t)

    def pads_begin(self, first_label, every):
        self.pad_every, self.pad_cnt, self.pad_next = every, every, first_label

    def pads_pause(self, on):
        self.pad_paused = on

    def pads_end(self, final_target):
        self.label(self.pad_next)
        self.pad_every = 0
        self._emit("s_cbranch_execz %s" % final_target)

    def _emit(self, t):
        if self.pad_every and not getattr(self, "pad_paused", False):
            if self.pad_cnt >= self.pad_every:
                every, self.pad_every = self.pad_every, 0
                self.label(self.pad_next)
                self.pad_next = self.newlabel("L_pad")
                self._emit("s_cbranch_execz %s" % self.pad_next)
                self.pad_every, self.pad_cnt = every, 0
            self.pad_cnt += 1
        c = Ins(t)
        req = self._required(self.hist, c)
        while req > 0:
            k = min(req, 16)
            nop = Ins("s_nop %d" % (k - 1))
            self.lines.append("    s_nop %d" % (k - 1))
            self.hist.append(nop)
            self.seq.append(nop)
            req -= k
        self.lines.append("    " + t)
        self.hist.append(c)
        self.seq.append(c)
        if len(self.hist) > 40:
            self.hist = self.hist[-40:]
        if c.mn.startswith(("s_cbranch", "s_branch")):
            tgt = c.ops[0]
            if tgt.startswith("L_pad"):
                pass
            elif tgt in self.label_heads:
                h = list(self.hist)
                i = self.label_heads[tgt]
                dist = 0
                for nxt in self.seq[i:i + 20]:
                    r = self._required(h, nxt)
                    if r > 0:
                        raise RuntimeError("hazard across back edge to %s: %s needs %d more" % (tgt, nxt.text, r))
                    h.append(nxt)
            else:
                self.fwd = getattr(self, "fwd", {})
                self.fwd.setdefault(tgt, []).append(list(self.hist))
        if c.mn in ("s_branch", "s_endpgm"):
            self.hist = []

    def check_forward(self):
        for tgt, hists in getattr(self, "fwd", {}).items():
            i = self.label_heads[tgt]
            for h in hists:
                h = list(h)
                for nxt in self.seq[i:i + 20]:
                    r = self._required(h, nxt)
                    if r > 0:
                        raise RuntimeError("hazard across fwd edge to %s: %s needs %d more" % (tgt, nxt.text, r))
                    h.append(nxt)
                    if nxt.mn in ("s_branch", "s_endpgm"):
                        break

    def text(self):
        self.check_forward()
        return "\n".join(self.lines) + "\n"


def wrap(body, header_comments, grid, block, lds, vgpr, sgpr=102, accum=None):
    if accum is None:
        accum = (vgpr + 3) // 4 * 4
    s = header_comments
    s += "; @launch grid=(%d,1,1) block=(%d,1,1) lds=%d\n" % (grid, block, lds)
    s += '.amdgcn_target "amdgcn-amd-amdhsa--gfx950"\n.text\n.globl %s\n.p2align 8\n.type %s,@function\n%s:\n' % (KNAME, KNAME, KNAME)
    s += body
    s += '.section .rodata,"a"\n.p2align 6\n.amdhsa_kernel %s\n' % KNAME
    s += "  .amdhsa_next_free_vgpr %d\n  .amdhsa_next_free_sgpr %d\n  .amdhsa_accum_offset %d\n" % (vgpr, sgpr, accum)
    s += "  .amdhsa_group_segment_fixed_size 0\n  .amdhsa_kernarg_size 96\n  .amdhsa_user_sgpr_count 2\n"
    s += "  .amdhsa_user_sgpr_kernarg_segment_ptr 1\n  .amdhsa_system_sgpr_workgroup_id_x 1\n.end_amdhsa_kernel\n"
    return s
```

```python
import sys
sys.path.insert(0, "work")
from asmlib import *

HEADER = open("sequential_preLN__gqa_block_cached__swiglu_ffn__decode.s.ref").read().split("; Override launch")[0]
DOC = """; One persistent launch, 256 workgroups x 8 waves (one workgroup per CU).  G = wg>>3, j = wg&7.
;             fragments in registers and run the tail: j<5 wo block, j>=6 reducers (+residual), j==5 SwiGLU FFN slice.
"""

QP_OFF = 0x000000
OP_OFF = 0x200000
YP_OFF = 0x400000
ZP_OFF = 0x500000
HB_OFF = 0x600000
CT_OFF = 0x610000
ST_OFF = 0x800000
WS_SIZE = 0x1000000
OOB = 0x80000000
TASKB = 4096 * 384

L_STAGE = 0
L_XN = 49152
L_QL = L_XN + 5120
L_OL = L_QL + 1536
L_RED = L_OL + 1536
L_CNT = L_RED + 6144
L_SBUF = L_CNT + 64
C_SYNC0, C_SYNC1, C_QRDY, C_SFREE, C_WSYNC, L_TAG = [L_CNT + x for x in (0, 4, 8, 12, 16, 24)]

LOG2E = "0x3fb8aa3b"
SCALE = "0x3d93cd3a"
EPS = "0x3727c5ac"
INV640 = "0x3acccccd"
F640 = "0x44200000"

S_WS, S_K, S_V, S_X, S_WQ, S_DBG, S_WO, S_WG, S_WU, S_WD, S_OUT = [f"s[{28+4*i}:{31+4*i}]" for i in range(11)]
sG, sJ, sB, sH = "s72", "s73", "s74", "s82"
DPP = "row_mask:0xf bank_mask:0xf"


def gen(D=2, S0=56, XF=16, PACE=2, NL=4, stamps=False, spin_g=200000, spin_l=4000000, prio=True, psleep=1, qsleep=2,
        mix=True, nocompute=False, noweights=False, noqx=False, touch_op=False, touch_y=False, selpoll=True, ln1=True, satom=True, early=True, warm=True, fast2=True, pads=0):
    NS = 8
    E = NS - D
    NL1 = min(NL, 4)
    assert NL <= 6
    LDS_BYTES = L_SBUF + 4 * 4 * 6144
    assert LDS_BYTES <= 163840
    NB = E + NL
    R0 = D * (1 + -(-NB // (2 * D)))
    assert (S0 - NS - NL) % D == 0
    nA = (S0 - NS - NL - R0) // D - 1
    POOL = 512 - 8 * S0 + XF
    assert XF % D == 0 and XF // D < nA and NL <= E
    A = Asm()

    def srd(name, ptr_lo, size, add=None):
        r = int(name[2:name.index(":")])
        if add is None:
            A(f"s_mov_b32 s{r}, s{ptr_lo}")
            A(f"s_mov_b32 s{r+1}, s{ptr_lo+1}")
        else:
            A(f"s_add_u32 s{r}, s{ptr_lo}, {add}")
            A(f"s_addc_u32 s{r+1}, s{ptr_lo+1}, 0")
        A(f"s_mov_b32 s{r+2}, {size}")
        A(f"s_mov_b32 s{r+3}, 0x20000")

    def stamp(k, which="main"):
        if stamps and (which == stamps or (which == "main" and stamps is True) or k == 0):
            A(f"s_memrealtime s[{84+2*k}:{85+2*k}]")

    def stamp_flush(vt):
        if not stamps:
            return
        A("s_waitcnt lgkmcnt(0)")
        for k in range(16):
            A(f"v_mov_b32 v{vt+k}, s{84+k}")
        A("s_lshl_b32 s81, s2, 3")
        A("s_add_u32 s81, s81, s3")
        A("s_lshl_b32 s81, s81, 6")
        A(f"s_add_u32 s81, s81, {ST_OFF}")
        A(f"v_mov_b32 v{vt+16}, 0")
        A("s_mov_b64 exec, 1")
        for k in range(4):
            A(f"buffer_store_dwordx4 v[{vt+4*k}:{vt+4*k+3}], v{vt+16}, {S_WS}, s81 offen offset:{16*k}")
        A("s_mov_b64 exec, -1")

    def allred16_32(op, x, t):
        A(f"v_mov_b32 v{t}, v{x}")
        A(f"v_permlane16_swap_b32 v{x}, v{t}")
        A(f"{op} v{x}, v{x}, v{t}")
        A(f"v_mov_b32 v{t}, v{x}")
        A(f"v_permlane32_swap_b32 v{x}, v{t}")
        A(f"{op} v{x}, v{x}, v{t}")

    def allred64(op, x, t):
        for pat in ("quad_perm:[1,0,3,2]", "quad_perm:[2,3,0,1]", "row_ror:4", "row_ror:8"):
            A(f"{op}_dpp v{x}, v{x}, v{x} {pat} {DPP}")
        allred16_32(op, x, t)

    def rnd(dst, src):
        A(f"v_cvt_pk_bf16_f32 v{dst}, v{src}, v{src}")
        A(f"v_lshlrev_b32 v{dst}, 16, v{dst}")

    def div640(x, t0, t1):
        A(f"v_mul_f32 v{t0}, {INV640}, v{x}")
        A(f"v_fma_f32 v{t1}, -v{t0}, s80, v{x}")
        A(f"v_mul_f32 v{t1}, {INV640}, v{t1}")
        A(f"v_add_f32 v{x}, v{t0}, v{t1}")

    def layernorm(src, dst, f, t):
        A(f"s_mov_b32 s80, {F640}")
        for u in range(5):
            A(f"v_lshlrev_b32 v{f+2*u}, 16, v{src[u]}")
            A(f"v_and_b32 v{f+2*u+1}, 0xffff0000, v{src[u]}")
        A(f"v_add_f32 v{t}, v{f}, v{f+1}")
        A(f"v_add_f32 v{t+1}, v{f+2}, v{f+3}")
        A(f"v_add_f32 v{t+2}, v{f+4}, v{f+5}")
        A(f"v_add_f32 v{t+3}, v{f+6}, v{f+7}")
        A(f"v_add_f32 v{t+4}, v{f+8}, v{f+9}")
        A(f"v_add_f32 v{t}, v{t}, v{t+1}")
        A(f"v_add_f32 v{t+2}, v{t+2}, v{t+3}")
        A(f"v_add_f32 v{t}, v{t}, v{t+4}")
        A(f"v_add_f32 v{t}, v{t}, v{t+2}")
        if ln1:
            A(f"v_readfirstlane_b32 s79, v{f}")
            A(f"v_subrev_f32 v{t+2}, s79, v{f}")
            A(f"v_mul_f32 v{t+1}, v{t+2}, v{t+2}")
            for i in range(1, 10):
                A(f"v_subrev_f32 v{t+2+(i&1)}, s79, v{f+i}")
                A(f"v_fmac_f32 v{t+1}, v{t+2+(i&1)}, v{t+2+(i&1)}")
            for pat in ("quad_perm:[1,0,3,2]", "quad_perm:[2,3,0,1]", "row_ror:4", "row_ror:8"):
                for x in (t, t + 1):
                    A(f"v_add_f32_dpp v{x}, v{x}, v{x} {pat} {DPP}")
            for sw in ("v_permlane16_swap_b32", "v_permlane32_swap_b32"):
                for x in (t, t + 1):
                    A(f"v_mov_b32 v{x+2}, v{x}")
                for x in (t, t + 1):
                    A(f"{sw} v{x}, v{x+2}")
                for x in (t, t + 1):
                    A(f"v_add_f32 v{x}, v{x}, v{x+2}")
            div640(t, t + 2, t + 3)
            div640(t + 1, t + 4, t + 5)
            A(f"v_subrev_f32 v{t+2}, s79, v{t}")
            A(f"v_fma_f32 v{t+1}, -v{t+2}, v{t+2}, v{t+1}")
            A(f"v_max_f32 v{t+1}, 0, v{t+1}")
        else:
            allred64("v_add_f32", t, t + 1)
            div640(t, t + 1, t + 2)
            A(f"v_sub_f32 v{t+2}, v{f}, v{t}")
            A(f"v_mul_f32 v{t+1}, v{t+2}, v{t+2}")
            for i in range(1, 10):
                A(f"v_sub_f32 v{t+2+(i&1)}, v{f+i}, v{t}")
                A(f"v_fmac_f32 v{t+1}, v{t+2+(i&1)}, v{t+2+(i&1)}")
            allred64("v_add_f32", t + 1, t + 2)
            div640(t + 1, t + 2, t + 3)
        rnd(t, t)
        rnd(t + 1, t + 1)
        A(f"v_add_f32 v{t+1}, {EPS}, v{t+1}")
        rnd(t + 1, t + 1)
        A(f"v_sqrt_f32 v{t+1}, v{t+1}")
        rnd(t + 1, t + 1)
        A(f"v_rcp_f32 v{t+2}, v{t+1}")
        for u in range(5):
            a, b = f + 2 * u, f + 2 * u + 1
            A(f"v_sub_f32 v{a}, v{a}, v{t}")
            A(f"v_sub_f32 v{b}, v{b}, v{t}")
            A(f"v_cvt_pk_bf16_f32 v{b}, v{a}, v{b}")
            A(f"v_lshlrev_b32 v{a}, 16, v{b}")
            A(f"v_and_b32 v{b}, 0xffff0000, v{b}")
            A(f"v_mul_f32 v{t+3}, v{a}, v{t+2}")
            A(f"v_mul_f32 v{t+4}, v{b}, v{t+2}")
            A(f"v_fma_f32 v{a}, -v{t+3}, v{t+1}, v{a}")
            A(f"v_fma_f32 v{b}, -v{t+4}, v{t+1}, v{b}")
            A(f"v_fmac_f32 v{t+3}, v{a}, v{t+2}")
            A(f"v_fmac_f32 v{t+4}, v{b}, v{t+2}")
            A(f"v_cvt_pk_bf16_f32 v{dst+u}, v{t+3}, v{t+4}")

    def poll_tagged(loads, tagpairs, tag, tmp, sleep=0, mask=None):
        Lp, Ld = A.newlabel("L_poll"), A.newlabel("L_pdone")
        A(f"s_mov_b32 s81, {spin_g}")
        if mask is not None:
            A(f"s_mov_b64 exec, {mask}")
        A.label(Lp)
        for l in loads:
            A(l)
        A("s_waitcnt vmcnt(0)")
        if len(tagpairs) == 1:
            r = tagpairs[0]
            A(f"v_cmp_ne_u64 vcc, v[{r}:{r+1}], v[{tag}:{tag+1}]")
        else:
            for i, r in enumerate(tagpairs):
                if i == 0:
                    A(f"v_xor_b32 v{tmp}, v{r}, v{tag}")
                    A(f"v_xor_b32 v{tmp+1}, v{r+1}, v{tag+1}")
                else:
                    A(f"v_xor_b32 v{tmp+2}, v{r}, v{tag}")
                    A(f"v_xor_b32 v{tmp+3}, v{r+1}, v{tag+1}")
                    A(f"v_or3_b32 v{tmp+(i&1)}, v{tmp+(i&1)}, v{tmp+2}, v{tmp+3}")
            A(f"v_or_b32 v{tmp}, v{tmp}, v{tmp+1}")
            A(f"v_cmp_ne_u32 vcc, 0, v{tmp}")
        A(f"s_cbranch_vccz {Ld}")
        if sleep:
            A(f"s_sleep {sleep}")
        A("s_sub_u32 s81, s81, 1")
        A("s_cmp_lg_u32 s81, 0")
        A(f"s_cbranch_scc1 {Lp}")
        A.label(Ld)
        if mask is not None:
            A("s_mov_b64 exec, -1")

    def poll_sel(groups, tag, sleep=0):
        Lp, Ld = A.newlabel("L_poll"), A.newlabel("L_pdone")
        A.pads_pause(True)
        A(f"s_mov_b32 s81, {spin_g}")
        for loads, _ in groups:
            for l in loads:
                A(l)
        A.label(Lp)
        A("s_waitcnt vmcnt(0)")
        for i, (_, pairs) in enumerate(groups):
            m = f"s[{4+2*i}:{5+2*i}]"
            for k, r in enumerate(pairs):
                if k == 0:
                    A(f"v_cmp_ne_u64 {m}, v[{r}:{r+1}], v[{tag}:{tag+1}]")
                else:
                    A(f"v_cmp_ne_u64 vcc, v[{r}:{r+1}], v[{tag}:{tag+1}]")
                    A(f"s_or_b64 {m}, {m}, vcc")
        A("s_or_b64 s[38:39], s[4:5], s[6:7]")
        for i in range(2, len(groups)):
            A(f"s_or_b64 s[38:39], s[38:39], s[{4+2*i}:{5+2*i}]")
        A(f"s_cbranch_scc0 {Ld}")
        if sleep:
            A(f"s_sleep {sleep}")
        for i, (loads, _) in enumerate(groups):
            A(f"s_mov_b64 exec, s[{4+2*i}:{5+2*i}]")
            for l in loads:
                A(l)
        A("s_mov_b64 exec, -1")
        A("s_sub_u32 s81, s81, 1")
        A("s_cmp_lg_u32 s81, 0")
        A(f"s_cbranch_scc1 {Lp}")
        A("s_waitcnt vmcnt(0)")
        A.label(Ld)
        A.pads_pause(False)

    def lds_wait(addr_v, val_v, off, target, sleep=1):
        Lp, Ld = A.newlabel("L_lw"), A.newlabel("L_lwd")
        A(f"s_mov_b32 s81, {spin_l}")
        A.label(Lp)
        A(f"ds_read_b32 v{val_v}, v{addr_v} offset:{off}")
        A("s_waitcnt lgkmcnt(0)")
        A(f"v_readfirstlane_b32 s79, v{val_v}")
        A(f"s_cmp_ge_u32 s79, {target}")
        A(f"s_cbranch_scc1 {Ld}")
        A(f"s_sleep {sleep}")
        A("s_sub_u32 s81, s81, 1")
        A("s_cmp_lg_u32 s81, 0")
        A(f"s_cbranch_scc1 {Lp}")
        A.label(Ld)

    def lds_inc(zero_v, one_v, off):
        A("s_mov_b64 exec, 1")
        A(f"ds_add_u32 v{zero_v}, v{one_v} offset:{off}")
        A("s_mov_b64 exec, -1")

    A("s_cmp_ge_u32 s2, 256")
    A("s_cbranch_scc1 L_end")
    A("s_load_dwordx16 s[4:19], s[0:1], 0")
    A("s_load_dwordx8 s[20:27], s[0:1], 64")
    A("v_lshrrev_b32 v1, 6, v0")
    A("v_and_b32 v0, 63, v0")
    A("v_readfirstlane_b32 s3, v1")
    A(f"s_lshr_b32 {sG}, s2, 3")
    A(f"s_and_b32 {sJ}, s2, 7")
    A(f"s_and_b32 {sB}, s3, 3")
    if mix:
        A(f"s_mul_i32 {sH}, {sB}, {sJ}")
        A(f"s_add_u32 {sH}, {sH}, {sG}")
        A(f"s_and_b32 {sH}, {sH}, 31")
    else:
        A(f"s_mov_b32 {sH}, {sG}")
    if stamps:
        for k in range(16):
            A(f"s_mov_b32 s{84+k}, 0")
    A("s_cmp_lt_u32 s3, 4")
    A("s_cbranch_scc1 L_helper")

    vOFF, vZ = 1, 2
    T = 3
    vTAG = 8
    vM, vL = 11, 12
    vAL, vP = 14, 16
    vU = 18
    vLB = 22
    vQ = 24
    vACC = 36
    vTK = 60
    vSLOT = 64
    sOFF, sCT, sOP = "s75", "s76", "s83"
    sSL = 60

    kreg = lambda slot, i: vSLOT + slot * 24 + 4 * i
    vreg = lambda slot, i: vSLOT + slot * 24 + 12 + 4 * i
    vmq = []

    def vwait(tag, first=False):
        idx = [k for k, t in enumerate(vmq) if t == tag]
        if not idx:
            return
        i = idx[2] if first else idx[-1]
        n = len(vmq) - 1 - i
        assert n <= 63
        A(f"s_waitcnt vmcnt({n})")
        del vmq[:i + 1]

    def issueK(slot, soff):
        for i in range(3):
            r = kreg(slot, i)
            A(f"buffer_load_dwordx4 v[{r}:{r+3}], v{vOFF}, {S_K}, {soff} offen offset:{128*i} nt")
            vmq.append(("K", slot))

    def issueV(slot, soff):
        for i in range(3):
            r = vreg(slot, i)
            A(f"buffer_load_dwordx4 v[{r}:{r+3}], v{vOFF}, {S_V}, {soff} offen offset:{128*i} nt")
            vmq.append(("V", slot))

    def atomic(slot):
        A(f"v_mov_b32 v{vTK+slot}, 1")
        A("s_mov_b64 exec, 1")
        A(f"buffer_atomic_add v{vTK+slot}, v{vZ}, {S_WS}, {sCT} offen sc0")
        A("s_mov_b64 exec, -1")
        vmq.append(("T", slot))

    def consumeK(slot, mid=None):
        t0, t1, t2, t3, t4 = T, T + 1, T + 2, T + 3, T + 4
        k = kreg(slot, 0)
        if nocompute:
            for e in range(0, 12, 4):
                A(f"v_xor_b32 v{vL}, v{vL}, v{k+e}")
            if mid:
                mid()
            return
        for e in range(6):
            A(f"v_dot2_f32_bf16 v{t0}, v{k+e}, v{vQ+e}, " + ("0" if e == 0 else f"v{t0}"))
            A(f"v_dot2_f32_bf16 v{t1}, v{k+6+e}, v{vQ+6+e}, " + ("0" if e == 0 else f"v{t1}"))
        if mid:
            mid()
        A(f"v_add_f32 v{t0}, v{t0}, v{t1}")
        A(f"v_add_f32_dpp v{t0}, v{t0}, v{t0} quad_perm:[1,0,3,2] {DPP}")
        A(f"v_add_f32_dpp v{t0}, v{t0}, v{t0} quad_perm:[2,3,0,1] {DPP}")
        A(f"v_add_f32_dpp v{t0}, v{t0}, v{t0} row_half_mirror {DPP}")
        rnd(t1, t0)
        A(f"v_mul_f32 v{t1}, {SCALE}, v{t1}")
        rnd(t1, t1)
        A(f"v_max_f32 v{t2}, v{vM}, v{t1}")
        A(f"v_sub_f32 v{t3}, v{vM}, v{t2}")
        A(f"v_sub_f32 v{t4}, v{t1}, v{t2}")
        A(f"v_mul_f32 v{t3}, {LOG2E}, v{t3}")
        A(f"v_mul_f32 v{t4}, {LOG2E}, v{t4}")
        A(f"v_exp_f32 v{vAL}, v{t3}")
        A(f"v_exp_f32 v{vP}, v{t4}")
        A(f"v_mov_b32 v{vM}, v{t2}")
        A(f"v_fma_f32 v{vL}, v{vL}, v{vAL}, v{vP}")
        for a in range(12):
            r = vACC + 2 * a
            A(f"v_pk_mul_f32 v[{r}:{r+1}], v[{r}:{r+1}], v[{vAL}:{vAL+1}] op_sel_hi:[1,0]")

    def consumeV(slot):
        v = vreg(slot, 0)
        if nocompute:
            for e in range(0, 12, 4):
                A(f"v_xor_b32 v{vL}, v{vL}, v{v+e}")
            return
        for a in range(12):
            u = vU + 2 * (a & 1)
            r = vACC + 2 * a
            A(f"v_lshlrev_b32 v{u}, 16, v{v+a}")
            A(f"v_and_b32 v{u+1}, 0xffff0000, v{v+a}")
            A(f"v_pk_fma_f32 v[{r}:{r+1}], v[{u}:{u+1}], v[{vP}:{vP+1}], v[{r}:{r+1}] op_sel_hi:[1,0,1]")

    stamp(0)
    A(f"v_lshrrev_b32 v{T}, 3, v0")
    A(f"v_mul_u32_u24 v{T}, 384, v{T}")
    A(f"v_and_b32 v{T+1}, 7, v0")
    A(f"v_lshl_add_u32 v{vOFF}, v{T+1}, 4, v{T}")
    A(f"s_lshl_b32 s77, {sB}, 5")
    A(f"s_add_u32 s77, s77, {sH}")
    A(f"s_mul_i32 s78, s77, {TASKB}")
    A(f"s_mul_i32 {sOFF}, {sJ}, 3072")
    A("s_waitcnt lgkmcnt(0)")
    srd(S_K, 6, TASKB, "s78")
    srd(S_V, 8, TASKB, "s78")

    def s_setup():
        A(f"v_mov_b32 v{vZ}, 0")
        A(f"s_lshl_b32 {sCT}, s77, 8")
        A(f"s_add_u32 {sCT}, {sCT}, {CT_OFF}")
        A(f"s_lshl_b32 {sOP}, s77, 3")
        A(f"s_add_u32 {sOP}, {sOP}, {sJ}")
        A(f"s_lshl_b32 {sOP}, {sOP}, 11")
        A(f"s_add_u32 {sOP}, {sOP}, {OP_OFF}")
        A(f"s_mul_i32 s77, {sB}, {4*6144}")
        A(f"s_add_u32 s77, s77, {L_SBUF}")
        A(f"s_mul_i32 s80, {sB}, 12288")
        A(f"v_lshlrev_b32 v{vLB+1}, 4, v0")
        A(f"v_add_u32 v{vLB}, s77, v{vLB+1}")
        A(f"v_add_u32 v{vLB+1}, s80, v{vLB+1}")
        srd(S_WS, 26, WS_SIZE)
        A(f"s_add_u32 s66, s26, {sCT}")
        A("s_addc_u32 s67, s27, 0")
        A("s_barrier")
    if not early:
        s_setup()
    last = lambda n: ("V", n) if n < NS else ("L", n - NS)
    for n in range(NS + NL):
        if n >= PACE:
            vwait(last(n - PACE))
            if n - PACE + 2 < 8:
                stamp(n - PACE + 2, "start")
        if n < NS:
            issueK(n, sOFF)
            issueV(n, sOFF)
        else:
            li = n - NS
            if li == 4:
                lds_wait(vZ, T, C_SYNC1, 4)
            for kv in range(2):
                for i in range(3):
                    A(f"s_add_u32 m0, {'s77' if li < 4 else 's80'}, {(li&3)*6144 + (3*kv+i)*1024 - 128*i}")
                    A(f"buffer_load_dwordx4 v{vOFF}, {S_K if kv == 0 else S_V}, {sOFF} offen offset:{128*i} nt lds")
                    vmq.append(("L", n - NS))
        A(f"s_add_u32 {sOFF}, {sOFF}, {8*3072}")
        if n == PACE - 1 and early:
            s_setup()
        if n == PACE - 1:
            A(f"v_mov_b32 v{vM}, 0xff7fffff")
            A(f"v_mov_b32 v{vL}, 0")
            for a in range(24):
                A(f"v_mov_b32 v{vACC+a}, 0")
    stamp(1)
    lds_wait(vZ, T, C_QRDY, 4)
    A(f"v_and_b32 v{T}, 7, v0")
    A(f"v_lshlrev_b32 v{T}, 4, v{T}")
    A(f"s_mul_i32 s78, {sB}, 384")
    A(f"v_add_u32 v{T}, s78, v{T}")
    for i in range(3):
        A(f"ds_read_b128 v[{vQ+4*i}:{vQ+4*i+3}], v{T} offset:{L_QL+128*i}")
    A(f"ds_read_b64 v[{vTAG}:{vTAG+1}], v{vZ} offset:{L_TAG}")
    A("s_waitcnt lgkmcnt(0)")
    if touch_op:
        A(f"v_lshlrev_b32 v{T}, 4, v0")
        A(f"buffer_store_dwordx4 v[{vACC}:{vACC+3}], v{T}, {S_WS}, {sOP} offen sc1")
        A(f"buffer_store_dwordx4 v[{vACC}:{vACC+3}], v{T}, {S_WS}, {sOP} offen offset:1024 sc1")
    stamp(2)

    def static_step(slot, with_atomic=False, save=False):
        vwait(("K", slot))

        def mid():
            if with_atomic:
                atomic(slot)
            issueK(slot, sOFF)
        consumeK(slot, mid)
        vwait(("V", slot), first=True)
        consumeV(slot)
        issueV(slot, sOFF)
        if save:
            A(f"s_mov_b32 s{sSL+slot}, {sOFF}")
        A(f"s_add_u32 {sOFF}, {sOFF}, {8*3072}")

    for s in range(D):
        static_step(s)
    backlog = [("reg", D + e) for e in range(E)] + [("lds", i) for i in range(NL)]
    nring = R0 - D
    done = 0
    for r in range(nring + 1):
        upto = len(backlog) if r == nring else (len(backlog) * (r + 1) + nring) // (nring + 1)
        while done < upto:
            kind, x = backlog[done]
            done += 1
            if kind == "reg":
                vwait(("K", x))
                consumeK(x)
                vwait(("V", x))
                consumeV(x)
                i = x - D
                if i < NL:
                    vwait(("L", i))
                    for k in range(6):
                        rr = vSLOT + x * 24 + 4 * k
                        A(f"ds_read_b128 v[{rr}:{rr+3}], v{vLB+(i>>2)} offset:{(i&3)*6144+1024*k}")
            else:
                A("s_waitcnt lgkmcnt(0)")
                if x == 0:
                    pass
                consumeK(D + x)
                consumeV(D + x)
        if r < nring:
            static_step(r % D)
    A(f"v_mov_b32 v{T}, 1")
    lds_inc(vZ, T, C_SFREE)
    A(f"s_cmp_eq_u32 {sJ}, 5")
    A(f"s_cselect_b32 s77, {nA - XF // D}, {nA}")
    A.label("L_loopA")
    shape = list(vmq)
    for s in range(D):
        static_step(s)
    assert vmq == shape, (vmq, shape)
    A("s_sub_u32 s77, s77, 1")
    A("s_cmp_lg_u32 s77, 0")
    A("s_cbranch_scc1 L_loopA")
    def satomic():
        A(f"s_mov_b32 s65, {D}")
        A("s_atomic_add s65, s[66:67], 0 glc")

    if satom:
        satomic()
    for s in range(D):
        static_step(s, with_atomic=not satom, save=True)
    stamp(3)
    A.label("L_loopB")
    shape = list(vmq)
    for s in range(D):
        A(f"s_cmp_ge_u32 s{sSL+s}, {TASKB}")
        A("s_cbranch_scc1 L_s_done")
        if satom and s == 0:
            A("s_waitcnt lgkmcnt(0)")
            A("s_mov_b32 s64, s65")
            satomic()
        vwait(("K", s))
        if satom:
            A(f"s_add_u32 s78, s64, {s}")
        else:
            A(f"v_readfirstlane_b32 s78, v{vTK+s}")

        def mid(s=s):
            A(f"s_min_u32 s78, s78, {POOL}")
            if XF:
                A("s_lshl_b32 s79, s78, 3")
                A(f"s_add_u32 s79, s79, {8*(S0-XF)+5}")
                A(f"s_add_u32 s80, s78, {8*S0-XF}")
                A(f"s_cmp_lt_u32 s78, {XF}")
                A("s_cselect_b32 s78, s79, s80")
            else:
                A(f"s_add_u32 s78, s78, {8*S0}")
            A(f"s_mul_i32 s{sSL+s}, s78, 3072")
            if not satom:
                atomic(s)
            issueK(s, f"s{sSL+s}")
        consumeK(s, mid)
        vwait(("V", s), first=True)
        consumeV(s)
        issueV(s, f"s{sSL+s}")
    assert vmq == shape, (vmq, shape)
    A("s_branch L_loopB")
    A.label("L_s_done")
    stamp(4)
    t0, t1 = T, T + 1
    A(f"v_max_f32_dpp v{t0}, v{vM}, v{vM} row_ror:8 {DPP}")
    allred16_32("v_max_f32", t0, t1)
    A(f"v_sub_f32 v{t1}, v{vM}, v{t0}")
    A(f"v_mul_f32 v{t1}, {LOG2E}, v{t1}")
    A(f"v_exp_f32 v{vAL}, v{t1}")
    A(f"v_mul_f32 v{vL}, v{vL}, v{vAL}")
    for a in range(12):
        r = vACC + 2 * a
        A(f"v_pk_mul_f32 v[{r}:{r+1}], v[{r}:{r+1}], v[{vAL}:{vAL+1}] op_sel_hi:[1,0]")
    A(f"v_add_f32_dpp v{vL}, v{vL}, v{vL} row_ror:8 {DPP}")
    allred16_32("v_add_f32", vL, t1)
    for a in range(12):
        A(f"v_permlane32_swap_b32 v{vACC+a}, v{vACC+12+a}")
    for a in range(12):
        A(f"v_add_f32 v{vACC+a}, v{vACC+a}, v{vACC+12+a}")
    for a in range(6):
        A(f"v_permlane16_swap_b32 v{vACC+a}, v{vACC+6+a}")
    for a in range(6):
        A(f"v_add_f32 v{vACC+a}, v{vACC+a}, v{vACC+6+a}")
    A(f"v_and_b32 v{t1}, 8, v0")
    A(f"v_cmp_ne_u32 vcc, 0, v{t1}")
    O0, O1 = vQ, vQ + 4
    dst = [O0, O0 + 1, O1]
    for r in range(3):
        A(f"v_cndmask_b32 v{vU+r}, v{vACC+3+r}, v{vACC+r}, vcc")
        A(f"v_cndmask_b32 v{dst[r]}, v{vACC+r}, v{vACC+3+r}, vcc")
    A(f"v_and_b32 v{t1}, 1, v0")
    A(f"v_cmp_ne_u32 vcc, 0, v{t1}")
    for r in range(3):
        A(f"v_add_f32_dpp v{dst[r]}, v{vU+r}, v{dst[r]} row_ror:8 {DPP}")
    A(f"v_cndmask_b32 v{O1+1}, v{t0}, v{vL}, vcc")
    for o in (O0, O1):
        A(f"v_mov_b32 v{o+2}, v{vTAG}")
        A(f"v_mov_b32 v{o+3}, v{vTAG+1}")
    A(f"v_lshlrev_b32 v{t1}, 4, v0")
    A(f"buffer_store_dwordx4 v[{O0}:{O0+3}], v{t1}, {S_WS}, {sOP} offen sc1")
    A(f"buffer_store_dwordx4 v[{O1}:{O1+3}], v{t1}, {S_WS}, {sOP} offen offset:1024 sc1")
    stamp(5)
    A("s_barrier")
    stamp_flush(36)
    A("s_endpgm")

    A.label("L_helper")
    stamp(0)
    if prio:
        A("s_setprio 2")
    hZ, hONE, hL4, hL16 = 1, 2, 3, 4
    hAD = 5
    hX = 8
    hNC = 14
    hF = 16
    hT = 26
    hA = 32
    hD = 80
    hB = 92
    hG = 128
    hW1 = 160
    A(f"v_mov_b32 v{hZ}, 0")
    A(f"v_mov_b32 v{hONE}, 1")
    A(f"v_lshlrev_b32 v{hL4}, 2, v0")
    A(f"v_lshlrev_b32 v{hL16}, 4, v0")
    for i in range(3):
        A(f"v_add_u32 v{hT}, {64*i}, v0")
        A(f"v_mul_u32_u24 v{hT+1}, 2731, v{hT}")
        A(f"v_lshrrev_b32 v{hT+1}, 16, v{hT+1}")
        A(f"v_mul_u32_u24 v{hT+2}, 24, v{hT+1}")
        A(f"v_sub_u32 v{hT}, v{hT}, v{hT+2}")
        A(f"v_mul_u32_u24 v{hT+1}, 12288, v{hT+1}")
        A(f"v_lshl_add_u32 v{hAD+i}, v{hT}, 4, v{hT+1}")
    A("s_mul_i32 s75, s3, 1280")
    A(f"s_mul_i32 s76, {sJ}, {80*12288}")
    A(f"s_mul_i32 s77, {sG}, 384")
    A("s_add_u32 s76, s76, s77")
    A(f"s_mul_i32 s77, s3, {8*12288}")
    A("s_add_u32 s76, s76, s77")
    A("s_mul_i32 s83, s3, 3072")
    A("s_waitcnt lgkmcnt(0)")
    srd(S_X, 4, 5120)
    srd(S_WQ, 10, 640 * 6144 * 2)
    for u in range(5):
        A(f"buffer_load_dword v{hX+u}, v{hL4}, {S_X}, s75 offen offset:{256*u}")
    for blk in range(3):
        if blk == 2:
            A("s_cmp_lt_u32 s3, 2")
            A(f"s_cselect_b32 s76, s76, {OOB}")
        for i in range(3):
            A(f"s_add_u32 m0, s83, {blk*4*3072 + 1024*i}")
            A(f"buffer_load_dwordx4 v{hAD+i}, {S_WQ}, s76 offen nt lds")
        A(f"s_add_u32 s76, s76, {32*12288}")
    srd(S_DBG, 24, 256)
    srd(S_WS, 26, WS_SIZE)
    A("s_add_u32 s77, s2, s3")
    A("s_cmp_lg_u32 s77, 0")
    A("s_cbranch_scc1 L_notag")
    A("s_memrealtime s[78:79]")
    A("s_waitcnt lgkmcnt(0)")
    A("s_or_b32 s78, s78, 1")
    A("s_or_b32 s79, s79, 0x80000000")
    A(f"v_mov_b32 v{hNC}, s78")
    A(f"v_mov_b32 v{hNC+1}, s79")
    A("s_mov_b64 exec, 1")
    A(f"buffer_store_dwordx2 v[{hNC}:{hNC+1}], v{hZ}, {S_DBG}, 0 offen sc1")
    A("s_mov_b64 exec, -1")
    A.label("L_notag")
    A("s_lshl_b32 s76, s3, 5")
    A(f"s_add_u32 s76, s76, {sG}")
    A("s_lshl_b32 s76, s76, 8")
    A(f"s_add_u32 s76, s76, {CT_OFF}")
    A(f"s_cmp_eq_u32 {sJ}, 0")
    A(f"s_cselect_b32 s76, s76, {OOB}")
    A("s_mov_b64 exec, 1")
    A(f"buffer_store_dword v{hZ}, v{hZ}, {S_WS}, s76 offen sc1")
    A("s_mov_b64 exec, -1")
    for k in range(4):
        A(f"v_mov_b32 v{hG+k}, 0")
    A(f"ds_write_b128 v{hZ}, v[{hG}:{hG+3}] offset:{L_CNT}")
    A(f"ds_write_b32 v{hZ}, v{hG} offset:{L_CNT+16}")
    A("s_waitcnt lgkmcnt(0)")
    A("s_barrier")
    srd(S_WO, 12, 6144 * 640 * 2)
    srd(S_WG, 16, 640 * 1536 * 2)
    srd(S_WU, 18, 640 * 1536 * 2)
    srd(S_WD, 20, 1536 * 640 * 2)
    srd(S_OUT, 22, 5120)
    A("s_waitcnt vmcnt(10)")
    stamp(1, "start")
    layernorm([hX + u for u in range(5)], hX, hF, hT)
    A(f"v_add_u32 v{hAD}, s75, v{hL4}")
    for u in range(5):
        A(f"ds_write_b32 v{hAD}, v{hX+u} offset:{L_XN+256*u}")
    A(f"buffer_load_dwordx2 v[{hNC}:{hNC+1}], v{hZ}, {S_DBG}, 0 offen sc1")
    A(f"v_lshrrev_b32 v{hT}, 4, v0")
    A(f"v_and_b32 v{hT+1}, 3, v0")
    A(f"v_mul_u32_u24 v{hAD}, 1280, v{hT+1}")
    A(f"v_lshl_add_u32 v{hAD}, v{hT}, 3, v{hAD}")
    A(f"s_mul_i32 s77, {sJ}, 160")
    A(f"v_add_u32 v{hAD}, s77, v{hAD}")
    A(f"v_bfe_u32 v{hT+2}, v0, 2, 2")
    A(f"v_lshl_add_u32 v{hT+3}, v{hT}, 2, v{hT+2}")
    A(f"v_mul_u32_u24 v{hAD+1}, 384, v{hT+3}")
    A(f"v_lshl_add_u32 v{hAD+1}, v{hT+1}, 3, v{hAD+1}")
    A("s_mul_i32 s77, s3, 96")
    A(f"v_add_u32 v{hAD+1}, s77, v{hAD+1}")
    A("s_mul_i32 s77, s3, 192")
    A(f"v_add_u32 v{hAD+2}, s77, v{hL4}")
    A("s_waitcnt vmcnt(2) lgkmcnt(0)")
    stamp(2, "start")
    lds_inc(hZ, hONE, C_SYNC0)
    lds_wait(hZ, hT, C_SYNC0, 4)
    stamp(3, "start")
    for t in range(5):
        A(f"ds_read_b64 v[{hA+2*t}:{hA+2*t+1}], v{hAD} offset:{L_XN+32*t}")
    for tt in range(3):
        for t in range(5):
            r = hB + 2 * (tt * 5 + t)
            A(f"ds_read_b64_tr_b16 v[{r}:{r+1}], v{hAD+1} offset:{16*384*t+32*tt}")
    for tt in range(3):
        A(f"s_waitcnt lgkmcnt({10-5*tt})")
        for t in range(5):
            r = hB + 2 * (tt * 5 + t)
            c = "0" if t == 0 else f"v[{hD+4*tt}:{hD+4*tt+3}]"
            A(f"v_mfma_f32_16x16x16_bf16 v[{hD+4*tt}:{hD+4*tt+3}], v[{hA+2*t}:{hA+2*t+1}], v[{r}:{r+1}], {c}")
    A("s_mov_b64 exec, 0xffff")
    for tt in range(3):
        for b in range(4):
            A(f"ds_write_b32 v{hAD+2}, v{hD+4*tt+b} offset:{L_RED+768*b+64*tt}")
    A("s_mov_b64 exec, -1")
    A("s_lshl_b32 s76, s2, 12")
    A("s_lshl_b32 s77, s3, 10")
    A("s_add_u32 s76, s76, s77")
    A("s_mul_i32 s78, s3, 768")
    A(f"v_add_u32 v{hAD}, s78, v{hL16}")
    A("s_waitcnt lgkmcnt(0)")
    lds_inc(hZ, hONE, C_SYNC1)
    lds_wait(hZ, hT, C_SYNC1, 4)
    A(f"ds_read_b128 v[{hD}:{hD+3}], v{hAD} offset:{L_RED}")
    A("s_waitcnt lgkmcnt(0)")
    A("s_mov_b32 exec_hi, 0xffff")
    if not noqx:
        A(f"buffer_store_dwordx4 v[{hD}:{hD+3}], v{hL16}, {S_WS}, s76 offen sc1")
    A("s_mov_b32 exec_hi, -1")
    stamp(4, "start")
    A(f"s_lshl_b32 s78, {sH}, 15")
    A("s_add_u32 s78, s78, s77")
    A(f"v_lshlrev_b32 v{hAD+1}, 12, v0")
    A("s_mul_i32 s77, s3, 384")
    A(f"v_lshl_add_u32 v{hAD}, v0, 3, s77")
    A("s_waitcnt vmcnt(0)")
    stamp(5, "start")
    A(f"s_mov_b32 s81, {spin_g}")
    A.label("L_gf")
    A(f"v_readfirstlane_b32 s79, v{hNC}")
    A(f"v_readfirstlane_b32 s80, v{hNC+1}")
    A("s_cmp_eq_u32 s79, 0")
    A("s_cselect_b32 s80, 0, s80")
    A("s_cmp_lg_u32 s80, 0")
    A("s_cbranch_scc1 L_gfd")
    A("s_sleep 2")
    A(f"buffer_load_dwordx2 v[{hNC}:{hNC+1}], v{hZ}, {S_DBG}, 0 offen sc1")
    A("s_waitcnt vmcnt(0)")
    A("s_sub_u32 s81, s81, 1")
    A("s_cmp_lg_u32 s81, 0")
    A("s_cbranch_scc1 L_gf")
    A.label("L_gfd")
    A("s_mov_b64 exec, 1")
    if not noqx:
        A(f"buffer_store_dwordx2 v[{hNC}:{hNC+1}], v{hZ}, {S_WS}, s76 offen offset:768 sc1")
    A(f"ds_write_b64 v{hZ}, v[{hNC}:{hNC+1}] offset:{L_TAG}")
    A("s_mov_b64 exec, -1")
    stamp(1)
    if not noqx:
        poll_tagged([f"buffer_load_dwordx2 v[{hT}:{hT+1}], v{hAD+1}, {S_WS}, s78 offen offset:768 sc1"], [hT], hNC, hT + 2,
                    sleep=qsleep, mask="0xff")
        stamp(6, "start")
        A("s_mov_b32 exec_hi, 0xffff")
        for jj in range(8):
            A(f"buffer_load_dwordx4 v[{hG+4*jj}:{hG+4*jj+3}], v{hL16}, {S_WS}, s78 offen sc1")
            A("s_add_u32 s78, s78, 4096")
        for jj in range(1, 8):
            A(f"s_waitcnt vmcnt({7-jj})")
            for e in range(4):
                A(f"v_add_f32 v{hG+e}, v{hG+e}, v{hG+4*jj+e}")
    A("s_mov_b32 exec_hi, 0xffff")
    A(f"v_cvt_pk_bf16_f32 v{hG+4}, v{hG}, v{hG+1}")
    A(f"v_cvt_pk_bf16_f32 v{hG+5}, v{hG+2}, v{hG+3}")
    A(f"ds_write_b64 v{hAD}, v[{hG+4}:{hG+5}] offset:{L_QL}")
    A("s_mov_b32 exec_hi, -1")
    A("s_waitcnt lgkmcnt(0)")
    lds_inc(hZ, hONE, C_QRDY)
    stamp(2)
    stamp(7, "start")
    if prio:
        A("s_setprio 0")

    def tr_addr(dst, rowbytes, base, k16=False):
        A(f"v_lshrrev_b32 v{hT}, 4, v0")
        A(f"v_lshlrev_b32 v{hT}, {2 if k16 else 3}, v{hT}")
        A(f"v_bfe_u32 v{hT+1}, v0, 2, 2")
        A(f"v_add_u32 v{hT}, v{hT}, v{hT+1}")
        A(f"v_mul_u32_u24 v{dst}, {rowbytes}, v{hT}")
        A(f"v_and_b32 v{hT+1}, 3, v0")
        A(f"v_lshl_add_u32 v{dst}, v{hT+1}, 3, v{dst}")
        A(f"v_add_u32 v{dst}, {base}, v{dst}")

    def warm_code(l0, l1, tmp):
        if not warm:
            return
        lab = A.newlabel("L_pc")
        A("s_getpc_b64 s[20:21]")
        A.label(lab)
        A(f"s_add_u32 s20, s20, {l0}-{lab}")
        A("s_addc_u32 s21, s21, 0")
        A(f"v_lshlrev_b32 v{tmp}, 7, v0")
        A(f"v_min_u32 v{tmp}, ({l1}-{l0}-4)&~3, v{tmp}")
        A(f"global_load_dword v{tmp}, v{tmp}, s[20:21]")

    def warm_icache(tag):
        if not pads:
            return
        A("s_mov_b64 exec, 0")
        A(f"s_cbranch_execz L_pad0_{tag}")
        A.label(f"L_padret_{tag}")
        A("s_mov_b64 exec, -1")

    def split_halves(d):
        A(f"v_cndmask_b32 v{d}, v{d}, v{d+2}, s[34:35]")
        A(f"v_cndmask_b32 v{d+1}, v{d+1}, v{d+3}, s[34:35]")
        A(f"v_mov_b32 v{d+2}, v{hNC}")
        A(f"v_mov_b32 v{d+3}, v{hNC+1}")

    hGO = 13
    A(f"v_and_b32 v{hT}, 15, v0")
    A(f"v_lshlrev_b32 v{hGO}, 5, v{hT}")
    A(f"v_and_b32 v{hT}, 16, v0")
    A(f"v_add_u32 v{hGO}, v{hGO}, v{hT}")
    A("v_cmp_lt_u32 s[34:35], 15, v0")
    A("s_mul_i32 s83, s3, 12288")
    A(f"s_cmp_eq_u32 {sJ}, 5")
    A("s_cbranch_scc1 L_role_ffn")
    A(f"s_cmp_gt_u32 {sJ}, 5")
    A("s_cbranch_scc1 L_role_red")

    A(f"s_mul_i32 s32, {sG}, 20480")
    A(f"s_lshl_b32 s77, {sJ}, 12")
    A("s_add_u32 s32, s32, s77")
    A("s_lshl_b32 s77, s3, 10")
    A("s_add_u32 s32, s32, s77")
    A(f"s_add_u32 s32, s32, {YP_OFF}")
    if touch_y:
        for k in range(4):
            A(f"v_mov_b32 v{hG+k}, 0")
        A(f"buffer_store_dwordx4 v[{hG}:{hG+3}], v{hL16}, {S_WS}, s32 offen sc1")
    if not noweights:
        A(f"v_lshrrev_b32 v{hAD}, 4, v0")
        A(f"v_mul_u32_u24 v{hAD}, 1280, v{hAD}")
        A(f"v_and_b32 v{hT}, 15, v0")
        A(f"v_lshl_add_u32 v{hAD}, v{hT}, 4, v{hAD}")
        A(f"s_mul_i32 s76, {sG}, {192*1280}")
        A(f"s_lshl_b32 s77, {sJ}, 8")
        A("s_add_u32 s76, s76, s77")
        A(f"s_mul_i32 s77, s3, {48*1280}")
        A("s_add_u32 s76, s76, s77")
        if NL > 4:
            lds_wait(hZ, hT, C_SFREE, 4, sleep=16)
        for u in range(12):
            A(f"s_add_u32 m0, s83, {1024*u}")
            A(f"buffer_load_dwordx4 v{hAD}, {S_WO}, s76 offen nt lds")
            A(f"s_add_u32 s76, s76, {4*1280}")
        A("s_lshl_b32 s77, s3, 6")
        tr_addr(hAD + 1, 256, "s77")
        A("s_waitcnt vmcnt(0)")
        lds_inc(hZ, hONE, C_WSYNC)
        lds_wait(hZ, hT, C_WSYNC, 4, sleep=4)
        for tt in range(2):
            for t in range(6):
                for hf in range(2):
                    r = hW1 + 4 * (tt * 6 + t) + 2 * hf
                    A(f"ds_read_b64_tr_b16 v[{r}:{r+1}], v{hAD+1} offset:{(32*t+4*hf)*256+32*tt}")
    hAF, hOD = 122, 124
    A(f"v_and_b32 v{hT}, 3, v0")
    A(f"v_lshrrev_b32 v{hT+1}, 4, v0")
    A(f"v_mul_u32_u24 v{hAF}, 384, v{hT}")
    A(f"v_lshl_add_u32 v{hAF}, v{hT+1}, 4, v{hAF}")
    A(f"v_lshrrev_b32 v{hT}, 3, v0")
    A(f"v_mul_u32_u24 v{hT}, 3, v{hT}")
    A(f"v_and_b32 v{hT+1}, 7, v0")
    A(f"v_lshlrev_b32 v{hT+1}, 4, v{hT+1}")
    A("s_mul_i32 s76, s3, 384")
    A(f"v_add_u32 v{hT+1}, s76, v{hT+1}")
    for r in range(3):
        A(f"v_add_u32 v{hT+2}, {r}, v{hT}")
        A(f"v_lshrrev_b32 v{hT+3}, 3, v{hT+2}")
        A(f"v_lshlrev_b32 v{hT+3}, 7, v{hT+3}")
        A(f"v_and_b32 v{hT+2}, 7, v{hT+2}")
        A(f"v_lshlrev_b32 v{hT+2}, 1, v{hT+2}")
        A(f"v_add3_u32 v{hOD+r}, v{hT+1}, v{hT+2}, v{hT+3}")
    A("s_lshl_b32 s76, s3, 5")
    A(f"s_add_u32 s76, s76, {sG}")
    A("s_lshl_b32 s76, s76, 14")
    A(f"s_add_u32 s76, s76, {OP_OFF}")
    for k in range(1, 4):
        A(f"s_add_u32 s{76+k}, s76, {4096*k}")
    A(f"v_and_b32 v{hT}, 1, v0")
    A(f"v_cmp_ne_u32 s[36:37], 0, v{hT}")
    warm_code("L_tail_wo", "L_role_red", hT + 5)
    A("s_waitcnt lgkmcnt(0)")
    warm_icache("wo")
    A("s_barrier")
    A.label("L_tail_wo")
    if pads:
        A.pads_begin("L_pad0_wo", pads)
    stamp(3)
    g0 = lambda jj: hG + 4 * jj
    g1 = lambda jj: hA + 4 * jj
    lt = []
    for jj in range(8):
        for k, g in enumerate((g0(jj), g1(jj))):
            lt.append(f"buffer_load_dwordx4 v[{g}:{g+3}], v{hL16}, {S_WS}, s{76+(jj>>1)} offen offset:{2048*(jj&1)+1024*k} sc1")
    if selpoll:
        poll_sel([(lt[2*jj:2*jj+2], [g0(jj) + 2, g1(jj) + 2]) for jj in range(8)], hNC, sleep=psleep)
    else:
        poll_tagged(lt, [g0(jj) + 2 for jj in range(8)] + [g1(jj) + 2 for jj in range(8)], hNC, hT, sleep=psleep)
    stamp(4)
    hMx, hWt = hB, hB + 8
    for jj in range(8):
        A(f"v_mov_b32_dpp v{hMx+jj}, v{g1(jj)+1} quad_perm:[1,0,3,2] {DPP}")
    for jj in range(8):
        A(f"v_cndmask_b32 v{hWt+jj}, v{g1(jj)+1}, v{hMx+jj}, s[36:37]")
        A(f"v_cndmask_b32 v{hMx+jj}, v{hMx+jj}, v{g1(jj)+1}, s[36:37]")
    A(f"v_max3_f32 v{hT}, v{hWt}, v{hWt+1}, v{hWt+2}")
    A(f"v_max3_f32 v{hT+1}, v{hWt+3}, v{hWt+4}, v{hWt+5}")
    A(f"v_max3_f32 v{hT}, v{hT}, v{hWt+6}, v{hWt+7}")
    A(f"v_max_f32 v{hT}, v{hT}, v{hT+1}")
    for jj in range(8):
        A(f"v_sub_f32 v{hWt+jj}, v{hWt+jj}, v{hT}")
    for jj in range(8):
        A(f"v_mul_f32 v{hWt+jj}, {LOG2E}, v{hWt+jj}")
    for jj in range(8):
        A(f"v_exp_f32 v{hWt+jj}, v{hWt+jj}")
    oreg = lambda jj, r: (g0(jj), g0(jj) + 1, g1(jj))[r]
    A(f"v_mul_f32 v{hT+1}, v{hWt}, v{hMx}")
    for r in range(3):
        A(f"v_mul_f32 v{hT+2+r}, v{hWt}, v{oreg(0, r)}")
    for jj in range(1, 8):
        A(f"v_fmac_f32 v{hT+1}, v{hWt+jj}, v{hMx+jj}")
        for r in range(3):
            A(f"v_fmac_f32 v{hT+2+r}, v{hWt+jj}, v{oreg(jj, r)}")
    A(f"v_rcp_f32 v{hT}, v{hT+1}")
    for r in range(3):
        A(f"v_mul_f32 v{hT+2+r}, v{hT+2+r}, v{hT}")
    A(f"v_cvt_pk_bf16_f32 v{hT}, v{hT+2}, v{hT+3}")
    A(f"v_cvt_pk_bf16_f32 v{hT+1}, v{hT+4}, v{hT+4}")
    A(f"ds_write_b16 v{hOD}, v{hT} offset:{L_OL}")
    A(f"ds_write_b16_d16_hi v{hOD+1}, v{hT} offset:{L_OL}")
    A(f"ds_write_b16 v{hOD+2}, v{hT+1} offset:{L_OL}")
    A("s_waitcnt lgkmcnt(0)")
    A("s_barrier")
    for t in range(6):
        A(f"ds_read_b128 v[{hA+4*t}:{hA+4*t+3}], v{hAF} offset:{L_OL+64*t}")
    for t in range(6):
        A(f"s_waitcnt lgkmcnt({5-t})")
        for tt in range(2):
            r = hW1 + 4 * (tt * 6 + t)
            c = "0" if t == 0 else f"v[{hD+4*tt}:{hD+4*tt+3}]"
            A(f"v_mfma_f32_16x16x32_bf16 v[{hD+4*tt}:{hD+4*tt+3}], v[{hA+4*t}:{hA+4*t+3}], v[{r}:{r+3}], {c}")
    A("s_mov_b32 exec_hi, 0")
    for tt in range(2):
        split_halves(hD + 4 * tt)
        A(f"buffer_store_dwordx4 v[{hD+4*tt}:{hD+4*tt+3}], v{hGO}, {S_WS}, s32 offen offset:{512*tt} sc1")
    A("s_mov_b32 exec_hi, -1")
    if pads:
        A.pads_end("L_padret_wo")
    stamp(5)
    A("s_branch L_h_end")

    A.label("L_role_red")
    A(f"s_lshl_b32 s33, {sG}, 1")
    A(f"s_add_u32 s33, s33, {sJ}")
    A("s_sub_u32 s33, s33, 6")
    A("s_lshl_b32 s77, s3, 6")
    A("s_add_u32 s33, s33, s77")
    A("s_cmp_ge_u32 s33, 80")
    A("s_cbranch_scc1 L_h_end")
    A("s_lshl_b32 s36, s33, 7")
    A(f"s_add_u32 s36, s36, {HB_OFF}")
    A("s_lshl_b32 s37, s33, 4")
    if touch_y:
        for k in range(4):
            A(f"v_mov_b32 v{hG+k}, 0")
        A("s_mov_b64 exec, 0xff")
        A(f"buffer_store_dwordx4 v[{hG}:{hG+3}], v{hL16}, {S_WS}, s36 offen sc1")
        A("s_mov_b64 exec, -1")
    A(f"v_and_b32 v{hT+2}, 1, v0")
    A(f"v_mul_u32_u24 v{hAD}, 2560, v{hT+2}")
    A(f"v_and_b32 v{hT+3}, 14, v0")
    A(f"v_add_u32 v{hAD}, v{hAD}, v{hT+3}")
    A(f"buffer_load_ushort v{hX}, v{hAD}, {S_X}, s37 offen")
    A(f"buffer_load_ushort v{hX+1}, v{hAD}, {S_X}, s37 offen offset:1280")
    A(f"v_bfe_u32 v{hT+3}, v0, 2, 2")
    A(f"v_lshlrev_b32 v{hAD+2}, 5, v{hT+3}")
    A(f"v_lshl_add_u32 v{hAD+2}, v{hT+2}, 4, v{hAD+2}")
    A(f"v_lshrrev_b32 v{hT+2}, 4, v0")
    A(f"v_mul_u32_u24 v{hAD+1}, 20480, v{hT+2}")
    A(f"v_and_b32 v{hT+2}, 15, v0")
    A(f"v_lshl_add_u32 v{hAD+1}, v{hT+2}, 4, v{hAD+1}")
    hRS = hB
    A("s_waitcnt vmcnt(0)")
    A(f"v_lshlrev_b32 v{hRS}, 16, v{hX}")
    A(f"v_lshlrev_b32 v{hRS+1}, 16, v{hX+1}")
    warm_code("L_tail_red", "L_role_ffn", hT + 5)
    warm_icache("red")
    A("s_barrier")
    A.label("L_tail_red")
    if pads:
        A.pads_begin("L_pad0_red", pads)
    stamp(3)

    def reduce32(base_off, st):
        A("s_lshl_b32 s76, s33, 8")
        A(f"s_add_u32 s76, s76, {base_off}")
        lt = []
        for u in range(8):
            lt.append(f"buffer_load_dwordx4 v[{hG+4*u}:{hG+4*u+3}], v{hAD+1}, {S_WS}, s76 offen sc1")
            lt.append(f"s_add_u32 s76, s76, {4*20480}" if u < 7 else f"s_sub_u32 s76, s76, {7*4*20480}")
        if selpoll:
            for u in range(8):
                A(f"s_add_u32 s{20+u}, s76, {4*20480*u}")
            poll_sel([([f"buffer_load_dwordx4 v[{hG+4*u}:{hG+4*u+3}], v{hAD+1}, {S_WS}, s{20+u} offen sc1"], [hG + 4 * u + 2]) for u in range(8)],
                     hNC, sleep=psleep)
        else:
            poll_tagged(lt, [hG + 4 * u + 2 for u in range(8)], hNC, hT, sleep=psleep)
        stamp(st)
        for st2 in (4, 2, 1):
            for u in range(st2):
                for e in range(2):
                    A(f"v_add_f32 v{hG+4*u+e}, v{hG+4*u+e}, v{hG+4*(u+st2)+e}")
        for sw in ("v_permlane16_swap_b32", "v_permlane32_swap_b32"):
            for e in range(2):
                A(f"v_mov_b32 v{hG+4+e}, v{hG+e}")
            for e in range(2):
                A(f"{sw} v{hG+e}, v{hG+4+e}")
            for e in range(2):
                A(f"v_add_f32 v{hG+e}, v{hG+e}, v{hG+4+e}")
        A(f"v_cvt_pk_bf16_f32 v{hG}, v{hG}, v{hG+1}")
        A(f"v_lshlrev_b32 v{hG+2}, 16, v{hG}")
        A(f"v_and_b32 v{hG+3}, 0xffff0000, v{hG}")
        A(f"v_add_f32 v{hG+2}, v{hG+2}, v{hRS}")
        A(f"v_add_f32 v{hG+3}, v{hG+3}, v{hRS+1}")
        A(f"v_cvt_pk_bf16_f32 v{hG}, v{hG+2}, v{hG+3}")
        A(f"v_lshlrev_b32 v{hRS}, 16, v{hG}")
        A(f"v_and_b32 v{hRS+1}, 0xffff0000, v{hG}")
        A(f"v_mov_b32_dpp v{hG+1}, v{hG} quad_perm:[2,3,0,1] {DPP}")
        A(f"v_and_b32 v{hD}, 0xffff, v{hG}")
        A(f"v_lshl_or_b32 v{hD}, v{hG+1}, 16, v{hD}")
        A(f"v_and_b32 v{hG+1}, 0xffff0000, v{hG+1}")
        A(f"v_lshrrev_b32 v{hD+1}, 16, v{hG}")
        A(f"v_or_b32 v{hD+1}, v{hD+1}, v{hG+1}")

    reduce32(YP_OFF, 4)
    A(f"v_mov_b32 v{hD+2}, v{hNC}")
    A(f"v_mov_b32 v{hD+3}, v{hNC+1}")
    A("s_mov_b64 exec, 0x3333")
    A(f"buffer_store_dwordx4 v[{hD}:{hD+3}], v{hAD+2}, {S_WS}, s36 offen sc1")
    A("s_mov_b64 exec, -1")
    stamp(5)
    reduce32(ZP_OFF, 6)
    A("s_mov_b64 exec, 0x3333")
    A(f"buffer_store_dword v{hD}, v{hAD}, {S_OUT}, s37 offen")
    A(f"buffer_store_dword v{hD+1}, v{hAD}, {S_OUT}, s37 offen offset:1280")
    A("s_mov_b64 exec, -1")
    if pads:
        A.pads_end("L_padret_red")
    A("s_branch L_h_end")

    A.label("L_role_ffn")
    fA, fD, fWD, fWG = 32, 52, 76, 136
    fD2 = fWG
    A(f"s_mul_i32 s32, {sG}, 20480")
    A("s_mul_i32 s77, s3, 5120")
    A("s_add_u32 s32, s32, s77")
    A(f"s_add_u32 s32, s32, {ZP_OFF}")
    A("s_add_u32 s33, s32, 4096")
    if touch_y:
        for k in range(4):
            A(f"v_mov_b32 v{hG+k}, 0")
        for k in range(5):
            A(f"buffer_store_dwordx4 v[{hG}:{hG+3}], v{hL16}, {S_WS}, {'s32' if k < 4 else 's33'} offen offset:{1024*(k&3)} sc1")
    if not noweights:
        A(f"v_mul_u32_u24 v{hT}, 43, v0")
        A(f"v_lshrrev_b32 v{hT}, 8, v{hT}")
        A(f"v_mul_u32_u24 v{hT+1}, 6, v{hT}")
        A(f"v_sub_u32 v{hT+1}, v0, v{hT+1}")
        A(f"v_mul_u32_u24 v{hAD}, 3072, v{hT}")
        A(f"v_lshl_add_u32 v{hAD}, v{hT+1}, 4, v{hAD}")
        tr_addr(hAD + 1, 96, "s83")
        if NL > 4:
            lds_wait(hZ, hT, C_SFREE, 4, sleep=16)
        for mi, srdn in enumerate((S_WG, S_WU)):
            A(f"s_mul_i32 s76, {sG}, 96")
            A(f"s_mul_i32 s77, s3, {160*3072}")
            A("s_add_u32 s76, s76, s77")
            for (t0_, nt) in ((0, 3), (3, 2)):
                A("s_mov_b32 exec_hi, 0xffff")
                for u in range(4 * nt):
                    A(f"s_add_u32 m0, s83, {768*u}")
                    A(f"buffer_load_dwordx4 v{hAD}, {srdn}, s76 offen nt lds")
                    A(f"s_add_u32 s76, s76, {8*3072}")
                A("s_mov_b32 exec_hi, -1")
                A("s_waitcnt vmcnt(0)")
                for tile in range(3):
                    for t in range(nt):
                        for hf in range(2):
                            r = fWG + 4 * ((mi * 3 + tile) * 5 + t0_ + t) + 2 * hf
                            A(f"ds_read_b64_tr_b16 v[{r}:{r+1}], v{hAD+1} offset:{(32*t+4*hf)*96+32*tile}")
                A("s_waitcnt lgkmcnt(0)")
        A(f"s_mul_i32 s76, {sG}, {48*1280}")
        A("s_mul_i32 s77, s3, 15360")
        A("s_add_u32 s76, s76, s77")
        A(f"s_add_u32 s77, s77, {L_SBUF}")
        lds_wait(hZ, hT, C_SFREE, 4, sleep=16)
        for u in range(15):
            A(f"s_add_u32 m0, s77, {1024*u}")
            A(f"buffer_load_dwordx4 v{hL16}, {S_WD}, s76 offen nt lds")
            A("s_add_u32 s76, s76, 1024")
        A("s_mul_i32 s77, s3, 320")
        A(f"s_add_u32 s77, s77, {L_SBUF}")
        tr_addr(hAD + 1, 1280, "s77", k16=True)
        A("s_waitcnt vmcnt(0)")
        lds_inc(hZ, hONE, C_WSYNC)
        lds_wait(hZ, hT, C_WSYNC, 4, sleep=4)
        for nt in range(10):
            for t in range(3):
                r = fWD + 2 * (nt * 3 + t)
                A(f"ds_read_b64_tr_b16 v[{r}:{r+1}], v{hAD+1} offset:{16*t*1280+32*nt}")
        A("s_waitcnt lgkmcnt(0)")
    fXW, fAF, fRW, fRR, fAW, fA2, fHL = 5, 6, 7, 72, 73, 74, 75
    fD = 52
    fRR, fAW, fA2, fHL = 1, 2, 3, 4
    A("s_mul_i32 s75, s3, 1280")
    A("s_lshr_b32 s79, s3, 1")
    A("s_lshl_b32 s79, s79, 4")
    A(f"s_add_u32 s76, s79, {HB_OFF}")
    A("s_add_u32 s77, s76, 4096")
    A("s_add_u32 s78, s76, 8192")
    A(f"v_add_u32 v{fXW}, s75, v{hL4}")
    A(f"v_and_b32 v{hT}, 3, v0")
    A(f"v_lshrrev_b32 v{hT+1}, 4, v0")
    A(f"v_mul_u32_u24 v{fAF}, 1280, v{hT}")
    A(f"v_lshl_add_u32 v{fAF}, v{hT+1}, 4, v{fAF}")
    A("s_mul_i32 s79, s3, 320")
    A(f"v_add_u32 v{fAF}, s79, v{fAF}")
    A("s_mul_i32 s79, s3, 1536")
    A(f"v_add_u32 v{fRW}, s79, v{hL16}")
    A(f"v_and_b32 v{hT+2}, 15, v0")
    A(f"v_lshlrev_b32 v{fRR}, 4, v{hT+2}")
    A(f"v_lshl_add_u32 v{fRR}, v{hT+1}, 2, v{fRR}")
    A("s_lshl_b32 s79, s3, 8")
    A(f"v_add_u32 v{fRR}, s79, v{fRR}")
    A(f"v_mul_u32_u24 v{fAW}, 96, v{hT+1}")
    A(f"v_lshl_add_u32 v{fAW}, v{hT+2}, 1, v{fAW}")
    A("s_lshl_b32 s79, s3, 5")
    A(f"v_add_u32 v{fAW}, s79, v{fAW}")
    A(f"v_mul_u32_u24 v{fA2}, 96, v{hT}")
    A(f"v_lshl_add_u32 v{fA2}, v{hT+1}, 3, v{fA2}")
    A(f"v_lshlrev_b32 v{fHL}, 5, v0")
    A("s_bitcmp1_b32 s3, 0")
    A("s_cselect_b64 s[36:37], -1, 0")
    warm_code("L_tail_ffn", "L_end", hT + 5)
    warm_icache("ffn")
    A("s_barrier")
    A.label("L_tail_ffn")
    if pads:
        A.pads_begin("L_pad0_ffn", pads)
    stamp(3)
    lt = [f"buffer_load_dwordx4 v[{fA+4*u}:{fA+4*u+3}], v{fHL}, {S_WS}, s{76+(u>>1)} offen offset:{2048*(u&1)} sc1" for u in range(5)]
    if selpoll:
        poll_sel([([lt[u]], [fA + 4 * u + 2]) for u in range(5)], hNC, sleep=psleep)
    else:
        poll_tagged(lt, [fA + 4 * u + 2 for u in range(5)], hNC, hT, sleep=psleep)
    stamp(4)
    for u in range(5):
        A(f"v_cndmask_b32 v{hX+u}, v{fA+4*u}, v{fA+4*u+1}, s[36:37]")
    layernorm([hX + u for u in range(5)], hX, hF, hT)
    for u in range(5):
        A(f"ds_write_b32 v{fXW}, v{hX+u} offset:{L_XN+256*u}")
    A("s_waitcnt lgkmcnt(0)")
    A("s_barrier")
    for t in range(5):
        A(f"ds_read_b128 v[{fA+4*t}:{fA+4*t+3}], v{fAF} offset:{L_XN+64*t}")
    for t in range(5):
        A(f"s_waitcnt lgkmcnt({4-t})")
        for tile in range(6):
            r = fWG + 4 * (tile * 5 + t)
            c = "0" if t == 0 else f"v[{fD+4*tile}:{fD+4*tile+3}]"
            A(f"v_mfma_f32_16x16x32_bf16 v[{fD+4*tile}:{fD+4*tile+3}], v[{fA+4*t}:{fA+4*t+3}], v[{r}:{r+3}], {c}")
    A("s_mov_b64 exec, 0xffff")
    for tile in range(6):
        A(f"ds_write_b128 v{fRW}, v[{fD+4*tile}:{fD+4*tile+3}] offset:{L_RED+256*tile}")
    A("s_mov_b64 exec, -1")
    A("s_waitcnt lgkmcnt(0)")
    A("s_barrier")
    A("s_cmp_eq_u32 s3, 3")
    A("s_cbranch_scc1 L_noact")
    for ww in range(4):
        for gu in range(2):
            A(f"ds_read_b32 v{hF+4*gu+ww}, v{fRR} offset:{L_RED+1536*ww+768*gu}")
    A("s_waitcnt lgkmcnt(0)")
    for gu in range(2):
        f = hF + 4 * gu
        A(f"v_add_f32 v{f}, v{f}, v{f+1}")
        A(f"v_add_f32 v{f+2}, v{f+2}, v{f+3}")
        A(f"v_add_f32 v{f}, v{f}, v{f+2}")
    rnd(hF, hF)
    rnd(hF + 4, hF + 4)
    A(f"v_mul_f32 v{hF+1}, 0xbfb8aa3b, v{hF}")
    A(f"v_exp_f32 v{hF+1}, v{hF+1}")
    A(f"v_add_f32 v{hF+1}, 1.0, v{hF+1}")
    A(f"v_rcp_f32 v{hF+1}, v{hF+1}")
    A(f"v_mul_f32 v{hF}, v{hF}, v{hF+1}")
    rnd(hF, hF)
    A(f"v_mul_f32 v{hF}, v{hF}, v{hF+4}")
    A(f"v_cvt_pk_bf16_f32 v{hF}, v{hF}, v{hF}")
    A(f"ds_write_b16 v{fAW}, v{hF} offset:{L_OL}")
    A("s_waitcnt lgkmcnt(0)")
    A.label("L_noact")
    if fast2:
        A(f"v_and_b32 v{hT}, 16, v0")
        A(f"v_cmp_ne_u32 s[34:35], 0, v{hT}")
        A("v_cmp_lt_u32 s[38:39], 31, v0")
        A(f"v_lshrrev_b32 v{hT}, 5, v0")
        A(f"v_lshl_add_u32 v{hGO}, v{hT}, 9, v{hGO}")
        for p in range(5):
            A(f"v_mov_b32 v{fD+4*p+2}, v{hNC}")
            A(f"v_mov_b32 v{fD+4*p+3}, v{hNC+1}")
    A("s_barrier")
    for t in range(3):
        A(f"ds_read_b64 v[{fA+2*t}:{fA+2*t+1}], v{fA2} offset:{L_OL+32*t}")
    if fast2:
        fO = fD
        A("s_waitcnt lgkmcnt(0)")

        def pair_store(p):
            ta, tb, o = fD2 + 8 * p, fD2 + 8 * p + 4, fO + 4 * p
            for e in range(2):
                A(f"v_cndmask_b32 v{ta+e}, v{ta+e}, v{ta+2+e}, s[34:35]")
                A(f"v_cndmask_b32 v{tb+e}, v{tb+e}, v{tb+2+e}, s[34:35]")
                A(f"v_cndmask_b32 v{o+e}, v{ta+e}, v{tb+e}, s[38:39]")
            A(f"buffer_store_dwordx4 v[{o}:{o+3}], v{hGO}, {S_WS}, {'s32' if p < 4 else 's33'} offen offset:{1024*(p&3)} sc1")
        for nt in range(10):
            for t in range(3):
                r = fWD + 2 * (nt * 3 + t)
                c = "0" if t == 0 else f"v[{fD2+4*nt}:{fD2+4*nt+3}]"
                A(f"v_mfma_f32_16x16x16_bf16 v[{fD2+4*nt}:{fD2+4*nt+3}], v[{fA+2*t}:{fA+2*t+1}], v[{r}:{r+1}], {c}")
            if nt >= 3 and nt % 2 == 1:
                pair_store((nt - 3) // 2)
        pair_store(4)
    else:
        for t in range(3):
            A(f"s_waitcnt lgkmcnt({2-t})")
            for nt in range(10):
                r = fWD + 2 * (nt * 3 + t)
                c = "0" if t == 0 else f"v[{fD2+4*nt}:{fD2+4*nt+3}]"
                A(f"v_mfma_f32_16x16x16_bf16 v[{fD2+4*nt}:{fD2+4*nt+3}], v[{fA+2*t}:{fA+2*t+1}], v[{r}:{r+1}], {c}")
        A("s_mov_b32 exec_hi, 0")
        for nt in range(10):
            split_halves(fD2 + 4 * nt)
            A(f"buffer_store_dwordx4 v[{fD2+4*nt}:{fD2+4*nt+3}], v{hGO}, {S_WS}, {'s32' if nt < 8 else 's33'} offen offset:{512*(nt&7)} sc1")
        A("s_mov_b32 exec_hi, -1")
    if pads:
        A.pads_end("L_padret_ffn")
    stamp(5)
    A.label("L_h_end")
    stamp(7)
    stamp_flush(32)
    A.label("L_end")
    A("s_endpgm")
    s = wrap(A.text(), HEADER + DOC, 256, 512, LDS_BYTES, 256, 102)
    s = s.replace("  .amdhsa_group_segment_fixed_size 0\n", "  .amdhsa_group_segment_fixed_size 0\n  .amdhsa_float_denorm_mode_32 3\n")
    return s


if __name__ == "__main__":
    kw = eval("dict(%s)" % (sys.argv[2] if len(sys.argv) > 2 else ""))
    open(sys.argv[1], "w").write(gen(**kw))
```

```python
import sys
sys.path.insert(0, "work")
from asmlib import *

HEADER = open("sequential_preLN__gqa_block_cached__swiglu_ffn__decode.s.ref").read().split("; Override launch")[0]
DOC = """; One persistent launch, 256 workgroups x 8 waves (one workgroup per CU).  G = wg>>3, j = wg&7.
;             fragments in registers and run the tail: j<5 wo block, j>=6 reducers (+residual), j==5 SwiGLU FFN slice.
"""

QP_OFF = 0x000000
OP_OFF = 0x200000
YP_OFF = 0x400000
ZP_OFF = 0x500000
HB_OFF = 0x600000
CT_OFF = 0x610000
ST_OFF = 0x800000
WS_SIZE = 0x1000000
OOB = 0x80000000
TASKB = 4096 * 384

L_STAGE = 0
L_XN = 49152
L_QL = L_XN + 5120
L_OL = L_QL + 1536
L_RED = L_OL + 1536
L_CNT = L_RED + 6144
L_SBUF = L_CNT + 64
C_SYNC0, C_SYNC1, C_QRDY, C_SFREE, C_WSYNC, L_TAG = [L_CNT + x for x in (0, 4, 8, 12, 16, 24)]

LOG2E = "0x3fb8aa3b"
SCALE = "0x3d93cd3a"
EPS = "0x3727c5ac"
INV640 = "0x3acccccd"
F640 = "0x44200000"

S_WS, S_K, S_V, S_X, S_WQ, S_DBG, S_WO, S_WG, S_WU, S_WD, S_OUT = [f"s[{28+4*i}:{31+4*i}]" for i in range(11)]
sG, sJ, sB, sH = "s72", "s73", "s74", "s82"
DPP = "row_mask:0xf bank_mask:0xf"


def gen(D=2, S0=56, XF=16, PACE=2, NL=4, stamps=False, spin_g=200000, spin_l=4000000, prio=True, psleep=1, qsleep=2,
        mix=True, nocompute=False, noweights=False, noqx=False, touch_op=False, touch_y=False, selpoll=True, ln1=True, satom=True, early=True, warm=True, fast2=True, pads=0, tk1=False, HS=0, opc=True, ypc=True, np4=True, qdelay=2):
    NS = 8
    E = NS - D
    NL1 = min(NL, 4)
    assert NL <= 6
    LDS_BYTES = L_SBUF + 4 * 4 * 6144
    assert LDS_BYTES <= 163840
    NB = E + NL
    R0 = D * (1 + -(-NB // (2 * D)))
    assert (S0 - NS - NL) % D == 0
    nA = (S0 - NS - NL - R0) // D - 1
    POOL = 512 - 8 * S0 + XF
    assert XF % D == 0 and XF // D < nA and NL <= E
    A = Asm()

    def srd(name, ptr_lo, size, add=None):
        r = int(name[2:name.index(":")])
        if add is None:
            A(f"s_mov_b32 s{r}, s{ptr_lo}")
            A(f"s_mov_b32 s{r+1}, s{ptr_lo+1}")
        else:
            A(f"s_add_u32 s{r}, s{ptr_lo}, {add}")
            A(f"s_addc_u32 s{r+1}, s{ptr_lo+1}, 0")
        A(f"s_mov_b32 s{r+2}, {size}")
        A(f"s_mov_b32 s{r+3}, 0x20000")

    def stamp(k, which="main"):
        if stamps and (which == stamps or (which == "main" and stamps is True) or k == 0):
            A(f"s_memrealtime s[{84+2*k}:{85+2*k}]")

    def stamp_flush(vt):
        if not stamps:
            return
        A("s_waitcnt lgkmcnt(0)")
        for k in range(16):
            A(f"v_mov_b32 v{vt+k}, s{84+k}")
        A("s_lshl_b32 s81, s2, 3")
        A("s_add_u32 s81, s81, s3")
        A("s_lshl_b32 s81, s81, 6")
        A(f"s_add_u32 s81, s81, {ST_OFF}")
        A(f"v_mov_b32 v{vt+16}, 0")
        A("s_mov_b64 exec, 1")
        for k in range(4):
            A(f"buffer_store_dwordx4 v[{vt+4*k}:{vt+4*k+3}], v{vt+16}, {S_WS}, s81 offen offset:{16*k}")
        A("s_mov_b64 exec, -1")

    def allred16_32(op, x, t):
        A(f"v_mov_b32 v{t}, v{x}")
        A(f"v_permlane16_swap_b32 v{x}, v{t}")
        A(f"{op} v{x}, v{x}, v{t}")
        A(f"v_mov_b32 v{t}, v{x}")
        A(f"v_permlane32_swap_b32 v{x}, v{t}")
        A(f"{op} v{x}, v{x}, v{t}")

    def allred64(op, x, t):
        for pat in ("quad_perm:[1,0,3,2]", "quad_perm:[2,3,0,1]", "row_ror:4", "row_ror:8"):
            A(f"{op}_dpp v{x}, v{x}, v{x} {pat} {DPP}")
        allred16_32(op, x, t)

    def rnd(dst, src):
        A(f"v_cvt_pk_bf16_f32 v{dst}, v{src}, v{src}")
        A(f"v_lshlrev_b32 v{dst}, 16, v{dst}")

    def div640(x, t0, t1):
        A(f"v_mul_f32 v{t0}, {INV640}, v{x}")
        A(f"v_fma_f32 v{t1}, -v{t0}, s80, v{x}")
        A(f"v_mul_f32 v{t1}, {INV640}, v{t1}")
        A(f"v_add_f32 v{x}, v{t0}, v{t1}")

    def layernorm(src, dst, f, t):
        A(f"s_mov_b32 s80, {F640}")
        for u in range(5):
            A(f"v_lshlrev_b32 v{f+2*u}, 16, v{src[u]}")
            A(f"v_and_b32 v{f+2*u+1}, 0xffff0000, v{src[u]}")
        A(f"v_add_f32 v{t}, v{f}, v{f+1}")
        A(f"v_add_f32 v{t+1}, v{f+2}, v{f+3}")
        A(f"v_add_f32 v{t+2}, v{f+4}, v{f+5}")
        A(f"v_add_f32 v{t+3}, v{f+6}, v{f+7}")
        A(f"v_add_f32 v{t+4}, v{f+8}, v{f+9}")
        A(f"v_add_f32 v{t}, v{t}, v{t+1}")
        A(f"v_add_f32 v{t+2}, v{t+2}, v{t+3}")
        A(f"v_add_f32 v{t}, v{t}, v{t+4}")
        A(f"v_add_f32 v{t}, v{t}, v{t+2}")
        if ln1:
            A(f"v_readfirstlane_b32 s79, v{f}")
            A(f"v_subrev_f32 v{t+2}, s79, v{f}")
            A(f"v_mul_f32 v{t+1}, v{t+2}, v{t+2}")
            for i in range(1, 10):
                A(f"v_subrev_f32 v{t+2+(i&1)}, s79, v{f+i}")
                A(f"v_fmac_f32 v{t+1}, v{t+2+(i&1)}, v{t+2+(i&1)}")
            for pat in ("quad_perm:[1,0,3,2]", "quad_perm:[2,3,0,1]", "row_ror:4", "row_ror:8"):
                for x in (t, t + 1):
                    A(f"v_add_f32_dpp v{x}, v{x}, v{x} {pat} {DPP}")
            for sw in ("v_permlane16_swap_b32", "v_permlane32_swap_b32"):
                for x in (t, t + 1):
                    A(f"v_mov_b32 v{x+2}, v{x}")
                for x in (t, t + 1):
                    A(f"{sw} v{x}, v{x+2}")
                for x in (t, t + 1):
                    A(f"v_add_f32 v{x}, v{x}, v{x+2}")
            div640(t, t + 2, t + 3)
            div640(t + 1, t + 4, t + 5)
            A(f"v_subrev_f32 v{t+2}, s79, v{t}")
            A(f"v_fma_f32 v{t+1}, -v{t+2}, v{t+2}, v{t+1}")
            A(f"v_max_f32 v{t+1}, 0, v{t+1}")
        else:
            allred64("v_add_f32", t, t + 1)
            div640(t, t + 1, t + 2)
            A(f"v_sub_f32 v{t+2}, v{f}, v{t}")
            A(f"v_mul_f32 v{t+1}, v{t+2}, v{t+2}")
            for i in range(1, 10):
                A(f"v_sub_f32 v{t+2+(i&1)}, v{f+i}, v{t}")
                A(f"v_fmac_f32 v{t+1}, v{t+2+(i&1)}, v{t+2+(i&1)}")
            allred64("v_add_f32", t + 1, t + 2)
            div640(t + 1, t + 2, t + 3)
        rnd(t, t)
        rnd(t + 1, t + 1)
        A(f"v_add_f32 v{t+1}, {EPS}, v{t+1}")
        rnd(t + 1, t + 1)
        A(f"v_sqrt_f32 v{t+1}, v{t+1}")
        rnd(t + 1, t + 1)
        A(f"v_rcp_f32 v{t+2}, v{t+1}")
        for u in range(5):
            a, b = f + 2 * u, f + 2 * u + 1
            A(f"v_sub_f32 v{a}, v{a}, v{t}")
            A(f"v_sub_f32 v{b}, v{b}, v{t}")
            A(f"v_cvt_pk_bf16_f32 v{b}, v{a}, v{b}")
            A(f"v_lshlrev_b32 v{a}, 16, v{b}")
            A(f"v_and_b32 v{b}, 0xffff0000, v{b}")
            A(f"v_mul_f32 v{t+3}, v{a}, v{t+2}")
            A(f"v_mul_f32 v{t+4}, v{b}, v{t+2}")
            A(f"v_fma_f32 v{a}, -v{t+3}, v{t+1}, v{a}")
            A(f"v_fma_f32 v{b}, -v{t+4}, v{t+1}, v{b}")
            A(f"v_fmac_f32 v{t+3}, v{a}, v{t+2}")
            A(f"v_fmac_f32 v{t+4}, v{b}, v{t+2}")
            A(f"v_cvt_pk_bf16_f32 v{dst+u}, v{t+3}, v{t+4}")

    def poll_tagged(loads, tagpairs, tag, tmp, sleep=0, mask=None):
        Lp, Ld = A.newlabel("L_poll"), A.newlabel("L_pdone")
        A(f"s_mov_b32 s81, {spin_g}")
        if mask is not None:
            A(f"s_mov_b64 exec, {mask}")
        A.label(Lp)
        for l in loads:
            A(l)
        A("s_waitcnt vmcnt(0)")
        if len(tagpairs) == 1:
            r = tagpairs[0]
            A(f"v_cmp_ne_u64 vcc, v[{r}:{r+1}], v[{tag}:{tag+1}]")
        else:
            for i, r in enumerate(tagpairs):
                if i == 0:
                    A(f"v_xor_b32 v{tmp}, v{r}, v{tag}")
                    A(f"v_xor_b32 v{tmp+1}, v{r+1}, v{tag+1}")
                else:
                    A(f"v_xor_b32 v{tmp+2}, v{r}, v{tag}")
                    A(f"v_xor_b32 v{tmp+3}, v{r+1}, v{tag+1}")
                    A(f"v_or3_b32 v{tmp+(i&1)}, v{tmp+(i&1)}, v{tmp+2}, v{tmp+3}")
            A(f"v_or_b32 v{tmp}, v{tmp}, v{tmp+1}")
            A(f"v_cmp_ne_u32 vcc, 0, v{tmp}")
        A(f"s_cbranch_vccz {Ld}")
        if sleep:
            A(f"s_sleep {sleep}")
        A("s_sub_u32 s81, s81, 1")
        A("s_cmp_lg_u32 s81, 0")
        A(f"s_cbranch_scc1 {Lp}")
        A.label(Ld)
        if mask is not None:
            A("s_mov_b64 exec, -1")

    def poll_sel(groups, tag, sleep=0):
        Lp, Ld = A.newlabel("L_poll"), A.newlabel("L_pdone")
        A.pads_pause(True)
        A(f"s_mov_b32 s81, {spin_g}")
        for loads, _ in groups:
            for l in loads:
                A(l)
        A.label(Lp)
        A("s_waitcnt vmcnt(0)")
        for i, (_, pairs) in enumerate(groups):
            m = f"s[{4+2*i}:{5+2*i}]"
            for k, r in enumerate(pairs):
                if k == 0:
                    A(f"v_cmp_ne_u64 {m}, v[{r}:{r+1}], v[{tag}:{tag+1}]")
                else:
                    A(f"v_cmp_ne_u64 vcc, v[{r}:{r+1}], v[{tag}:{tag+1}]")
                    A(f"s_or_b64 {m}, {m}, vcc")
        A("s_or_b64 s[38:39], s[4:5], s[6:7]")
        for i in range(2, len(groups)):
            A(f"s_or_b64 s[38:39], s[38:39], s[{4+2*i}:{5+2*i}]")
        A(f"s_cbranch_scc0 {Ld}")
        if sleep:
            A(f"s_sleep {sleep}")
        for i, (loads, _) in enumerate(groups):
            A(f"s_mov_b64 exec, s[{4+2*i}:{5+2*i}]")
            for l in loads:
                A(l)
        A("s_mov_b64 exec, -1")
        A("s_sub_u32 s81, s81, 1")
        A("s_cmp_lg_u32 s81, 0")
        A(f"s_cbranch_scc1 {Lp}")
        A("s_waitcnt vmcnt(0)")
        A.label(Ld)
        A.pads_pause(False)

    def lds_wait(addr_v, val_v, off, target, sleep=1):
        Lp, Ld = A.newlabel("L_lw"), A.newlabel("L_lwd")
        A(f"s_mov_b32 s81, {spin_l}")
        A.label(Lp)
        A(f"ds_read_b32 v{val_v}, v{addr_v} offset:{off}")
        A("s_waitcnt lgkmcnt(0)")
        A(f"v_readfirstlane_b32 s79, v{val_v}")
        A(f"s_cmp_ge_u32 s79, {target}")
        A(f"s_cbranch_scc1 {Ld}")
        A(f"s_sleep {sleep}")
        A("s_sub_u32 s81, s81, 1")
        A("s_cmp_lg_u32 s81, 0")
        A(f"s_cbranch_scc1 {Lp}")
        A.label(Ld)

    def lds_inc(zero_v, one_v, off):
        A("s_mov_b64 exec, 1")
        A(f"ds_add_u32 v{zero_v}, v{one_v} offset:{off}")
        A("s_mov_b64 exec, -1")

    A("s_cmp_ge_u32 s2, 256")
    A("s_cbranch_scc1 L_end")
    A("s_load_dwordx16 s[4:19], s[0:1], 0")
    A("s_load_dwordx8 s[20:27], s[0:1], 64")
    A("v_lshrrev_b32 v1, 6, v0")
    A("v_and_b32 v0, 63, v0")
    A("v_readfirstlane_b32 s3, v1")
    A(f"s_lshr_b32 {sG}, s2, 3")
    A(f"s_and_b32 {sJ}, s2, 7")
    A(f"s_and_b32 {sB}, s3, 3")
    if mix:
        A(f"s_mul_i32 {sH}, {sB}, {sJ}")
        A(f"s_add_u32 {sH}, {sH}, {sG}")
        A(f"s_and_b32 {sH}, {sH}, 31")
    else:
        A(f"s_mov_b32 {sH}, {sG}")
    if stamps:
        for k in range(16):
            A(f"s_mov_b32 s{84+k}, 0")
    A("s_cmp_lt_u32 s3, 4")
    A("s_cbranch_scc1 L_helper")

    vOFF, vZ = 1, 2
    T = 3
    vTAG = 8
    vM, vL = 11, 12
    vAL, vP = 14, 16
    vU = 18
    vLB = 22
    vQ = 24
    vACC = 36
    vTK = 60
    vSLOT = 64
    sOFF, sCT, sOP = "s75", "s76", "s83"
    sSL = 60

    kreg = lambda slot, i: vSLOT + slot * 24 + 4 * i
    vreg = lambda slot, i: vSLOT + slot * 24 + 12 + 4 * i
    vmq = []

    def vwait(tag, first=False):
        idx = [k for k, t in enumerate(vmq) if t == tag]
        if not idx:
            return
        i = idx[2] if first else idx[-1]
        n = len(vmq) - 1 - i
        assert n <= 63
        A(f"s_waitcnt vmcnt({n})")
        del vmq[:i + 1]

    def issueK(slot, soff):
        for i in range(3):
            r = kreg(slot, i)
            A(f"buffer_load_dwordx4 v[{r}:{r+3}], v{vOFF}, {S_K}, {soff} offen offset:{128*i} nt")
            vmq.append(("K", slot))

    def issueV(slot, soff):
        for i in range(3):
            r = vreg(slot, i)
            A(f"buffer_load_dwordx4 v[{r}:{r+3}], v{vOFF}, {S_V}, {soff} offen offset:{128*i} nt")
            vmq.append(("V", slot))

    def atomic(slot):
        A(f"v_mov_b32 v{vTK+slot}, 1")
        A("s_mov_b64 exec, 1")
        A(f"buffer_atomic_add v{vTK+slot}, v{vZ}, {S_WS}, {sCT} offen sc0")
        A("s_mov_b64 exec, -1")
        vmq.append(("T", slot))

    def consumeK(slot, mid=None):
        t0, t1, t2, t3, t4 = T, T + 1, T + 2, T + 3, T + 4
        k = kreg(slot, 0)
        if nocompute:
            for e in range(0, 12, 4):
                A(f"v_xor_b32 v{vL}, v{vL}, v{k+e}")
            if mid:
                mid()
            return
        for e in range(6):
            A(f"v_dot2_f32_bf16 v{t0}, v{k+e}, v{vQ+e}, " + ("0" if e == 0 else f"v{t0}"))
            A(f"v_dot2_f32_bf16 v{t1}, v{k+6+e}, v{vQ+6+e}, " + ("0" if e == 0 else f"v{t1}"))
        if mid:
            mid()
        A(f"v_add_f32 v{t0}, v{t0}, v{t1}")
        A(f"v_add_f32_dpp v{t0}, v{t0}, v{t0} quad_perm:[1,0,3,2] {DPP}")
        A(f"v_add_f32_dpp v{t0}, v{t0}, v{t0} quad_perm:[2,3,0,1] {DPP}")
        A(f"v_add_f32_dpp v{t0}, v{t0}, v{t0} row_half_mirror {DPP}")
        rnd(t1, t0)
        A(f"v_mul_f32 v{t1}, {SCALE}, v{t1}")
        rnd(t1, t1)
        A(f"v_max_f32 v{t2}, v{vM}, v{t1}")
        A(f"v_sub_f32 v{t3}, v{vM}, v{t2}")
        A(f"v_sub_f32 v{t4}, v{t1}, v{t2}")
        A(f"v_mul_f32 v{t3}, {LOG2E}, v{t3}")
        A(f"v_mul_f32 v{t4}, {LOG2E}, v{t4}")
        A(f"v_exp_f32 v{vAL}, v{t3}")
        A(f"v_exp_f32 v{vP}, v{t4}")
        A(f"v_mov_b32 v{vM}, v{t2}")
        A(f"v_fma_f32 v{vL}, v{vL}, v{vAL}, v{vP}")
        for a in range(12):
            r = vACC + 2 * a
            A(f"v_pk_mul_f32 v[{r}:{r+1}], v[{r}:{r+1}], v[{vAL}:{vAL+1}] op_sel_hi:[1,0]")

    def consumeV(slot):
        v = vreg(slot, 0)
        if nocompute:
            for e in range(0, 12, 4):
                A(f"v_xor_b32 v{vL}, v{vL}, v{v+e}")
            return
        for a in range(12):
            u = vU + 2 * (a & 1)
            r = vACC + 2 * a
            A(f"v_lshlrev_b32 v{u}, 16, v{v+a}")
            A(f"v_and_b32 v{u+1}, 0xffff0000, v{v+a}")
            A(f"v_pk_fma_f32 v[{r}:{r+1}], v[{u}:{u+1}], v[{vP}:{vP+1}], v[{r}:{r+1}] op_sel_hi:[1,0,1]")

    stamp(0)
    A(f"v_lshrrev_b32 v{T}, 3, v0")
    A(f"v_mul_u32_u24 v{T}, 384, v{T}")
    A(f"v_and_b32 v{T+1}, 7, v0")
    A(f"v_lshl_add_u32 v{vOFF}, v{T+1}, 4, v{T}")
    A(f"s_lshl_b32 s77, {sB}, 5")
    A(f"s_add_u32 s77, s77, {sH}")
    A(f"s_mul_i32 s78, s77, {TASKB}")
    A(f"s_mul_i32 {sOFF}, {sJ}, 3072")
    A("s_waitcnt lgkmcnt(0)")
    srd(S_K, 6, TASKB, "s78")
    srd(S_V, 8, TASKB, "s78")

    def s_setup():
        A(f"v_mov_b32 v{vZ}, 0")
        A(f"s_lshl_b32 {sCT}, s77, 8")
        A(f"s_add_u32 {sCT}, {sCT}, {CT_OFF}")
        A(f"s_lshl_b32 {sOP}, s77, 3")
        A(f"s_add_u32 {sOP}, {sOP}, {sJ}")
        A(f"s_lshl_b32 {sOP}, {sOP}, 11")
        A(f"s_add_u32 {sOP}, {sOP}, {OP_OFF}")
        A(f"s_mul_i32 s77, {sB}, {4*6144}")
        A(f"s_add_u32 s77, s77, {L_SBUF}")
        A(f"s_mul_i32 s80, {sB}, 12288")
        A(f"v_lshlrev_b32 v{vLB+1}, 4, v0")
        A(f"v_add_u32 v{vLB}, s77, v{vLB+1}")
        A(f"v_add_u32 v{vLB+1}, s80, v{vLB+1}")
        srd(S_WS, 26, WS_SIZE)
        A(f"s_add_u32 s66, s26, {sCT}")
        A("s_addc_u32 s67, s27, 0")
        A("s_barrier")
    if not early:
        s_setup()
    last = lambda n: ("V", n) if n < NS else ("L", n - NS)
    for n in range(NS + NL):
        if n >= PACE:
            vwait(last(n - PACE))
            if n - PACE + 2 < 8:
                stamp(n - PACE + 2, "start")
        if n < NS:
            issueK(n, sOFF)
            issueV(n, sOFF)
        else:
            li = n - NS
            if li == (0 if np4 else 4):
                lds_wait(vZ, T, C_SYNC1, 4)
            for kv in range(2):
                for i in range(3):
                    A(f"s_add_u32 m0, {'s77' if li < 4 else 's80'}, {(li&3)*6144 + (3*kv+i)*1024 - 128*i}")
                    A(f"buffer_load_dwordx4 v{vOFF}, {S_K if kv == 0 else S_V}, {sOFF} offen offset:{128*i} nt lds")
                    vmq.append(("L", n - NS))
        A(f"s_add_u32 {sOFF}, {sOFF}, {8*3072}")
        if n == PACE - 1 and early:
            s_setup()
        if n == PACE - 1:
            A(f"v_mov_b32 v{vM}, 0xff7fffff")
            A(f"v_mov_b32 v{vL}, 0")
            for a in range(24):
                A(f"v_mov_b32 v{vACC+a}, 0")
    stamp(1)
    lds_wait(vZ, T, C_QRDY, 4)
    A(f"v_and_b32 v{T}, 7, v0")
    A(f"v_lshlrev_b32 v{T}, 4, v{T}")
    A(f"s_mul_i32 s78, {sB}, 384")
    A(f"v_add_u32 v{T}, s78, v{T}")
    for i in range(3):
        A(f"ds_read_b128 v[{vQ+4*i}:{vQ+4*i+3}], v{T} offset:{L_QL+128*i}")
    A(f"ds_read_b64 v[{vTAG}:{vTAG+1}], v{vZ} offset:{L_TAG}")
    A("s_waitcnt lgkmcnt(0)")
    if touch_op:
        A(f"v_lshlrev_b32 v{T}, 4, v0")
        A(f"buffer_store_dwordx4 v[{vACC}:{vACC+3}], v{T}, {S_WS}, {sOP} offen sc1")
        A(f"buffer_store_dwordx4 v[{vACC}:{vACC+3}], v{T}, {S_WS}, {sOP} offen offset:1024 sc1")
    stamp(2)

    def static_step(slot, with_atomic=False, save=False):
        vwait(("K", slot))

        def mid():
            if with_atomic:
                atomic(slot)
            issueK(slot, sOFF)
        consumeK(slot, mid)
        vwait(("V", slot), first=True)
        consumeV(slot)
        issueV(slot, sOFF)
        if save:
            A(f"s_mov_b32 s{sSL+slot}, {sOFF}")
        A(f"s_add_u32 {sOFF}, {sOFF}, {8*3072}")

    for s in range(D):
        static_step(s)
    backlog = [("reg", D + e) for e in range(E)] + [("lds", i) for i in range(NL)]
    nring = R0 - D
    done = 0
    for r in range(nring + 1):
        upto = len(backlog) if r == nring else (len(backlog) * (r + 1) + nring) // (nring + 1)
        while done < upto:
            kind, x = backlog[done]
            done += 1
            if kind == "reg":
                vwait(("K", x))
                consumeK(x)
                vwait(("V", x))
                consumeV(x)
                i = x - D
                if i < NL:
                    vwait(("L", i))
                    for k in range(6):
                        rr = vSLOT + x * 24 + 4 * k
                        A(f"ds_read_b128 v[{rr}:{rr+3}], v{vLB+(i>>2)} offset:{(i&3)*6144+1024*k}")
            else:
                A("s_waitcnt lgkmcnt(0)")
                if x == 0:
                    pass
                consumeK(D + x)
                consumeV(D + x)
        if r < nring:
            static_step(r % D)
    A(f"v_mov_b32 v{T}, 1")
    lds_inc(vZ, T, C_SFREE)
    A(f"s_cmp_eq_u32 {sJ}, 5")
    A(f"s_cselect_b32 s77, {nA - XF // D}, {nA}")
    A.label("L_loopA")
    shape = list(vmq)
    for s in range(D):
        static_step(s)
    assert vmq == shape, (vmq, shape)
    A("s_sub_u32 s77, s77, 1")
    A("s_cmp_lg_u32 s77, 0")
    A("s_cbranch_scc1 L_loopA")
    def satomic():
        A(f"s_mov_b32 s65, {1 if tk1 else D}")
        A("s_atomic_add s65, s[66:67], 0 glc")

    PF = POOL - HS
    sMK = lambda s: f"s[{40+2*s}:{41+2*s}]"
    if HS:
        A("s_mov_b32 s48, -1")
        A("s_mov_b32 s49, 0")
        A("s_mov_b32 s50, 0")
        A("s_mov_b32 s51, -1")
        for s in range(D):
            A(f"s_mov_b64 {sMK(s)}, -1")
    if not tk1:
        satomic()
    for s in range(D):
        if tk1 and s == D - 1:
            satomic()
        static_step(s, save=True)
    stamp(3)
    A.label("L_loopB")
    shape = list(vmq)
    for s in range(D):
        A(f"s_cmp_ge_u32 s{sSL+s}, {TASKB}")
        A("s_cbranch_scc1 L_s_done")
        if not tk1 and s == 0:
            A("s_waitcnt lgkmcnt(0)")
            A("s_mov_b32 s64, s65")
            satomic()
        if HS:
            A(f"s_mov_b64 exec, {sMK(s)}")
        vwait(("K", s))

        def mid(s=s):
            if tk1:
                A("s_waitcnt lgkmcnt(0)")
                A("s_mov_b32 s78, s65")
                satomic()
            else:
                A(f"s_add_u32 s78, s64, {s}")
            if HS:
                A(f"s_sub_u32 s79, s78, {PF}")
                A("s_bitcmp1_b32 s79, 0")
                A("s_cselect_b64 s[52:53], s[50:51], s[48:49]")
                A("s_lshr_b32 s79, s79, 1")
                A(f"s_add_u32 s79, s79, {PF}")
                A(f"s_cmp_lt_u32 s78, {PF}")
                A("s_cselect_b32 s78, s78, s79")
                A("s_cselect_b64 s[52:53], -1, s[52:53]")
            A(f"s_min_u32 s78, s78, {POOL}")
            A("s_lshl_b32 s79, s78, 3")
            A(f"s_add_u32 s79, s79, {8*(S0-XF)+5}")
            A(f"s_add_u32 s80, s78, {8*S0-XF}")
            A(f"s_cmp_lt_u32 s78, {XF}")
            A("s_cselect_b32 s78, s79, s80")
            A(f"s_mul_i32 s{sSL+s}, s78, 3072")
            if HS:
                A("s_mov_b64 exec, s[52:53]")
            issueK(s, f"s{sSL+s}")
            if HS:
                A(f"s_mov_b64 exec, {sMK(s)}")
        consumeK(s, mid)
        vwait(("V", s), first=True)
        consumeV(s)
        if HS:
            A("s_mov_b64 exec, s[52:53]")
            A(f"s_mov_b64 {sMK(s)}, s[52:53]")
        issueV(s, f"s{sSL+s}")
    assert vmq == shape, (vmq, shape)
    A("s_branch L_loopB")
    A.label("L_s_done")
    A("s_mov_b64 exec, -1")
    stamp(4)
    t0, t1 = T, T + 1
    A(f"v_max_f32_dpp v{t0}, v{vM}, v{vM} row_ror:8 {DPP}")
    allred16_32("v_max_f32", t0, t1)
    A(f"v_sub_f32 v{t1}, v{vM}, v{t0}")
    A(f"v_mul_f32 v{t1}, {LOG2E}, v{t1}")
    A(f"v_exp_f32 v{vAL}, v{t1}")
    A(f"v_mul_f32 v{vL}, v{vL}, v{vAL}")
    for a in range(12):
        r = vACC + 2 * a
        A(f"v_pk_mul_f32 v[{r}:{r+1}], v[{r}:{r+1}], v[{vAL}:{vAL+1}] op_sel_hi:[1,0]")
    A(f"v_add_f32_dpp v{vL}, v{vL}, v{vL} row_ror:8 {DPP}")
    allred16_32("v_add_f32", vL, t1)
    for a in range(12):
        A(f"v_permlane32_swap_b32 v{vACC+a}, v{vACC+12+a}")
    for a in range(12):
        A(f"v_add_f32 v{vACC+a}, v{vACC+a}, v{vACC+12+a}")
    for a in range(6):
        A(f"v_permlane16_swap_b32 v{vACC+a}, v{vACC+6+a}")
    for a in range(6):
        A(f"v_add_f32 v{vACC+a}, v{vACC+a}, v{vACC+6+a}")
    A(f"v_and_b32 v{t1}, 8, v0")
    A(f"v_cmp_ne_u32 vcc, 0, v{t1}")
    if opc:
        O0, O1 = vQ, vQ + 4
        for r in range(3):
            A(f"v_cndmask_b32 v{vU+r}, v{vACC+3+r}, v{vACC+r}, vcc")
            A(f"v_cndmask_b32 v{O0+r}, v{vACC+r}, v{vACC+3+r}, vcc")
        A(f"v_mov_b32 v{O0+3}, v{vTAG}")
        for r in range(3):
            A(f"v_add_f32_dpp v{O0+r}, v{vU+r}, v{O0+r} row_ror:8 {DPP}")
        A(f"v_lshlrev_b32 v{t1}, 4, v0")
        A(f"buffer_store_dwordx4 v[{O0}:{O0+3}], v{t1}, {S_WS}, {sOP} offen sc1")
        A(f"v_mov_b32 v{O1}, v{t0}")
        A(f"v_mov_b32 v{O1+1}, v{vL}")
        A(f"v_mov_b32 v{O1+2}, v{vTAG}")
        A(f"v_mov_b32 v{O1+3}, v{vTAG+1}")
        A("s_mov_b64 exec, 1")
        A(f"buffer_store_dwordx4 v[{O1}:{O1+3}], v{t1}, {S_WS}, {sOP} offen offset:1024 sc1")
        A("s_mov_b64 exec, -1")
    else:
        O0, O1 = vQ, vQ + 4
        dst = [O0, O0 + 1, O1]
        for r in range(3):
            A(f"v_cndmask_b32 v{vU+r}, v{vACC+3+r}, v{vACC+r}, vcc")
            A(f"v_cndmask_b32 v{dst[r]}, v{vACC+r}, v{vACC+3+r}, vcc")
        A(f"v_and_b32 v{t1}, 1, v0")
        A(f"v_cmp_ne_u32 vcc, 0, v{t1}")
        for r in range(3):
            A(f"v_add_f32_dpp v{dst[r]}, v{vU+r}, v{dst[r]} row_ror:8 {DPP}")
        A(f"v_cndmask_b32 v{O1+1}, v{t0}, v{vL}, vcc")
        for o in (O0, O1):
            A(f"v_mov_b32 v{o+2}, v{vTAG}")
            A(f"v_mov_b32 v{o+3}, v{vTAG+1}")
        A(f"v_lshlrev_b32 v{t1}, 4, v0")
        A(f"buffer_store_dwordx4 v[{O0}:{O0+3}], v{t1}, {S_WS}, {sOP} offen sc1")
        A(f"buffer_store_dwordx4 v[{O1}:{O1+3}], v{t1}, {S_WS}, {sOP} offen offset:1024 sc1")
    stamp(5)
    A("s_barrier")
    stamp_flush(36)
    A("s_endpgm")

    A.label("L_helper")
    stamp(0)
    if prio:
        A("s_setprio 2")
    hZ, hONE, hL4, hL16 = 1, 2, 3, 4
    hAD = 5
    hX = 8
    hNC = 14
    hF = 16
    hT = 26
    hA = 32
    hD = 80
    hB = 92
    hG = 128
    hW1 = 160
    A(f"v_mov_b32 v{hZ}, 0")
    A(f"v_mov_b32 v{hONE}, 1")
    A(f"v_lshlrev_b32 v{hL4}, 2, v0")
    A(f"v_lshlrev_b32 v{hL16}, 4, v0")
    if np4:
        def get_tag(sfx):
            A(f"s_mov_b32 s81, {spin_g}")
            A.label(f"L_gf_{sfx}")
            A(f"v_readfirstlane_b32 s79, v{hNC}")
            A(f"v_readfirstlane_b32 s80, v{hNC+1}")
            A("s_cmp_eq_u32 s79, 0")
            A("s_cselect_b32 s80, 0, s80")
            A("s_cmp_lg_u32 s80, 0")
            A(f"s_cbranch_scc1 L_gfd_{sfx}")
            A("s_sleep 8")
            A(f"buffer_load_dwordx2 v[{hNC}:{hNC+1}], v{hZ}, {S_DBG}, 0 offen sc1")
            A("s_waitcnt vmcnt(0)")
            A("s_sub_u32 s81, s81, 1")
            A("s_cmp_lg_u32 s81, 0")
            A(f"s_cbranch_scc1 L_gf_{sfx}")
            A.label(f"L_gfd_{sfx}")
        for k in range(4):
            A(f"v_mov_b32 v{hG+k}, 0")
        A(f"ds_write_b128 v{hZ}, v[{hG}:{hG+3}] offset:{L_CNT}")
        A(f"ds_write_b32 v{hZ}, v{hG} offset:{L_CNT+16}")
        A(f"s_bitcmp1_b32 {sJ}, 0")
        A("s_cbranch_scc1 L_q_consumer")
        for i in range(3):
            A(f"v_add_u32 v{hT}, {64*i}, v0")
            A(f"v_mul_u32_u24 v{hT+1}, 2731, v{hT}")
            A(f"v_lshrrev_b32 v{hT+1}, 16, v{hT+1}")
            A(f"v_mul_u32_u24 v{hT+2}, 24, v{hT+1}")
            A(f"v_sub_u32 v{hT}, v{hT}, v{hT+2}")
            A(f"v_mul_u32_u24 v{hT+1}, 12288, v{hT+1}")
            A(f"v_lshl_add_u32 v{hAD+i}, v{hT}, 4, v{hT+1}")
        A("s_mul_i32 s75, s3, 1280")
        A(f"s_mul_i32 s76, {sJ}, {80*12288}")
        A(f"s_mul_i32 s77, {sG}, 384")
        A("s_add_u32 s76, s76, s77")
        A(f"s_mul_i32 s77, s3, {8*12288}")
        A("s_add_u32 s76, s76, s77")
        A("s_mul_i32 s83, s3, 3072")
        A(f"s_add_u32 s83, s83, {L_SBUF}")
        A("s_waitcnt lgkmcnt(0)")
        srd(S_X, 4, 5120)
        srd(S_WQ, 10, 640 * 6144 * 2)
        for u in range(5):
            A(f"buffer_load_dword v{hX+u}, v{hL4}, {S_X}, s75 offen offset:{256*u}")
        for blk in range(5):
            for i in range(3):
                A(f"s_add_u32 m0, s83, {blk*4*3072 + 1024*i}")
                A(f"buffer_load_dwordx4 v{hAD+i}, {S_WQ}, s76 offen nt lds")
            A(f"s_add_u32 s76, s76, {32*12288}")
        srd(S_DBG, 24, 256)
        srd(S_WS, 26, WS_SIZE)
        A("s_lshl_b32 s76, s3, 5")
        A(f"s_add_u32 s76, s76, {sG}")
        A("s_lshl_b32 s76, s76, 8")
        A(f"s_add_u32 s76, s76, {CT_OFF}")
        A(f"s_cmp_eq_u32 {sJ}, 0")
        A(f"s_cselect_b32 s76, s76, {OOB}")
        A("s_mov_b64 exec, 1")
        A(f"buffer_store_dword v{hZ}, v{hZ}, {S_WS}, s76 offen sc1")
        A("s_mov_b64 exec, -1")
        A("s_barrier")
        A("s_waitcnt vmcnt(16)")
        stamp(1, "start")
        layernorm([hX + u for u in range(5)], hX, hF, hT)
        A(f"v_add_u32 v{hAD}, s75, v{hL4}")
        for u in range(5):
            A(f"ds_write_b32 v{hAD}, v{hX+u} offset:{L_XN+256*u}")
        A(f"buffer_load_dwordx2 v[{hNC}:{hNC+1}], v{hZ}, {S_DBG}, 0 offen sc1")
        A(f"v_lshrrev_b32 v{hT}, 4, v0")
        A(f"v_and_b32 v{hT+1}, 3, v0")
        A(f"v_mul_u32_u24 v{hAD}, 1280, v{hT+1}")
        A(f"v_lshl_add_u32 v{hAD}, v{hT}, 4, v{hAD}")
        A(f"s_mul_i32 s77, {sJ}, 160")
        A(f"v_add_u32 v{hAD}, s77, v{hAD}")
        A(f"v_lshlrev_b32 v{hT}, 3, v{hT}")
        A(f"v_bfe_u32 v{hT+2}, v0, 2, 2")
        A(f"v_add_u32 v{hT}, v{hT}, v{hT+2}")
        A(f"v_mul_u32_u24 v{hAD+1}, 384, v{hT}")
        A(f"v_lshl_add_u32 v{hAD+1}, v{hT+1}, 3, v{hAD+1}")
        A("s_mul_i32 s77, s3, 96")
        A(f"s_add_u32 s77, s77, {L_SBUF}")
        A(f"v_add_u32 v{hAD+1}, s77, v{hAD+1}")
        A("s_mul_i32 s77, s3, 192")
        A(f"v_add_u32 v{hAD+2}, s77, v{hL4}")
        A("s_waitcnt vmcnt(2) lgkmcnt(0)")
        stamp(2, "start")
        lds_inc(hZ, hONE, C_SYNC0)
        lds_wait(hZ, hT, C_SYNC0, 4)
        stamp(3, "start")
        for t in range(5):
            A(f"ds_read_b128 v[{hA+4*t}:{hA+4*t+3}], v{hAD} offset:{L_XN+64*t}")
        for t in range(5):
            for tt in range(3):
                for hf in range(2):
                    r = hW1 + 12 * t + 4 * tt + 2 * hf
                    A(f"ds_read_b64_tr_b16 v[{r}:{r+1}], v{hAD+1} offset:{(32*t+4*hf)*384+32*tt}")
        for t in range(5):
            A(f"s_waitcnt lgkmcnt({min(15, 6*(4-t))})")
            for tt in range(3):
                r = hW1 + 12 * t + 4 * tt
                c = "0" if t == 0 else f"v[{hD+4*tt}:{hD+4*tt+3}]"
                A(f"v_mfma_f32_16x16x32_bf16 v[{hD+4*tt}:{hD+4*tt+3}], v[{hA+4*t}:{hA+4*t+3}], v[{r}:{r+3}], {c}")
        A("s_mov_b64 exec, 0xffff")
        for tt in range(3):
            for b in range(4):
                A(f"ds_write_b32 v{hAD+2}, v{hD+4*tt+b} offset:{L_RED+768*b+64*tt}")
        A("s_mov_b64 exec, -1")
        A("s_lshl_b32 s76, s2, 11")
        A("s_lshl_b32 s77, s3, 10")
        A("s_add_u32 s76, s76, s77")
        A("s_mul_i32 s78, s3, 768")
        A(f"v_mul_u32_u24 v{hAD}, 12, v0")
        A(f"v_add_u32 v{hAD}, s78, v{hAD}")
        A("s_waitcnt lgkmcnt(0)")
        lds_inc(hZ, hONE, C_SYNC1)
        lds_wait(hZ, hT, C_SYNC1, 4)
        for e in range(3):
            A(f"ds_read_b32 v{hD+e}, v{hAD} offset:{L_RED+4*e}")
        A("s_waitcnt vmcnt(0)")
        get_tag("p")
        A(f"v_mov_b32 v{hD+3}, v{hNC}")
        A("s_waitcnt lgkmcnt(0)")
        if not noqx:
            A(f"buffer_store_dwordx4 v[{hD}:{hD+3}], v{hL16}, {S_WS}, s76 offen sc1")
        stamp(4, "start")
        A("s_branch L_q_gather")
        A.label("L_q_consumer")
        A("s_waitcnt lgkmcnt(0)")
        srd(S_WS, 26, WS_SIZE)
        srd(S_DBG, 24, 256)
        srd(S_X, 4, 5120)
        srd(S_WQ, 10, 640 * 6144 * 2)
        A("s_lshl_b32 s77, s2, 2")
        A("s_add_u32 s77, s77, s3")
        A("s_cmp_lg_u32 s77, 4")
        A("s_cbranch_scc1 L_notag")
        A("s_memrealtime s[78:79]")
        A("s_waitcnt lgkmcnt(0)")
        A("s_or_b32 s78, s78, 1")
        A("s_or_b32 s79, s79, 0x80000000")
        A(f"v_mov_b32 v{hD}, s78")
        A(f"v_mov_b32 v{hD+1}, s79")
        A(f"v_mov_b32 v{hD+2}, 0")
        A(f"v_mov_b32 v{hD+3}, 0")
        A("s_mov_b64 exec, 1")
        A(f"buffer_atomic_cmpswap_x2 v[{hD}:{hD+3}], v{hZ}, {S_DBG}, 0 offen")
        A("s_mov_b64 exec, -1")
        A.label("L_notag")
        A("s_barrier")
        lds_inc(hZ, hONE, C_SYNC1)
        for k in range(qdelay):
            A("s_sleep 64")
        A(f"buffer_load_dwordx2 v[{hNC}:{hNC+1}], v{hZ}, {S_DBG}, 0 offen sc1")
        A("s_waitcnt vmcnt(0)")
        get_tag("c")
        A.label("L_q_gather")
        srd(S_WO, 12, 6144 * 640 * 2)
        srd(S_WG, 16, 640 * 1536 * 2)
        srd(S_WU, 18, 640 * 1536 * 2)
        srd(S_WD, 20, 1536 * 640 * 2)
        srd(S_OUT, 22, 5120)
        A("s_mov_b64 exec, 1")
        A(f"ds_write_b64 v{hZ}, v[{hNC}:{hNC+1}] offset:{L_TAG}")
        A("s_mov_b64 exec, -1")
        A(f"s_lshl_b32 s76, {sH}, 14")
        A("s_lshl_b32 s77, s3, 10")
        A("s_add_u32 s76, s76, s77")
        for k in range(1, 4):
            A(f"s_add_u32 s{76+k}, s76, {4096*k}")
        A("s_mul_i32 s80, s3, 384")
        A(f"v_mul_u32_u24 v{hAD}, 6, v0")
        A(f"v_add_u32 v{hAD}, s80, v{hAD}")
        stamp(1)
        if not noqx:
            Lp, Ld = A.newlabel("L_poll"), A.newlabel("L_pdone")
            dl = [f"buffer_load_dwordx4 v[{hG+4*u}:{hG+4*u+3}], v{hL16}, {S_WS}, s{76+u} offen sc1" for u in range(4)]
            A(f"s_mov_b32 s81, {spin_g}")
            for l in dl:
                A(l)
            A.label(Lp)
            A("s_waitcnt vmcnt(0)")
            for u in range(4):
                A(f"v_cmp_ne_u32 s[{4+2*u}:{5+2*u}], v{hG+4*u+3}, v{hNC}")
            A("s_or_b64 s[38:39], s[4:5], s[6:7]")
            A("s_or_b64 s[38:39], s[38:39], s[8:9]")
            A("s_or_b64 s[38:39], s[38:39], s[10:11]")
            A(f"s_cbranch_scc0 {Ld}")
            A(f"s_sleep {qsleep}")
            for u, l in enumerate(dl):
                A(f"s_mov_b64 exec, s[{4+2*u}:{5+2*u}]")
                A(l)
            A("s_mov_b64 exec, -1")
            A("s_sub_u32 s81, s81, 1")
            A("s_cmp_lg_u32 s81, 0")
            A(f"s_cbranch_scc1 {Lp}")
            A("s_waitcnt vmcnt(0)")
            A.label(Ld)
            stamp(6, "start")
            for e in range(3):
                A(f"v_add_f32 v{hG+e}, v{hG+e}, v{hG+4+e}")
                A(f"v_add_f32 v{hG+8+e}, v{hG+8+e}, v{hG+12+e}")
            for e in range(3):
                A(f"v_add_f32 v{hG+e}, v{hG+e}, v{hG+8+e}")
        A(f"v_cvt_pk_bf16_f32 v{hG+4}, v{hG}, v{hG+1}")
        A(f"v_cvt_pk_bf16_f32 v{hG+5}, v{hG+2}, v{hG+2}")
        A(f"ds_write_b16 v{hAD}, v{hG+4} offset:{L_QL}")
        A(f"ds_write_b16_d16_hi v{hAD}, v{hG+4} offset:{L_QL+2}")
        A(f"ds_write_b16 v{hAD}, v{hG+5} offset:{L_QL+4}")
        A("s_waitcnt lgkmcnt(0)")
        lds_inc(hZ, hONE, C_QRDY)
    else:
        for i in range(3):
            A(f"v_add_u32 v{hT}, {64*i}, v0")
            A(f"v_mul_u32_u24 v{hT+1}, 2731, v{hT}")
            A(f"v_lshrrev_b32 v{hT+1}, 16, v{hT+1}")
            A(f"v_mul_u32_u24 v{hT+2}, 24, v{hT+1}")
            A(f"v_sub_u32 v{hT}, v{hT}, v{hT+2}")
            A(f"v_mul_u32_u24 v{hT+1}, 12288, v{hT+1}")
            A(f"v_lshl_add_u32 v{hAD+i}, v{hT}, 4, v{hT+1}")
        A("s_mul_i32 s75, s3, 1280")
        A(f"s_mul_i32 s76, {sJ}, {80*12288}")
        A(f"s_mul_i32 s77, {sG}, 384")
        A("s_add_u32 s76, s76, s77")
        A(f"s_mul_i32 s77, s3, {8*12288}")
        A("s_add_u32 s76, s76, s77")
        A("s_mul_i32 s83, s3, 3072")
        A("s_waitcnt lgkmcnt(0)")
        srd(S_X, 4, 5120)
        srd(S_WQ, 10, 640 * 6144 * 2)
        for u in range(5):
            A(f"buffer_load_dword v{hX+u}, v{hL4}, {S_X}, s75 offen offset:{256*u}")
        for blk in range(3):
            if blk == 2:
                A("s_cmp_lt_u32 s3, 2")
                A(f"s_cselect_b32 s76, s76, {OOB}")
            for i in range(3):
                A(f"s_add_u32 m0, s83, {blk*4*3072 + 1024*i}")
                A(f"buffer_load_dwordx4 v{hAD+i}, {S_WQ}, s76 offen nt lds")
            A(f"s_add_u32 s76, s76, {32*12288}")
        srd(S_DBG, 24, 256)
        srd(S_WS, 26, WS_SIZE)
        A("s_add_u32 s77, s2, s3")
        A("s_cmp_lg_u32 s77, 0")
        A("s_cbranch_scc1 L_notag")
        A("s_memrealtime s[78:79]")
        A("s_waitcnt lgkmcnt(0)")
        A("s_or_b32 s78, s78, 1")
        A("s_or_b32 s79, s79, 0x80000000")
        A(f"v_mov_b32 v{hD}, s78")
        A(f"v_mov_b32 v{hD+1}, s79")
        A(f"v_mov_b32 v{hD+2}, 0")
        A(f"v_mov_b32 v{hD+3}, 0")
        A("s_mov_b64 exec, 1")
        A(f"buffer_atomic_cmpswap_x2 v[{hD}:{hD+3}], v{hZ}, {S_DBG}, 0 offen")
        A("s_mov_b64 exec, -1")
        A.label("L_notag")
        A("s_lshl_b32 s76, s3, 5")
        A(f"s_add_u32 s76, s76, {sG}")
        A("s_lshl_b32 s76, s76, 8")
        A(f"s_add_u32 s76, s76, {CT_OFF}")
        A(f"s_cmp_eq_u32 {sJ}, 0")
        A(f"s_cselect_b32 s76, s76, {OOB}")
        A("s_mov_b64 exec, 1")
        A(f"buffer_store_dword v{hZ}, v{hZ}, {S_WS}, s76 offen sc1")
        A("s_mov_b64 exec, -1")
        for k in range(4):
            A(f"v_mov_b32 v{hG+k}, 0")
        A(f"ds_write_b128 v{hZ}, v[{hG}:{hG+3}] offset:{L_CNT}")
        A(f"ds_write_b32 v{hZ}, v{hG} offset:{L_CNT+16}")
        A("s_waitcnt lgkmcnt(0)")
        A("s_barrier")
        srd(S_WO, 12, 6144 * 640 * 2)
        srd(S_WG, 16, 640 * 1536 * 2)
        srd(S_WU, 18, 640 * 1536 * 2)
        srd(S_WD, 20, 1536 * 640 * 2)
        srd(S_OUT, 22, 5120)
        A("s_waitcnt vmcnt(10)")
        stamp(1, "start")
        layernorm([hX + u for u in range(5)], hX, hF, hT)
        A(f"v_add_u32 v{hAD}, s75, v{hL4}")
        for u in range(5):
            A(f"ds_write_b32 v{hAD}, v{hX+u} offset:{L_XN+256*u}")
        A(f"buffer_load_dwordx2 v[{hNC}:{hNC+1}], v{hZ}, {S_DBG}, 0 offen sc1")
        A(f"v_lshrrev_b32 v{hT}, 4, v0")
        A(f"v_and_b32 v{hT+1}, 3, v0")
        A(f"v_mul_u32_u24 v{hAD}, 1280, v{hT+1}")
        A(f"v_lshl_add_u32 v{hAD}, v{hT}, 3, v{hAD}")
        A(f"s_mul_i32 s77, {sJ}, 160")
        A(f"v_add_u32 v{hAD}, s77, v{hAD}")
        A(f"v_bfe_u32 v{hT+2}, v0, 2, 2")
        A(f"v_lshl_add_u32 v{hT+3}, v{hT}, 2, v{hT+2}")
        A(f"v_mul_u32_u24 v{hAD+1}, 384, v{hT+3}")
        A(f"v_lshl_add_u32 v{hAD+1}, v{hT+1}, 3, v{hAD+1}")
        A("s_mul_i32 s77, s3, 96")
        A(f"v_add_u32 v{hAD+1}, s77, v{hAD+1}")
        A("s_mul_i32 s77, s3, 192")
        A(f"v_add_u32 v{hAD+2}, s77, v{hL4}")
        A("s_waitcnt vmcnt(2) lgkmcnt(0)")
        stamp(2, "start")
        lds_inc(hZ, hONE, C_SYNC0)
        lds_wait(hZ, hT, C_SYNC0, 4)
        stamp(3, "start")
        for t in range(5):
            A(f"ds_read_b64 v[{hA+2*t}:{hA+2*t+1}], v{hAD} offset:{L_XN+32*t}")
        for tt in range(3):
            for t in range(5):
                r = hB + 2 * (tt * 5 + t)
                A(f"ds_read_b64_tr_b16 v[{r}:{r+1}], v{hAD+1} offset:{16*384*t+32*tt}")
        for tt in range(3):
            A(f"s_waitcnt lgkmcnt({10-5*tt})")
            for t in range(5):
                r = hB + 2 * (tt * 5 + t)
                c = "0" if t == 0 else f"v[{hD+4*tt}:{hD+4*tt+3}]"
                A(f"v_mfma_f32_16x16x16_bf16 v[{hD+4*tt}:{hD+4*tt+3}], v[{hA+2*t}:{hA+2*t+1}], v[{r}:{r+1}], {c}")
        A("s_mov_b64 exec, 0xffff")
        for tt in range(3):
            for b in range(4):
                A(f"ds_write_b32 v{hAD+2}, v{hD+4*tt+b} offset:{L_RED+768*b+64*tt}")
        A("s_mov_b64 exec, -1")
        A("s_lshl_b32 s76, s2, 12")
        A("s_lshl_b32 s77, s3, 10")
        A("s_add_u32 s76, s76, s77")
        A("s_mul_i32 s78, s3, 768")
        A(f"v_add_u32 v{hAD}, s78, v{hL16}")
        A("s_waitcnt lgkmcnt(0)")
        lds_inc(hZ, hONE, C_SYNC1)
        lds_wait(hZ, hT, C_SYNC1, 4)
        A(f"ds_read_b128 v[{hD}:{hD+3}], v{hAD} offset:{L_RED}")
        A("s_waitcnt lgkmcnt(0)")
        A("s_mov_b32 exec_hi, 0xffff")
        if not noqx:
            A(f"buffer_store_dwordx4 v[{hD}:{hD+3}], v{hL16}, {S_WS}, s76 offen sc1")
        A("s_mov_b32 exec_hi, -1")
        stamp(4, "start")
        A(f"s_lshl_b32 s78, {sH}, 15")
        A("s_add_u32 s78, s78, s77")
        A(f"v_lshlrev_b32 v{hAD+1}, 12, v0")
        A("s_mul_i32 s77, s3, 384")
        A(f"v_lshl_add_u32 v{hAD}, v0, 3, s77")
        A("s_waitcnt vmcnt(0)")
        stamp(5, "start")
        A(f"s_mov_b32 s81, {spin_g}")
        A.label("L_gf")
        A(f"v_readfirstlane_b32 s79, v{hNC}")
        A(f"v_readfirstlane_b32 s80, v{hNC+1}")
        A("s_cmp_eq_u32 s79, 0")
        A("s_cselect_b32 s80, 0, s80")
        A("s_cmp_lg_u32 s80, 0")
        A("s_cbranch_scc1 L_gfd")
        A("s_sleep 2")
        A(f"buffer_load_dwordx2 v[{hNC}:{hNC+1}], v{hZ}, {S_DBG}, 0 offen sc1")
        A("s_waitcnt vmcnt(0)")
        A("s_sub_u32 s81, s81, 1")
        A("s_cmp_lg_u32 s81, 0")
        A("s_cbranch_scc1 L_gf")
        A.label("L_gfd")
        A("s_mov_b64 exec, 1")
        if not noqx:
            A(f"buffer_store_dwordx2 v[{hNC}:{hNC+1}], v{hZ}, {S_WS}, s76 offen offset:768 sc1")
        A(f"ds_write_b64 v{hZ}, v[{hNC}:{hNC+1}] offset:{L_TAG}")
        A("s_mov_b64 exec, -1")
        stamp(1)
        if not noqx:
            poll_tagged([f"buffer_load_dwordx2 v[{hT}:{hT+1}], v{hAD+1}, {S_WS}, s78 offen offset:768 sc1"], [hT], hNC, hT + 2,
                        sleep=qsleep, mask="0xff")
            stamp(6, "start")
            A("s_mov_b32 exec_hi, 0xffff")
            for jj in range(8):
                A(f"buffer_load_dwordx4 v[{hG+4*jj}:{hG+4*jj+3}], v{hL16}, {S_WS}, s78 offen sc1")
                A("s_add_u32 s78, s78, 4096")
            for jj in range(1, 8):
                A(f"s_waitcnt vmcnt({7-jj})")
                for e in range(4):
                    A(f"v_add_f32 v{hG+e}, v{hG+e}, v{hG+4*jj+e}")
        A("s_mov_b32 exec_hi, 0xffff")
        A(f"v_cvt_pk_bf16_f32 v{hG+4}, v{hG}, v{hG+1}")
        A(f"v_cvt_pk_bf16_f32 v{hG+5}, v{hG+2}, v{hG+3}")
        A(f"ds_write_b64 v{hAD}, v[{hG+4}:{hG+5}] offset:{L_QL}")
        A("s_mov_b32 exec_hi, -1")
        A("s_waitcnt lgkmcnt(0)")
        lds_inc(hZ, hONE, C_QRDY)
    stamp(2)
    stamp(7, "start")
    if prio:
        A("s_setprio 0")

    def tr_addr(dst, rowbytes, base, k16=False):
        A(f"v_lshrrev_b32 v{hT}, 4, v0")
        A(f"v_lshlrev_b32 v{hT}, {2 if k16 else 3}, v{hT}")
        A(f"v_bfe_u32 v{hT+1}, v0, 2, 2")
        A(f"v_add_u32 v{hT}, v{hT}, v{hT+1}")
        A(f"v_mul_u32_u24 v{dst}, {rowbytes}, v{hT}")
        A(f"v_and_b32 v{hT+1}, 3, v0")
        A(f"v_lshl_add_u32 v{dst}, v{hT+1}, 3, v{dst}")
        A(f"v_add_u32 v{dst}, {base}, v{dst}")

    def warm_code(l0, l1, tmp):
        if not warm:
            return
        lab = A.newlabel("L_pc")
        A("s_getpc_b64 s[20:21]")
        A.label(lab)
        A(f"s_add_u32 s20, s20, {l0}-{lab}")
        A("s_addc_u32 s21, s21, 0")
        A(f"v_lshlrev_b32 v{tmp}, 7, v0")
        A(f"v_min_u32 v{tmp}, ({l1}-{l0}-4)&~3, v{tmp}")
        A(f"global_load_dword v{tmp}, v{tmp}, s[20:21]")

    def warm_icache(tag):
        if not pads:
            return
        A("s_mov_b64 exec, 0")
        A(f"s_cbranch_execz L_pad0_{tag}")
        A.label(f"L_padret_{tag}")
        A("s_mov_b64 exec, -1")

    def pack24(o, src):
        for i in range(3):
            A(f"v_perm_b32 v{o+i}, v{src+i}, v{src+3}, s{44+i}")

    def set_sel():
        for i in range(3):
            A(f"s_mov_b32 s{44+i}, 0x0706050{3-i}")

    def split_halves(d):
        A(f"v_cndmask_b32 v{d}, v{d}, v{d+2}, s[34:35]")
        A(f"v_cndmask_b32 v{d+1}, v{d+1}, v{d+3}, s[34:35]")
        A(f"v_mov_b32 v{d+2}, v{hNC}")
        A(f"v_mov_b32 v{d+3}, v{hNC+1}")

    hGO = 13
    A(f"v_and_b32 v{hT}, 15, v0")
    A(f"v_lshlrev_b32 v{hGO}, 5, v{hT}")
    A(f"v_and_b32 v{hT}, 16, v0")
    A(f"v_add_u32 v{hGO}, v{hGO}, v{hT}")
    A("v_cmp_lt_u32 s[34:35], 15, v0")
    A("s_mul_i32 s83, s3, 12288")
    A(f"s_cmp_eq_u32 {sJ}, 5")
    A("s_cbranch_scc1 L_role_ffn")
    A(f"s_cmp_gt_u32 {sJ}, 5")
    A("s_cbranch_scc1 L_role_red")

    A(f"s_mul_i32 s32, {sG}, {10240 if ypc else 20480}")
    A(f"s_lshl_b32 s77, {sJ}, {11 if ypc else 12}")
    A("s_add_u32 s32, s32, s77")
    A(f"s_lshl_b32 s77, s3, {9 if ypc else 10}")
    set_sel()
    A("s_add_u32 s32, s32, s77")
    A(f"s_add_u32 s32, s32, {YP_OFF}")
    if touch_y:
        for k in range(4):
            A(f"v_mov_b32 v{hG+k}, 0")
        A(f"buffer_store_dwordx4 v[{hG}:{hG+3}], v{hL16}, {S_WS}, s32 offen sc1")
    if not noweights:
        A(f"v_lshrrev_b32 v{hAD}, 4, v0")
        A(f"v_mul_u32_u24 v{hAD}, 1280, v{hAD}")
        A(f"v_and_b32 v{hT}, 15, v0")
        A(f"v_lshl_add_u32 v{hAD}, v{hT}, 4, v{hAD}")
        A(f"s_mul_i32 s76, {sG}, {192*1280}")
        A(f"s_lshl_b32 s77, {sJ}, 8")
        A("s_add_u32 s76, s76, s77")
        A(f"s_mul_i32 s77, s3, {48*1280}")
        A("s_add_u32 s76, s76, s77")
        if NL > 4:
            lds_wait(hZ, hT, C_SFREE, 4, sleep=16)
        for u in range(12):
            A(f"s_add_u32 m0, s83, {1024*u}")
            A(f"buffer_load_dwordx4 v{hAD}, {S_WO}, s76 offen nt lds")
            A(f"s_add_u32 s76, s76, {4*1280}")
        A("s_lshl_b32 s77, s3, 6")
        tr_addr(hAD + 1, 256, "s77")
        A("s_waitcnt vmcnt(0)")
        lds_inc(hZ, hONE, C_WSYNC)
        lds_wait(hZ, hT, C_WSYNC, 4, sleep=4)
        for tt in range(2):
            for t in range(6):
                for hf in range(2):
                    r = hW1 + 4 * (tt * 6 + t) + 2 * hf
                    A(f"ds_read_b64_tr_b16 v[{r}:{r+1}], v{hAD+1} offset:{(32*t+4*hf)*256+32*tt}")
    hAF, hOD = 122, 124
    A(f"v_and_b32 v{hT}, 3, v0")
    A(f"v_lshrrev_b32 v{hT+1}, 4, v0")
    A(f"v_mul_u32_u24 v{hAF}, 384, v{hT}")
    A(f"v_lshl_add_u32 v{hAF}, v{hT+1}, 4, v{hAF}")
    A(f"v_lshrrev_b32 v{hT}, 3, v0")
    A(f"v_mul_u32_u24 v{hT}, 3, v{hT}")
    A(f"v_and_b32 v{hT+1}, 7, v0")
    A(f"v_lshlrev_b32 v{hT+1}, 4, v{hT+1}")
    A("s_mul_i32 s76, s3, 384")
    A(f"v_add_u32 v{hT+1}, s76, v{hT+1}")
    for r in range(3):
        A(f"v_add_u32 v{hT+2}, {r}, v{hT}")
        A(f"v_lshrrev_b32 v{hT+3}, 3, v{hT+2}")
        A(f"v_lshlrev_b32 v{hT+3}, 7, v{hT+3}")
        A(f"v_and_b32 v{hT+2}, 7, v{hT+2}")
        A(f"v_lshlrev_b32 v{hT+2}, 1, v{hT+2}")
        A(f"v_add3_u32 v{hOD+r}, v{hT+1}, v{hT+2}, v{hT+3}")
    A("s_lshl_b32 s76, s3, 5")
    A(f"s_add_u32 s76, s76, {sG}")
    A("s_lshl_b32 s76, s76, 14")
    A(f"s_add_u32 s76, s76, {OP_OFF}")
    for k in range(1, 4):
        A(f"s_add_u32 s{76+k}, s76, {4096*k}")
    A(f"v_and_b32 v{hT}, 1, v0")
    A(f"v_cmp_ne_u32 s[36:37], 0, v{hT}")
    if opc:
        A(f"v_mov_b32 v{hA+4}, v{hNC}")
        A(f"v_and_b32 v{hA+5}, 7, v0")
        A(f"v_lshlrev_b32 v{hA+5}, 11, v{hA+5}")
    warm_code("L_tail_wo", "L_role_red", hT + 5)
    A("s_waitcnt lgkmcnt(0)")
    warm_icache("wo")
    A("s_barrier")
    A.label("L_tail_wo")
    if pads:
        A.pads_begin("L_pad0_wo", pads)
    stamp(3)
    if opc:
        hML, hTW = hA, hA + 4
        Lp, Ld = A.newlabel("L_poll"), A.newlabel("L_pdone")
        A.pads_pause(True)
        dl = [f"buffer_load_dwordx4 v[{hG+4*jj}:{hG+4*jj+3}], v{hL16}, {S_WS}, s{76+(jj>>1)} offen offset:{2048*(jj&1)} sc1" for jj in range(8)]
        ml = f"buffer_load_dwordx4 v[{hML}:{hML+3}], v{hTW+1}, {S_WS}, s76 offen offset:1024 sc1"
        A(f"s_mov_b32 s81, {spin_g}")
        for l in dl:
            A(l)
        A(ml)
        A.label(Lp)
        A("s_waitcnt vmcnt(0)")
        for jj in range(8):
            A(f"v_cmp_ne_u32 s[{4+2*jj}:{5+2*jj}], v{hG+4*jj+3}, v{hTW}")
        A(f"v_cmp_ne_u64 s[20:21], v[{hML+2}:{hML+3}], v[{hNC}:{hNC+1}]")
        A("s_or_b64 s[38:39], s[4:5], s[6:7]")
        for i in range(2, 9):
            A(f"s_or_b64 s[38:39], s[38:39], s[{4+2*i}:{5+2*i}]")
        A(f"s_cbranch_scc0 {Ld}")
        if psleep:
            A(f"s_sleep {psleep}")
        for i, l in enumerate(dl + [ml]):
            A(f"s_mov_b64 exec, s[{4+2*i}:{5+2*i}]")
            A(l)
        A("s_mov_b64 exec, -1")
        A("s_sub_u32 s81, s81, 1")
        A("s_cmp_lg_u32 s81, 0")
        A(f"s_cbranch_scc1 {Lp}")
        A("s_waitcnt vmcnt(0)")
        A.label(Ld)
        A.pads_pause(False)
        stamp(4)
        A(f"v_max_f32_dpp v{hT}, v{hML}, v{hML} quad_perm:[1,0,3,2] {DPP}")
        A(f"v_max_f32_dpp v{hT}, v{hT}, v{hT} quad_perm:[2,3,0,1] {DPP}")
        A(f"v_max_f32_dpp v{hT}, v{hT}, v{hT} row_half_mirror {DPP}")
        A(f"v_sub_f32 v{hT}, v{hML}, v{hT}")
        A(f"v_mul_f32 v{hT}, {LOG2E}, v{hT}")
        A(f"v_exp_f32 v{hT}, v{hT}")
        A(f"v_mul_f32 v{hT+1}, v{hT}, v{hML+1}")
        A(f"v_add_f32_dpp v{hT+1}, v{hT+1}, v{hT+1} quad_perm:[1,0,3,2] {DPP}")
        A(f"v_add_f32_dpp v{hT+1}, v{hT+1}, v{hT+1} quad_perm:[2,3,0,1] {DPP}")
        A(f"v_add_f32_dpp v{hT+1}, v{hT+1}, v{hT+1} row_half_mirror {DPP}")
        A(f"v_rcp_f32 v{hT+1}, v{hT+1}")
        A(f"v_mul_f32 v{hT}, v{hT}, v{hT+1}")
        for jj in range(8):
            A(f"v_readlane_b32 s{4+jj}, v{hT}, {jj}")
        for r in range(3):
            A(f"v_mul_f32 v{hT+2+r}, s4, v{hG+r}")
        for jj in range(1, 8):
            for r in range(3):
                A(f"v_fmac_f32 v{hT+2+r}, s{4+jj}, v{hG+4*jj+r}")
    else:
        g0 = lambda jj: hG + 4 * jj
        g1 = lambda jj: hA + 4 * jj
        lt = []
        for jj in range(8):
            for k, g in enumerate((g0(jj), g1(jj))):
                lt.append(f"buffer_load_dwordx4 v[{g}:{g+3}], v{hL16}, {S_WS}, s{76+(jj>>1)} offen offset:{2048*(jj&1)+1024*k} sc1")
        if selpoll:
            poll_sel([(lt[2*jj:2*jj+2], [g0(jj) + 2, g1(jj) + 2]) for jj in range(8)], hNC, sleep=psleep)
        else:
            poll_tagged(lt, [g0(jj) + 2 for jj in range(8)] + [g1(jj) + 2 for jj in range(8)], hNC, hT, sleep=psleep)
        stamp(4)
        hMx, hWt = hB, hB + 8
        for jj in range(8):
            A(f"v_mov_b32_dpp v{hMx+jj}, v{g1(jj)+1} quad_perm:[1,0,3,2] {DPP}")
        for jj in range(8):
            A(f"v_cndmask_b32 v{hWt+jj}, v{g1(jj)+1}, v{hMx+jj}, s[36:37]")
            A(f"v_cndmask_b32 v{hMx+jj}, v{hMx+jj}, v{g1(jj)+1}, s[36:37]")
        A(f"v_max3_f32 v{hT}, v{hWt}, v{hWt+1}, v{hWt+2}")
        A(f"v_max3_f32 v{hT+1}, v{hWt+3}, v{hWt+4}, v{hWt+5}")
        A(f"v_max3_f32 v{hT}, v{hT}, v{hWt+6}, v{hWt+7}")
        A(f"v_max_f32 v{hT}, v{hT}, v{hT+1}")
        for jj in range(8):
            A(f"v_sub_f32 v{hWt+jj}, v{hWt+jj}, v{hT}")
        for jj in range(8):
            A(f"v_mul_f32 v{hWt+jj}, {LOG2E}, v{hWt+jj}")
        for jj in range(8):
            A(f"v_exp_f32 v{hWt+jj}, v{hWt+jj}")
        oreg = lambda jj, r: (g0(jj), g0(jj) + 1, g1(jj))[r]
        A(f"v_mul_f32 v{hT+1}, v{hWt}, v{hMx}")
        for r in range(3):
            A(f"v_mul_f32 v{hT+2+r}, v{hWt}, v{oreg(0, r)}")
        for jj in range(1, 8):
            A(f"v_fmac_f32 v{hT+1}, v{hWt+jj}, v{hMx+jj}")
            for r in range(3):
                A(f"v_fmac_f32 v{hT+2+r}, v{hWt+jj}, v{oreg(jj, r)}")
        A(f"v_rcp_f32 v{hT}, v{hT+1}")
        for r in range(3):
            A(f"v_mul_f32 v{hT+2+r}, v{hT+2+r}, v{hT}")
    A(f"v_cvt_pk_bf16_f32 v{hT}, v{hT+2}, v{hT+3}")
    A(f"v_cvt_pk_bf16_f32 v{hT+1}, v{hT+4}, v{hT+4}")
    A(f"ds_write_b16 v{hOD}, v{hT} offset:{L_OL}")
    A(f"ds_write_b16_d16_hi v{hOD+1}, v{hT} offset:{L_OL}")
    A(f"ds_write_b16 v{hOD+2}, v{hT+1} offset:{L_OL}")
    A("s_waitcnt lgkmcnt(0)")
    A("s_barrier")
    for t in range(6):
        A(f"ds_read_b128 v[{hA+4*t}:{hA+4*t+3}], v{hAF} offset:{L_OL+64*t}")
    for t in range(6):
        A(f"s_waitcnt lgkmcnt({5-t})")
        for tt in range(2):
            r = hW1 + 4 * (tt * 6 + t)
            c = "0" if t == 0 else f"v[{hD+4*tt}:{hD+4*tt+3}]"
            A(f"v_mfma_f32_16x16x32_bf16 v[{hD+4*tt}:{hD+4*tt+3}], v[{hA+4*t}:{hA+4*t+3}], v[{r}:{r+3}], {c}")
    A("s_mov_b32 exec_hi, 0")
    if ypc:
        A(f"v_mov_b32 v{hD+11}, v{hNC}")
        for e in range(4):
            A(f"v_cndmask_b32 v{hD+e}, v{hD+e}, v{hD+4+e}, s[34:35]")
        pack24(hD + 8, hD)
        A(f"buffer_store_dwordx4 v[{hD+8}:{hD+11}], v{hL16}, {S_WS}, s32 offen sc1")
    else:
        for tt in range(2):
            split_halves(hD + 4 * tt)
            A(f"buffer_store_dwordx4 v[{hD+4*tt}:{hD+4*tt+3}], v{hGO}, {S_WS}, s32 offen offset:{512*tt} sc1")
    A("s_mov_b32 exec_hi, -1")
    if pads:
        A.pads_end("L_padret_wo")
    stamp(5)
    A("s_branch L_h_end")

    A.label("L_role_red")
    A(f"s_lshl_b32 s33, {sG}, 1")
    A(f"s_add_u32 s33, s33, {sJ}")
    A("s_sub_u32 s33, s33, 6")
    A("s_lshl_b32 s77, s3, 6")
    A("s_add_u32 s33, s33, s77")
    A("s_cmp_ge_u32 s33, 80")
    A("s_cbranch_scc1 L_h_end")
    A("s_lshl_b32 s36, s33, 7")
    A(f"s_add_u32 s36, s36, {HB_OFF}")
    A("s_lshl_b32 s37, s33, 4")
    if touch_y:
        for k in range(4):
            A(f"v_mov_b32 v{hG+k}, 0")
        A("s_mov_b64 exec, 0xff")
        A(f"buffer_store_dwordx4 v[{hG}:{hG+3}], v{hL16}, {S_WS}, s36 offen sc1")
        A("s_mov_b64 exec, -1")
    if ypc:
        hRS = hB
        A(f"v_and_b32 v{hT+2}, 7, v0")
        A(f"v_lshlrev_b32 v{hT+3}, 1, v{hT+2}")
        for bb in range(4):
            A(f"buffer_load_ushort v{hX+bb}, v{hT+3}, {S_X}, s37 offen offset:{1280*bb}")
        A(f"v_and_b32 v{hT+4}, 1, v0")
        A(f"v_cmp_ne_u32 s[34:35], 0, v{hT+4}")
        A(f"v_mul_u32_u24 v{hAD}, 2558, v{hT+4}")
        A(f"v_add_u32 v{hAD}, v{hAD}, v{hT+3}")
        A(f"v_lshlrev_b32 v{hAD+2}, 4, v{hT+2}")
        A(f"v_lshrrev_b32 v{hT+4}, 3, v0")
        A(f"v_mul_u32_u24 v{hAD+1}, 10240, v{hT+4}")
        A(f"v_lshl_add_u32 v{hAD+1}, v{hT+2}, 4, v{hAD+1}")
        A("s_mov_b32 s44, 0x0c040000")
        A("s_mov_b32 s45, 0x07060000")
        A("s_waitcnt vmcnt(0)")
        for bb in range(4):
            A(f"v_lshlrev_b32 v{hRS+bb}, 16, v{hX+bb}")
        warm_code("L_tail_red", "L_role_ffn", hT + 5)
        warm_icache("red")
        A("s_barrier")
        A.label("L_tail_red")
        if pads:
            A.pads_begin("L_pad0_red", pads)
        stamp(3)

        def reduce32c(base_off, st):
            A("s_lshl_b32 s76, s33, 7")
            A(f"s_add_u32 s76, s76, {base_off}")
            for u in range(1, 4):
                A(f"s_add_u32 s{76+u}, s76, {81920*u}")
            Lp, Ld = A.newlabel("L_poll"), A.newlabel("L_pdone")
            A.pads_pause(True)
            dl = [f"buffer_load_dwordx4 v[{hG+4*u}:{hG+4*u+3}], v{hAD+1}, {S_WS}, s{76+u} offen sc1" for u in range(4)]
            A(f"s_mov_b32 s81, {spin_g}")
            for l in dl:
                A(l)
            A.label(Lp)
            A("s_waitcnt vmcnt(0)")
            for u in range(4):
                A(f"v_cmp_ne_u32 s[{4+2*u}:{5+2*u}], v{hG+4*u+3}, v{hNC}")
            A("s_or_b64 s[38:39], s[4:5], s[6:7]")
            A("s_or_b64 s[38:39], s[38:39], s[8:9]")
            A("s_or_b64 s[38:39], s[38:39], s[10:11]")
            A(f"s_cbranch_scc0 {Ld}")
            if psleep:
                A(f"s_sleep {psleep}")
            for u, l in enumerate(dl):
                A(f"s_mov_b64 exec, s[{4+2*u}:{5+2*u}]")
                A(l)
            A("s_mov_b64 exec, -1")
            A("s_sub_u32 s81, s81, 1")
            A("s_cmp_lg_u32 s81, 0")
            A(f"s_cbranch_scc1 {Lp}")
            A("s_waitcnt vmcnt(0)")
            A.label(Ld)
            A.pads_pause(False)
            stamp(st)
            for u in range(4):
                g = hG + 4 * u
                A(f"v_lshlrev_b32 v{hT}, 24, v{g}")
                A(f"v_and_b32 v{hT+1}, 0xff, v{g+1}")
                A(f"v_lshl_or_b32 v{hT}, v{hT+1}, 16, v{hT}")
                A(f"v_and_b32 v{hT+1}, 0xff, v{g+2}")
                A(f"v_lshl_or_b32 v{g+3}, v{hT+1}, 8, v{hT}")
                for e in range(3):
                    A(f"v_and_b32 v{g+e}, 0xffffff00, v{g+e}")
            for e in range(4):
                A(f"v_add_f32 v{hG+e}, v{hG+e}, v{hG+4+e}")
                A(f"v_add_f32 v{hG+8+e}, v{hG+8+e}, v{hG+12+e}")
            for e in range(4):
                A(f"v_add_f32 v{hG+e}, v{hG+e}, v{hG+8+e}")
            for e in range(4):
                A(f"v_add_f32_dpp v{hG+e}, v{hG+e}, v{hG+e} row_ror:8 {DPP}")
            for sw in ("v_permlane16_swap_b32", "v_permlane32_swap_b32"):
                for e in range(4):
                    A(f"v_mov_b32 v{hG+4+e}, v{hG+e}")
                for e in range(4):
                    A(f"{sw} v{hG+e}, v{hG+4+e}")
                for e in range(4):
                    A(f"v_add_f32 v{hG+e}, v{hG+e}, v{hG+4+e}")
            for p_ in range(2):
                A(f"v_cvt_pk_bf16_f32 v{hG+4+p_}, v{hG+2*p_}, v{hG+2*p_+1}")
            for p_ in range(2):
                A(f"v_lshlrev_b32 v{hG+2*p_}, 16, v{hG+4+p_}")
                A(f"v_and_b32 v{hG+2*p_+1}, 0xffff0000, v{hG+4+p_}")
            for e in range(4):
                A(f"v_add_f32 v{hG+e}, v{hG+e}, v{hRS+e}")
            for p_ in range(2):
                A(f"v_cvt_pk_bf16_f32 v{hG+4+p_}, v{hG+2*p_}, v{hG+2*p_+1}")
            for p_ in range(2):
                A(f"v_lshlrev_b32 v{hRS+2*p_}, 16, v{hG+4+p_}")
                A(f"v_and_b32 v{hRS+2*p_+1}, 0xffff0000, v{hG+4+p_}")
            A(f"v_cndmask_b32 v{hG+6}, v{hG+5}, v{hG+4}, s[34:35]")
            A(f"v_cndmask_b32 v{hG+7}, v{hG+4}, v{hG+5}, s[34:35]")
            A(f"v_mov_b32_dpp v{hG+6}, v{hG+6} quad_perm:[1,0,3,2] {DPP}")
            A(f"v_cndmask_b32 v{hG+4}, v{hG+7}, v{hG+6}, s[34:35]")
            A(f"v_cndmask_b32 v{hG+5}, v{hG+6}, v{hG+7}, s[34:35]")
            A(f"v_and_b32 v{hD}, 0xffff, v{hG+4}")
            A(f"v_lshl_or_b32 v{hD}, v{hG+5}, 16, v{hD}")
            A(f"v_and_b32 v{hG+5}, 0xffff0000, v{hG+5}")
            A(f"v_lshrrev_b32 v{hD+1}, 16, v{hG+4}")
            A(f"v_or_b32 v{hD+1}, v{hD+1}, v{hG+5}")

        reduce32c(YP_OFF, 4)
        A(f"v_mov_b32 v{hD+2}, v{hNC}")
        A(f"v_mov_b32 v{hD+3}, v{hNC+1}")
        A("s_mov_b64 exec, 0xff")
        A(f"buffer_store_dwordx4 v[{hD}:{hD+3}], v{hAD+2}, {S_WS}, s36 offen sc1")
        A("s_mov_b64 exec, -1")
        stamp(5)
        reduce32c(ZP_OFF, 6)
        A("s_mov_b64 exec, 0xff")
        A(f"buffer_store_dword v{hD}, v{hAD}, {S_OUT}, s37 offen")
        A(f"buffer_store_dword v{hD+1}, v{hAD}, {S_OUT}, s37 offen offset:1280")
        A("s_mov_b64 exec, -1")
        if pads:
            A.pads_end("L_padret_red")
        A("s_branch L_h_end")
    else:
        A(f"v_and_b32 v{hT+2}, 1, v0")
        A(f"v_mul_u32_u24 v{hAD}, 2560, v{hT+2}")
        A(f"v_and_b32 v{hT+3}, 14, v0")
        A(f"v_add_u32 v{hAD}, v{hAD}, v{hT+3}")
        A(f"buffer_load_ushort v{hX}, v{hAD}, {S_X}, s37 offen")
        A(f"buffer_load_ushort v{hX+1}, v{hAD}, {S_X}, s37 offen offset:1280")
        A(f"v_bfe_u32 v{hT+3}, v0, 2, 2")
        A(f"v_lshlrev_b32 v{hAD+2}, 5, v{hT+3}")
        A(f"v_lshl_add_u32 v{hAD+2}, v{hT+2}, 4, v{hAD+2}")
        A(f"v_lshrrev_b32 v{hT+2}, 4, v0")
        A(f"v_mul_u32_u24 v{hAD+1}, 20480, v{hT+2}")
        A(f"v_and_b32 v{hT+2}, 15, v0")
        A(f"v_lshl_add_u32 v{hAD+1}, v{hT+2}, 4, v{hAD+1}")
        hRS = hB
        A("s_waitcnt vmcnt(0)")
        A(f"v_lshlrev_b32 v{hRS}, 16, v{hX}")
        A(f"v_lshlrev_b32 v{hRS+1}, 16, v{hX+1}")
        warm_code("L_tail_red", "L_role_ffn", hT + 5)
        warm_icache("red")
        A("s_barrier")
        A.label("L_tail_red")
        if pads:
            A.pads_begin("L_pad0_red", pads)
        stamp(3)

        def reduce32(base_off, st):
            A("s_lshl_b32 s76, s33, 8")
            A(f"s_add_u32 s76, s76, {base_off}")
            lt = []
            for u in range(8):
                lt.append(f"buffer_load_dwordx4 v[{hG+4*u}:{hG+4*u+3}], v{hAD+1}, {S_WS}, s76 offen sc1")
                lt.append(f"s_add_u32 s76, s76, {4*20480}" if u < 7 else f"s_sub_u32 s76, s76, {7*4*20480}")
            if selpoll:
                for u in range(8):
                    A(f"s_add_u32 s{20+u}, s76, {4*20480*u}")
                poll_sel([([f"buffer_load_dwordx4 v[{hG+4*u}:{hG+4*u+3}], v{hAD+1}, {S_WS}, s{20+u} offen sc1"], [hG + 4 * u + 2]) for u in range(8)],
                         hNC, sleep=psleep)
            else:
                poll_tagged(lt, [hG + 4 * u + 2 for u in range(8)], hNC, hT, sleep=psleep)
            stamp(st)
            for st2 in (4, 2, 1):
                for u in range(st2):
                    for e in range(2):
                        A(f"v_add_f32 v{hG+4*u+e}, v{hG+4*u+e}, v{hG+4*(u+st2)+e}")
            for sw in ("v_permlane16_swap_b32", "v_permlane32_swap_b32"):
                for e in range(2):
                    A(f"v_mov_b32 v{hG+4+e}, v{hG+e}")
                for e in range(2):
                    A(f"{sw} v{hG+e}, v{hG+4+e}")
                for e in range(2):
                    A(f"v_add_f32 v{hG+e}, v{hG+e}, v{hG+4+e}")
            A(f"v_cvt_pk_bf16_f32 v{hG}, v{hG}, v{hG+1}")
            A(f"v_lshlrev_b32 v{hG+2}, 16, v{hG}")
            A(f"v_and_b32 v{hG+3}, 0xffff0000, v{hG}")
            A(f"v_add_f32 v{hG+2}, v{hG+2}, v{hRS}")
            A(f"v_add_f32 v{hG+3}, v{hG+3}, v{hRS+1}")
            A(f"v_cvt_pk_bf16_f32 v{hG}, v{hG+2}, v{hG+3}")
            A(f"v_lshlrev_b32 v{hRS}, 16, v{hG}")
            A(f"v_and_b32 v{hRS+1}, 0xffff0000, v{hG}")
            A(f"v_mov_b32_dpp v{hG+1}, v{hG} quad_perm:[2,3,0,1] {DPP}")
            A(f"v_and_b32 v{hD}, 0xffff, v{hG}")
            A(f"v_lshl_or_b32 v{hD}, v{hG+1}, 16, v{hD}")
            A(f"v_and_b32 v{hG+1}, 0xffff0000, v{hG+1}")
            A(f"v_lshrrev_b32 v{hD+1}, 16, v{hG}")
            A(f"v_or_b32 v{hD+1}, v{hD+1}, v{hG+1}")

        reduce32(YP_OFF, 4)
        A(f"v_mov_b32 v{hD+2}, v{hNC}")
        A(f"v_mov_b32 v{hD+3}, v{hNC+1}")
        A("s_mov_b64 exec, 0x3333")
        A(f"buffer_store_dwordx4 v[{hD}:{hD+3}], v{hAD+2}, {S_WS}, s36 offen sc1")
        A("s_mov_b64 exec, -1")
        stamp(5)
        reduce32(ZP_OFF, 6)
        A("s_mov_b64 exec, 0x3333")
        A(f"buffer_store_dword v{hD}, v{hAD}, {S_OUT}, s37 offen")
        A(f"buffer_store_dword v{hD+1}, v{hAD}, {S_OUT}, s37 offen offset:1280")
        A("s_mov_b64 exec, -1")
        if pads:
            A.pads_end("L_padret_red")
        A("s_branch L_h_end")

    A.label("L_role_ffn")
    fA, fD, fWD, fWG = 32, 52, 76, 136
    fD2 = fWG
    A(f"s_mul_i32 s32, {sG}, {10240 if ypc else 20480}")
    A(f"s_mul_i32 s77, s3, {2560 if ypc else 5120}")
    set_sel()
    A("s_add_u32 s32, s32, s77")
    A(f"s_add_u32 s32, s32, {ZP_OFF}")
    A("s_add_u32 s33, s32, 4096")
    if touch_y:
        for k in range(4):
            A(f"v_mov_b32 v{hG+k}, 0")
        for k in range(5):
            A(f"buffer_store_dwordx4 v[{hG}:{hG+3}], v{hL16}, {S_WS}, {'s32' if k < 4 else 's33'} offen offset:{1024*(k&3)} sc1")
    if not noweights:
        A(f"v_mul_u32_u24 v{hT}, 43, v0")
        A(f"v_lshrrev_b32 v{hT}, 8, v{hT}")
        A(f"v_mul_u32_u24 v{hT+1}, 6, v{hT}")
        A(f"v_sub_u32 v{hT+1}, v0, v{hT+1}")
        A(f"v_mul_u32_u24 v{hAD}, 3072, v{hT}")
        A(f"v_lshl_add_u32 v{hAD}, v{hT+1}, 4, v{hAD}")
        tr_addr(hAD + 1, 96, "s83")
        if NL > 4:
            lds_wait(hZ, hT, C_SFREE, 4, sleep=16)
        for mi, srdn in enumerate((S_WG, S_WU)):
            A(f"s_mul_i32 s76, {sG}, 96")
            A(f"s_mul_i32 s77, s3, {160*3072}")
            A("s_add_u32 s76, s76, s77")
            for (t0_, nt) in ((0, 3), (3, 2)):
                A("s_mov_b32 exec_hi, 0xffff")
                for u in range(4 * nt):
                    A(f"s_add_u32 m0, s83, {768*u}")
                    A(f"buffer_load_dwordx4 v{hAD}, {srdn}, s76 offen nt lds")
                    A(f"s_add_u32 s76, s76, {8*3072}")
                A("s_mov_b32 exec_hi, -1")
                A("s_waitcnt vmcnt(0)")
                for tile in range(3):
                    for t in range(nt):
                        for hf in range(2):
                            r = fWG + 4 * ((mi * 3 + tile) * 5 + t0_ + t) + 2 * hf
                            A(f"ds_read_b64_tr_b16 v[{r}:{r+1}], v{hAD+1} offset:{(32*t+4*hf)*96+32*tile}")
                A("s_waitcnt lgkmcnt(0)")
        A(f"s_mul_i32 s76, {sG}, {48*1280}")
        A("s_mul_i32 s77, s3, 15360")
        A("s_add_u32 s76, s76, s77")
        A(f"s_add_u32 s77, s77, {L_SBUF}")
        lds_wait(hZ, hT, C_SFREE, 4, sleep=16)
        for u in range(15):
            A(f"s_add_u32 m0, s77, {1024*u}")
            A(f"buffer_load_dwordx4 v{hL16}, {S_WD}, s76 offen nt lds")
            A("s_add_u32 s76, s76, 1024")
        A("s_mul_i32 s77, s3, 320")
        A(f"s_add_u32 s77, s77, {L_SBUF}")
        tr_addr(hAD + 1, 1280, "s77", k16=True)
        A("s_waitcnt vmcnt(0)")
        lds_inc(hZ, hONE, C_WSYNC)
        lds_wait(hZ, hT, C_WSYNC, 4, sleep=4)
        for nt in range(10):
            for t in range(3):
                r = fWD + 2 * (nt * 3 + t)
                A(f"ds_read_b64_tr_b16 v[{r}:{r+1}], v{hAD+1} offset:{16*t*1280+32*nt}")
        A("s_waitcnt lgkmcnt(0)")
    fXW, fAF, fRW, fRR, fAW, fA2, fHL = 5, 6, 7, 72, 73, 74, 75
    fD = 52
    fRR, fAW, fA2, fHL = 1, 2, 3, 4
    A("s_mul_i32 s75, s3, 1280")
    A("s_lshr_b32 s79, s3, 1")
    A("s_lshl_b32 s79, s79, 4")
    A(f"s_add_u32 s76, s79, {HB_OFF}")
    A("s_add_u32 s77, s76, 4096")
    A("s_add_u32 s78, s76, 8192")
    A(f"v_add_u32 v{fXW}, s75, v{hL4}")
    A(f"v_and_b32 v{hT}, 3, v0")
    A(f"v_lshrrev_b32 v{hT+1}, 4, v0")
    A(f"v_mul_u32_u24 v{fAF}, 1280, v{hT}")
    A(f"v_lshl_add_u32 v{fAF}, v{hT+1}, 4, v{fAF}")
    A("s_mul_i32 s79, s3, 320")
    A(f"v_add_u32 v{fAF}, s79, v{fAF}")
    A("s_mul_i32 s79, s3, 1536")
    A(f"v_add_u32 v{fRW}, s79, v{hL16}")
    A(f"v_and_b32 v{hT+2}, 15, v0")
    A(f"v_lshlrev_b32 v{fRR}, 4, v{hT+2}")
    A(f"v_lshl_add_u32 v{fRR}, v{hT+1}, 2, v{fRR}")
    A("s_lshl_b32 s79, s3, 8")
    A(f"v_add_u32 v{fRR}, s79, v{fRR}")
    A(f"v_mul_u32_u24 v{fAW}, 96, v{hT+1}")
    A(f"v_lshl_add_u32 v{fAW}, v{hT+2}, 1, v{fAW}")
    A("s_lshl_b32 s79, s3, 5")
    A(f"v_add_u32 v{fAW}, s79, v{fAW}")
    A(f"v_mul_u32_u24 v{fA2}, 96, v{hT}")
    A(f"v_lshl_add_u32 v{fA2}, v{hT+1}, 3, v{fA2}")
    A(f"v_lshlrev_b32 v{fHL}, 5, v0")
    A("s_bitcmp1_b32 s3, 0")
    A("s_cselect_b64 s[36:37], -1, 0")
    warm_code("L_tail_ffn", "L_end", hT + 5)
    warm_icache("ffn")
    A("s_barrier")
    A.label("L_tail_ffn")
    if pads:
        A.pads_begin("L_pad0_ffn", pads)
    stamp(3)
    lt = [f"buffer_load_dwordx4 v[{fA+4*u}:{fA+4*u+3}], v{fHL}, {S_WS}, s{76+(u>>1)} offen offset:{2048*(u&1)} sc1" for u in range(5)]
    if selpoll:
        poll_sel([([lt[u]], [fA + 4 * u + 2]) for u in range(5)], hNC, sleep=psleep)
    else:
        poll_tagged(lt, [fA + 4 * u + 2 for u in range(5)], hNC, hT, sleep=psleep)
    stamp(4)
    for u in range(5):
        A(f"v_cndmask_b32 v{hX+u}, v{fA+4*u}, v{fA+4*u+1}, s[36:37]")
    layernorm([hX + u for u in range(5)], hX, hF, hT)
    for u in range(5):
        A(f"ds_write_b32 v{fXW}, v{hX+u} offset:{L_XN+256*u}")
    A("s_waitcnt lgkmcnt(0)")
    A("s_barrier")
    for t in range(5):
        A(f"ds_read_b128 v[{fA+4*t}:{fA+4*t+3}], v{fAF} offset:{L_XN+64*t}")
    for t in range(5):
        A(f"s_waitcnt lgkmcnt({4-t})")
        for tile in range(6):
            r = fWG + 4 * (tile * 5 + t)
            c = "0" if t == 0 else f"v[{fD+4*tile}:{fD+4*tile+3}]"
            A(f"v_mfma_f32_16x16x32_bf16 v[{fD+4*tile}:{fD+4*tile+3}], v[{fA+4*t}:{fA+4*t+3}], v[{r}:{r+3}], {c}")
    A("s_mov_b64 exec, 0xffff")
    for tile in range(6):
        A(f"ds_write_b128 v{fRW}, v[{fD+4*tile}:{fD+4*tile+3}] offset:{L_RED+256*tile}")
    A("s_mov_b64 exec, -1")
    A("s_waitcnt lgkmcnt(0)")
    A("s_barrier")
    A("s_cmp_eq_u32 s3, 3")
    A("s_cbranch_scc1 L_noact")
    for ww in range(4):
        for gu in range(2):
            A(f"ds_read_b32 v{hF+4*gu+ww}, v{fRR} offset:{L_RED+1536*ww+768*gu}")
    A("s_waitcnt lgkmcnt(0)")
    for gu in range(2):
        f = hF + 4 * gu
        A(f"v_add_f32 v{f}, v{f}, v{f+1}")
        A(f"v_add_f32 v{f+2}, v{f+2}, v{f+3}")
        A(f"v_add_f32 v{f}, v{f}, v{f+2}")
    rnd(hF, hF)
    rnd(hF + 4, hF + 4)
    A(f"v_mul_f32 v{hF+1}, 0xbfb8aa3b, v{hF}")
    A(f"v_exp_f32 v{hF+1}, v{hF+1}")
    A(f"v_add_f32 v{hF+1}, 1.0, v{hF+1}")
    A(f"v_rcp_f32 v{hF+1}, v{hF+1}")
    A(f"v_mul_f32 v{hF}, v{hF}, v{hF+1}")
    rnd(hF, hF)
    A(f"v_mul_f32 v{hF}, v{hF}, v{hF+4}")
    A(f"v_cvt_pk_bf16_f32 v{hF}, v{hF}, v{hF}")
    A(f"ds_write_b16 v{fAW}, v{hF} offset:{L_OL}")
    A("s_waitcnt lgkmcnt(0)")
    A.label("L_noact")
    if ypc:
        A(f"v_and_b32 v{hT}, 16, v0")
        A(f"v_cmp_ne_u32 s[34:35], 0, v{hT}")
        A("v_cmp_lt_u32 s[38:39], 31, v0")
        A(f"v_lshlrev_b32 v{hGO}, 4, v0")
        for p in range(3):
            A(f"v_mov_b32 v{fD+4*p+3}, v{hNC}")
    elif fast2:
        A(f"v_and_b32 v{hT}, 16, v0")
        A(f"v_cmp_ne_u32 s[34:35], 0, v{hT}")
        A("v_cmp_lt_u32 s[38:39], 31, v0")
        A(f"v_lshrrev_b32 v{hT}, 5, v0")
        A(f"v_lshl_add_u32 v{hGO}, v{hT}, 9, v{hGO}")
        for p in range(5):
            A(f"v_mov_b32 v{fD+4*p+2}, v{hNC}")
            A(f"v_mov_b32 v{fD+4*p+3}, v{hNC+1}")
    A("s_barrier")
    for t in range(3):
        A(f"ds_read_b64 v[{fA+2*t}:{fA+2*t+1}], v{fA2} offset:{L_OL+32*t}")
    if ypc:
        fO = fD
        A("s_waitcnt lgkmcnt(0)")

        def quad_store(p):
            n = 4 if p < 2 else 2
            t_ = [fD2 + 16 * p + 4 * i for i in range(n)]
            for e in range(4):
                A(f"v_cndmask_b32 v{t_[0]+e}, v{t_[0]+e}, v{t_[1]+e}, s[34:35]")
                if n == 4:
                    A(f"v_cndmask_b32 v{t_[2]+e}, v{t_[2]+e}, v{t_[3]+e}, s[34:35]")
                    A(f"v_cndmask_b32 v{t_[0]+e}, v{t_[0]+e}, v{t_[2]+e}, s[38:39]")
            pack24(fO + 4 * p, t_[0])
            if n == 2:
                A("s_mov_b32 exec_hi, 0")
            A(f"buffer_store_dwordx4 v[{fO+4*p}:{fO+4*p+3}], v{hGO}, {S_WS}, s32 offen offset:{1024*p} sc1")
            if n == 2:
                A("s_mov_b32 exec_hi, -1")
        for nt in range(10):
            for t in range(3):
                r = fWD + 2 * (nt * 3 + t)
                c = "0" if t == 0 else f"v[{fD2+4*nt}:{fD2+4*nt+3}]"
                A(f"v_mfma_f32_16x16x16_bf16 v[{fD2+4*nt}:{fD2+4*nt+3}], v[{fA+2*t}:{fA+2*t+1}], v[{r}:{r+1}], {c}")
            if nt == 5:
                quad_store(0)
            if nt == 9:
                quad_store(1)
        quad_store(2)
    elif fast2:
        fO = fD
        A("s_waitcnt lgkmcnt(0)")

        def pair_store(p):
            ta, tb, o = fD2 + 8 * p, fD2 + 8 * p + 4, fO + 4 * p
            for e in range(2):
                A(f"v_cndmask_b32 v{ta+e}, v{ta+e}, v{ta+2+e}, s[34:35]")
                A(f"v_cndmask_b32 v{tb+e}, v{tb+e}, v{tb+2+e}, s[34:35]")
                A(f"v_cndmask_b32 v{o+e}, v{ta+e}, v{tb+e}, s[38:39]")
            A(f"buffer_store_dwordx4 v[{o}:{o+3}], v{hGO}, {S_WS}, {'s32' if p < 4 else 's33'} offen offset:{1024*(p&3)} sc1")
        for nt in range(10):
            for t in range(3):
                r = fWD + 2 * (nt * 3 + t)
                c = "0" if t == 0 else f"v[{fD2+4*nt}:{fD2+4*nt+3}]"
                A(f"v_mfma_f32_16x16x16_bf16 v[{fD2+4*nt}:{fD2+4*nt+3}], v[{fA+2*t}:{fA+2*t+1}], v[{r}:{r+1}], {c}")
            if nt >= 3 and nt % 2 == 1:
                pair_store((nt - 3) // 2)
        pair_store(4)
    else:
        for t in range(3):
            A(f"s_waitcnt lgkmcnt({2-t})")
            for nt in range(10):
                r = fWD + 2 * (nt * 3 + t)
                c = "0" if t == 0 else f"v[{fD2+4*nt}:{fD2+4*nt+3}]"
                A(f"v_mfma_f32_16x16x16_bf16 v[{fD2+4*nt}:{fD2+4*nt+3}], v[{fA+2*t}:{fA+2*t+1}], v[{r}:{r+1}], {c}")
        A("s_mov_b32 exec_hi, 0")
        for nt in range(10):
            split_halves(fD2 + 4 * nt)
            A(f"buffer_store_dwordx4 v[{fD2+4*nt}:{fD2+4*nt+3}], v{hGO}, {S_WS}, {'s32' if nt < 8 else 's33'} offen offset:{512*(nt&7)} sc1")
        A("s_mov_b32 exec_hi, -1")
    if pads:
        A.pads_end("L_padret_ffn")
    stamp(5)
    A.label("L_h_end")
    stamp(7)
    stamp_flush(32)
    A.label("L_end")
    A("s_endpgm")
    s = wrap(A.text(), HEADER + DOC, 256, 512, LDS_BYTES, 256, 102)
    s = s.replace("  .amdhsa_group_segment_fixed_size 0\n", "  .amdhsa_group_segment_fixed_size 0\n  .amdhsa_float_denorm_mode_32 3\n")
    return s


if __name__ == "__main__":
    kw = eval("dict(%s)" % (sys.argv[2] if len(sys.argv) > 2 else ""))
    open(sys.argv[1], "w").write(gen(**kw))
```

```python
import sys
sys.path.insert(0, "work")
from asmlib import *

HEADER = open("sequential_preLN__gqa_block_cached__swiglu_ffn__decode.s.ref").read().split("; Override launch")[0]
DOC = """; One persistent launch: 256 workgroups x 8 waves, one workgroup per CU (G = wg>>3, j = wg&7).  Generated by a script.
;              fragments in registers and run the tail: j<5 wo block, j>=6 reducers (+ residual), j==5 SwiGLU FFN slice.
"""

QP_OFF = 0x000000
OP_OFF = 0x200000
YP_OFF = 0x400000
ZP_OFF = 0x500000
HB_OFF = 0x600000
CT_OFF = 0x610000
ST_OFF = 0x800000
WS_SIZE = 0x1000000
OOB = 0x80000000
TASKB = 4096 * 384

L_STAGE = 0
L_XN = 49152
L_QL = L_XN + 5120
L_OL = L_QL + 1536
L_RED = L_OL + 1536
L_CNT = L_RED + 6144
L_SBUF = L_CNT + 64
C_SYNC0, C_SYNC1, C_QRDY, C_SFREE, C_WSYNC, L_TAG = [L_CNT + x for x in (0, 4, 8, 12, 16, 24)]

LOG2E = "0x3fb8aa3b"
SCALE = "0x3d93cd3a"
EPS = "0x3727c5ac"
INV640 = "0x3acccccd"
F640 = "0x44200000"

S_WS, S_K, S_V, S_X, S_WQ, S_DBG, S_WO, S_WG, S_WU, S_WD, S_OUT = [f"s[{28+4*i}:{31+4*i}]" for i in range(11)]
sG, sJ, sB, sH = "s72", "s73", "s74", "s82"
DPP = "row_mask:0xf bank_mask:0xf"


def gen(D=2, S0=54, XF=16, PACE=3, NL=4, stamps=False, spin_g=200000, spin_l=4000000, prio=True, psleep=1, qsleep=8,
        mix=True, nocompute=False, noweights=False, noqx=False, touch_op=False, touch_y=False, selpoll=True, ln1=True, satom=True, early=True, warm=True, fast2=True, pads=8, tk1=False, HS=0, opc=True, ypc=True, np4=True, xr=False, qdelay=0, qlight=True):
    NS = 8
    E = NS - D
    NL1 = min(NL, 4)
    assert NL <= 6
    LDS_BYTES = L_SBUF + 4 * 4 * 6144
    assert LDS_BYTES <= 163840
    NB = E + NL
    R0 = D * (1 + -(-NB // (2 * D)))
    assert (S0 - NS - NL) % D == 0
    nA = (S0 - NS - NL - R0) // D - 1
    POOL = 512 - 8 * S0 + XF
    assert XF % D == 0 and XF // D < nA and NL <= E
    A = Asm()

    def srd(name, ptr_lo, size, add=None):
        r = int(name[2:name.index(":")])
        if add is None:
            A(f"s_mov_b32 s{r}, s{ptr_lo}")
            A(f"s_mov_b32 s{r+1}, s{ptr_lo+1}")
        else:
            A(f"s_add_u32 s{r}, s{ptr_lo}, {add}")
            A(f"s_addc_u32 s{r+1}, s{ptr_lo+1}, 0")
        A(f"s_mov_b32 s{r+2}, {size}")
        A(f"s_mov_b32 s{r+3}, 0x20000")

    def stamp(k, which="main"):
        if stamps and (which == stamps or (which == "main" and stamps is True) or k == 0):
            A(f"s_memrealtime s[{84+2*k}:{85+2*k}]")

    def stamp_flush(vt):
        if not stamps:
            return
        A("s_waitcnt lgkmcnt(0)")
        for k in range(16):
            A(f"v_mov_b32 v{vt+k}, s{84+k}")
        A("s_lshl_b32 s81, s2, 3")
        A("s_add_u32 s81, s81, s3")
        A("s_lshl_b32 s81, s81, 6")
        A(f"s_add_u32 s81, s81, {ST_OFF}")
        A(f"v_mov_b32 v{vt+16}, 0")
        A("s_mov_b64 exec, 1")
        for k in range(4):
            A(f"buffer_store_dwordx4 v[{vt+4*k}:{vt+4*k+3}], v{vt+16}, {S_WS}, s81 offen offset:{16*k}")
        A("s_mov_b64 exec, -1")

    def allred16_32(op, x, t):
        A(f"v_mov_b32 v{t}, v{x}")
        A(f"v_permlane16_swap_b32 v{x}, v{t}")
        A(f"{op} v{x}, v{x}, v{t}")
        A(f"v_mov_b32 v{t}, v{x}")
        A(f"v_permlane32_swap_b32 v{x}, v{t}")
        A(f"{op} v{x}, v{x}, v{t}")

    def allred64(op, x, t):
        for pat in ("quad_perm:[1,0,3,2]", "quad_perm:[2,3,0,1]", "row_ror:4", "row_ror:8"):
            A(f"{op}_dpp v{x}, v{x}, v{x} {pat} {DPP}")
        allred16_32(op, x, t)

    def rnd(dst, src):
        A(f"v_cvt_pk_bf16_f32 v{dst}, v{src}, v{src}")
        A(f"v_lshlrev_b32 v{dst}, 16, v{dst}")

    def div640(x, t0, t1):
        A(f"v_mul_f32 v{t0}, {INV640}, v{x}")
        A(f"v_fma_f32 v{t1}, -v{t0}, s80, v{x}")
        A(f"v_mul_f32 v{t1}, {INV640}, v{t1}")
        A(f"v_add_f32 v{x}, v{t0}, v{t1}")

    def layernorm(src, dst, f, t):
        A(f"s_mov_b32 s80, {F640}")
        for u in range(5):
            A(f"v_lshlrev_b32 v{f+2*u}, 16, v{src[u]}")
            A(f"v_and_b32 v{f+2*u+1}, 0xffff0000, v{src[u]}")
        A(f"v_add_f32 v{t}, v{f}, v{f+1}")
        A(f"v_add_f32 v{t+1}, v{f+2}, v{f+3}")
        A(f"v_add_f32 v{t+2}, v{f+4}, v{f+5}")
        A(f"v_add_f32 v{t+3}, v{f+6}, v{f+7}")
        A(f"v_add_f32 v{t+4}, v{f+8}, v{f+9}")
        A(f"v_add_f32 v{t}, v{t}, v{t+1}")
        A(f"v_add_f32 v{t+2}, v{t+2}, v{t+3}")
        A(f"v_add_f32 v{t}, v{t}, v{t+4}")
        A(f"v_add_f32 v{t}, v{t}, v{t+2}")
        if ln1:
            A(f"v_readfirstlane_b32 s79, v{f}")
            A(f"v_subrev_f32 v{t+2}, s79, v{f}")
            A(f"v_mul_f32 v{t+1}, v{t+2}, v{t+2}")
            for i in range(1, 10):
                A(f"v_subrev_f32 v{t+2+(i&1)}, s79, v{f+i}")
                A(f"v_fmac_f32 v{t+1}, v{t+2+(i&1)}, v{t+2+(i&1)}")
            for pat in ("quad_perm:[1,0,3,2]", "quad_perm:[2,3,0,1]", "row_ror:4", "row_ror:8"):
                for x in (t, t + 1):
                    A(f"v_add_f32_dpp v{x}, v{x}, v{x} {pat} {DPP}")
            for sw in ("v_permlane16_swap_b32", "v_permlane32_swap_b32"):
                for x in (t, t + 1):
                    A(f"v_mov_b32 v{x+2}, v{x}")
                for x in (t, t + 1):
                    A(f"{sw} v{x}, v{x+2}")
                for x in (t, t + 1):
                    A(f"v_add_f32 v{x}, v{x}, v{x+2}")
            div640(t, t + 2, t + 3)
            div640(t + 1, t + 4, t + 5)
            A(f"v_subrev_f32 v{t+2}, s79, v{t}")
            A(f"v_fma_f32 v{t+1}, -v{t+2}, v{t+2}, v{t+1}")
            A(f"v_max_f32 v{t+1}, 0, v{t+1}")
        else:
            allred64("v_add_f32", t, t + 1)
            div640(t, t + 1, t + 2)
            A(f"v_sub_f32 v{t+2}, v{f}, v{t}")
            A(f"v_mul_f32 v{t+1}, v{t+2}, v{t+2}")
            for i in range(1, 10):
                A(f"v_sub_f32 v{t+2+(i&1)}, v{f+i}, v{t}")
                A(f"v_fmac_f32 v{t+1}, v{t+2+(i&1)}, v{t+2+(i&1)}")
            allred64("v_add_f32", t + 1, t + 2)
            div640(t + 1, t + 2, t + 3)
        rnd(t, t)
        rnd(t + 1, t + 1)
        A(f"v_add_f32 v{t+1}, {EPS}, v{t+1}")
        rnd(t + 1, t + 1)
        A(f"v_sqrt_f32 v{t+1}, v{t+1}")
        rnd(t + 1, t + 1)
        A(f"v_rcp_f32 v{t+2}, v{t+1}")
        for u in range(5):
            a, b = f + 2 * u, f + 2 * u + 1
            A(f"v_sub_f32 v{a}, v{a}, v{t}")
            A(f"v_sub_f32 v{b}, v{b}, v{t}")
            A(f"v_cvt_pk_bf16_f32 v{b}, v{a}, v{b}")
            A(f"v_lshlrev_b32 v{a}, 16, v{b}")
            A(f"v_and_b32 v{b}, 0xffff0000, v{b}")
            A(f"v_mul_f32 v{t+3}, v{a}, v{t+2}")
            A(f"v_mul_f32 v{t+4}, v{b}, v{t+2}")
            A(f"v_fma_f32 v{a}, -v{t+3}, v{t+1}, v{a}")
            A(f"v_fma_f32 v{b}, -v{t+4}, v{t+1}, v{b}")
            A(f"v_fmac_f32 v{t+3}, v{a}, v{t+2}")
            A(f"v_fmac_f32 v{t+4}, v{b}, v{t+2}")
            A(f"v_cvt_pk_bf16_f32 v{dst+u}, v{t+3}, v{t+4}")

    def poll_tagged(loads, tagpairs, tag, tmp, sleep=0, mask=None):
        Lp, Ld = A.newlabel("L_poll"), A.newlabel("L_pdone")
        A(f"s_mov_b32 s81, {spin_g}")
        if mask is not None:
            A(f"s_mov_b64 exec, {mask}")
        A.label(Lp)
        for l in loads:
            A(l)
        A("s_waitcnt vmcnt(0)")
        if len(tagpairs) == 1:
            r = tagpairs[0]
            A(f"v_cmp_ne_u64 vcc, v[{r}:{r+1}], v[{tag}:{tag+1}]")
        else:
            for i, r in enumerate(tagpairs):
                if i == 0:
                    A(f"v_xor_b32 v{tmp}, v{r}, v{tag}")
                    A(f"v_xor_b32 v{tmp+1}, v{r+1}, v{tag+1}")
                else:
                    A(f"v_xor_b32 v{tmp+2}, v{r}, v{tag}")
                    A(f"v_xor_b32 v{tmp+3}, v{r+1}, v{tag+1}")
                    A(f"v_or3_b32 v{tmp+(i&1)}, v{tmp+(i&1)}, v{tmp+2}, v{tmp+3}")
            A(f"v_or_b32 v{tmp}, v{tmp}, v{tmp+1}")
            A(f"v_cmp_ne_u32 vcc, 0, v{tmp}")
        A(f"s_cbranch_vccz {Ld}")
        if sleep:
            A(f"s_sleep {sleep}")
        A("s_sub_u32 s81, s81, 1")
        A("s_cmp_lg_u32 s81, 0")
        A(f"s_cbranch_scc1 {Lp}")
        A.label(Ld)
        if mask is not None:
            A("s_mov_b64 exec, -1")

    def poll_sel(groups, tag, sleep=0):
        Lp, Ld = A.newlabel("L_poll"), A.newlabel("L_pdone")
        A.pads_pause(True)
        A(f"s_mov_b32 s81, {spin_g}")
        for loads, _ in groups:
            for l in loads:
                A(l)
        A.label(Lp)
        A("s_waitcnt vmcnt(0)")
        for i, (_, pairs) in enumerate(groups):
            m = f"s[{4+2*i}:{5+2*i}]"
            for k, r in enumerate(pairs):
                if k == 0:
                    A(f"v_cmp_ne_u64 {m}, v[{r}:{r+1}], v[{tag}:{tag+1}]")
                else:
                    A(f"v_cmp_ne_u64 vcc, v[{r}:{r+1}], v[{tag}:{tag+1}]")
                    A(f"s_or_b64 {m}, {m}, vcc")
        A("s_or_b64 s[38:39], s[4:5], s[6:7]")
        for i in range(2, len(groups)):
            A(f"s_or_b64 s[38:39], s[38:39], s[{4+2*i}:{5+2*i}]")
        A(f"s_cbranch_scc0 {Ld}")
        if sleep:
            A(f"s_sleep {sleep}")
        for i, (loads, _) in enumerate(groups):
            A(f"s_mov_b64 exec, s[{4+2*i}:{5+2*i}]")
            for l in loads:
                A(l)
        A("s_mov_b64 exec, -1")
        A("s_sub_u32 s81, s81, 1")
        A("s_cmp_lg_u32 s81, 0")
        A(f"s_cbranch_scc1 {Lp}")
        A("s_waitcnt vmcnt(0)")
        A.label(Ld)
        A.pads_pause(False)

    def lds_wait(addr_v, val_v, off, target, sleep=1):
        Lp, Ld = A.newlabel("L_lw"), A.newlabel("L_lwd")
        A(f"s_mov_b32 s81, {spin_l}")
        A.label(Lp)
        A(f"ds_read_b32 v{val_v}, v{addr_v} offset:{off}")
        A("s_waitcnt lgkmcnt(0)")
        A(f"v_readfirstlane_b32 s79, v{val_v}")
        A(f"s_cmp_ge_u32 s79, {target}")
        A(f"s_cbranch_scc1 {Ld}")
        A(f"s_sleep {sleep}")
        A("s_sub_u32 s81, s81, 1")
        A("s_cmp_lg_u32 s81, 0")
        A(f"s_cbranch_scc1 {Lp}")
        A.label(Ld)

    def lds_inc(zero_v, one_v, off):
        A("s_mov_b64 exec, 1")
        A(f"ds_add_u32 v{zero_v}, v{one_v} offset:{off}")
        A("s_mov_b64 exec, -1")

    A("s_cmp_ge_u32 s2, 256")
    A("s_cbranch_scc1 L_end")
    A("s_load_dwordx16 s[4:19], s[0:1], 0")
    A("s_load_dwordx8 s[20:27], s[0:1], 64")
    A("v_lshrrev_b32 v1, 6, v0")
    A("v_and_b32 v0, 63, v0")
    A("v_readfirstlane_b32 s3, v1")
    A(f"s_lshr_b32 {sG}, s2, 3")
    A(f"s_and_b32 {sJ}, s2, 7")
    A(f"s_and_b32 {sB}, s3, 3")
    if xr:
        A(f"s_lshl_b32 {sH}, {sJ}, 2")
        A(f"s_add_u32 {sH}, {sH}, {sB}")
        A(f"s_add_u32 {sH}, {sH}, {sG}")
        A(f"s_and_b32 {sH}, {sH}, 31")
    elif mix:
        A(f"s_mul_i32 {sH}, {sB}, {sJ}")
        A(f"s_add_u32 {sH}, {sH}, {sG}")
        A(f"s_and_b32 {sH}, {sH}, 31")
    else:
        A(f"s_mov_b32 {sH}, {sG}")
    if stamps:
        for k in range(16):
            A(f"s_mov_b32 s{84+k}, 0")
    A("s_cmp_lt_u32 s3, 4")
    A("s_cbranch_scc1 L_helper")

    vOFF, vZ = 1, 2
    T = 3
    vTAG = 8
    vM, vL = 11, 12
    vAL, vP = 14, 16
    vU = 18
    vLB = 22
    vQ = 24
    vACC = 36
    vTK = 60
    vSLOT = 64
    sOFF, sCT, sOP = "s75", "s76", "s83"
    sSL = 60

    kreg = lambda slot, i: vSLOT + slot * 24 + 4 * i
    vreg = lambda slot, i: vSLOT + slot * 24 + 12 + 4 * i
    vmq = []

    def vwait(tag, first=False):
        idx = [k for k, t in enumerate(vmq) if t == tag]
        if not idx:
            return
        i = idx[2] if first else idx[-1]
        n = len(vmq) - 1 - i
        assert n <= 63
        A(f"s_waitcnt vmcnt({n})")
        del vmq[:i + 1]

    def issueK(slot, soff):
        for i in range(3):
            r = kreg(slot, i)
            A(f"buffer_load_dwordx4 v[{r}:{r+3}], v{vOFF}, {S_K}, {soff} offen offset:{128*i} nt")
            vmq.append(("K", slot))

    def issueV(slot, soff):
        for i in range(3):
            r = vreg(slot, i)
            A(f"buffer_load_dwordx4 v[{r}:{r+3}], v{vOFF}, {S_V}, {soff} offen offset:{128*i} nt")
            vmq.append(("V", slot))

    def atomic(slot):
        A(f"v_mov_b32 v{vTK+slot}, 1")
        A("s_mov_b64 exec, 1")
        A(f"buffer_atomic_add v{vTK+slot}, v{vZ}, {S_WS}, {sCT} offen sc0")
        A("s_mov_b64 exec, -1")
        vmq.append(("T", slot))

    def consumeK(slot, mid=None):
        t0, t1, t2, t3, t4 = T, T + 1, T + 2, T + 3, T + 4
        k = kreg(slot, 0)
        if nocompute:
            for e in range(0, 12, 4):
                A(f"v_xor_b32 v{vL}, v{vL}, v{k+e}")
            if mid:
                mid()
            return
        for e in range(6):
            A(f"v_dot2_f32_bf16 v{t0}, v{k+e}, v{vQ+e}, " + ("0" if e == 0 else f"v{t0}"))
            A(f"v_dot2_f32_bf16 v{t1}, v{k+6+e}, v{vQ+6+e}, " + ("0" if e == 0 else f"v{t1}"))
        if mid:
            mid()
        A(f"v_add_f32 v{t0}, v{t0}, v{t1}")
        A(f"v_add_f32_dpp v{t0}, v{t0}, v{t0} quad_perm:[1,0,3,2] {DPP}")
        A(f"v_add_f32_dpp v{t0}, v{t0}, v{t0} quad_perm:[2,3,0,1] {DPP}")
        A(f"v_add_f32_dpp v{t0}, v{t0}, v{t0} row_half_mirror {DPP}")
        rnd(t1, t0)
        A(f"v_mul_f32 v{t1}, {SCALE}, v{t1}")
        rnd(t1, t1)
        A(f"v_max_f32 v{t2}, v{vM}, v{t1}")
        A(f"v_sub_f32 v{t3}, v{vM}, v{t2}")
        A(f"v_sub_f32 v{t4}, v{t1}, v{t2}")
        A(f"v_mul_f32 v{t3}, {LOG2E}, v{t3}")
        A(f"v_mul_f32 v{t4}, {LOG2E}, v{t4}")
        A(f"v_exp_f32 v{vAL}, v{t3}")
        A(f"v_exp_f32 v{vP}, v{t4}")
        A(f"v_mov_b32 v{vM}, v{t2}")
        A(f"v_fma_f32 v{vL}, v{vL}, v{vAL}, v{vP}")
        for a in range(12):
            r = vACC + 2 * a
            A(f"v_pk_mul_f32 v[{r}:{r+1}], v[{r}:{r+1}], v[{vAL}:{vAL+1}] op_sel_hi:[1,0]")

    def consumeV(slot):
        v = vreg(slot, 0)
        if nocompute:
            for e in range(0, 12, 4):
                A(f"v_xor_b32 v{vL}, v{vL}, v{v+e}")
            return
        for a in range(12):
            u = vU + 2 * (a & 1)
            r = vACC + 2 * a
            A(f"v_lshlrev_b32 v{u}, 16, v{v+a}")
            A(f"v_and_b32 v{u+1}, 0xffff0000, v{v+a}")
            A(f"v_pk_fma_f32 v[{r}:{r+1}], v[{u}:{u+1}], v[{vP}:{vP+1}], v[{r}:{r+1}] op_sel_hi:[1,0,1]")

    stamp(0)
    A(f"v_lshrrev_b32 v{T}, 3, v0")
    A(f"v_mul_u32_u24 v{T}, 384, v{T}")
    A(f"v_and_b32 v{T+1}, 7, v0")
    A(f"v_lshl_add_u32 v{vOFF}, v{T+1}, 4, v{T}")
    A(f"s_lshl_b32 s77, {sB}, 5")
    A(f"s_add_u32 s77, s77, {sH}")
    A(f"s_mul_i32 s78, s77, {TASKB}")
    A(f"s_mul_i32 {sOFF}, {sJ}, 3072")
    A("s_waitcnt lgkmcnt(0)")
    srd(S_K, 6, TASKB, "s78")
    srd(S_V, 8, TASKB, "s78")

    def s_setup():
        A(f"v_mov_b32 v{vZ}, 0")
        A(f"s_lshl_b32 {sCT}, s77, 8")
        A(f"s_add_u32 {sCT}, {sCT}, {CT_OFF}")
        A(f"s_lshl_b32 {sOP}, s77, 3")
        A(f"s_add_u32 {sOP}, {sOP}, {sJ}")
        A(f"s_lshl_b32 {sOP}, {sOP}, 11")
        A(f"s_add_u32 {sOP}, {sOP}, {OP_OFF}")
        A(f"s_mul_i32 s77, {sB}, {4*6144}")
        A(f"s_add_u32 s77, s77, {L_SBUF}")
        A(f"s_mul_i32 s80, {sB}, 12288")
        A(f"v_lshlrev_b32 v{vLB+1}, 4, v0")
        A(f"v_add_u32 v{vLB}, s77, v{vLB+1}")
        A(f"v_add_u32 v{vLB+1}, s80, v{vLB+1}")
        srd(S_WS, 26, WS_SIZE)
        A(f"s_add_u32 s66, s26, {sCT}")
        A("s_addc_u32 s67, s27, 0")
        A("s_barrier")
    if not early:
        s_setup()
    last = lambda n: ("V", n) if n < NS else ("L", n - NS)
    for n in range(NS + NL):
        if n >= PACE:
            vwait(last(n - PACE))
            if n - PACE + 2 < 8:
                stamp(n - PACE + 2, "start")
        if n < NS:
            issueK(n, sOFF)
            issueV(n, sOFF)
        else:
            li = n - NS
            if li == (0 if np4 else 4):
                lds_wait(vZ, T, C_SYNC1, 4)
            for kv in range(2):
                for i in range(3):
                    A(f"s_add_u32 m0, {'s77' if li < 4 else 's80'}, {(li&3)*6144 + (3*kv+i)*1024 - 128*i}")
                    A(f"buffer_load_dwordx4 v{vOFF}, {S_K if kv == 0 else S_V}, {sOFF} offen offset:{128*i} nt lds")
                    vmq.append(("L", n - NS))
        A(f"s_add_u32 {sOFF}, {sOFF}, {8*3072}")
        if n == PACE - 1 and early:
            s_setup()
        if n == PACE - 1:
            A(f"v_mov_b32 v{vM}, 0xff7fffff")
            A(f"v_mov_b32 v{vL}, 0")
            for a in range(24):
                A(f"v_mov_b32 v{vACC+a}, 0")
    stamp(1)
    lds_wait(vZ, T, C_QRDY, 4)
    A(f"v_and_b32 v{T}, 7, v0")
    A(f"v_lshlrev_b32 v{T}, 4, v{T}")
    A(f"s_mul_i32 s78, {sB}, 384")
    A(f"v_add_u32 v{T}, s78, v{T}")
    for i in range(3):
        A(f"ds_read_b128 v[{vQ+4*i}:{vQ+4*i+3}], v{T} offset:{L_QL+128*i}")
    A(f"ds_read_b64 v[{vTAG}:{vTAG+1}], v{vZ} offset:{L_TAG}")
    A("s_waitcnt lgkmcnt(0)")
    if touch_op:
        A(f"v_lshlrev_b32 v{T}, 4, v0")
        A(f"buffer_store_dwordx4 v[{vACC}:{vACC+3}], v{T}, {S_WS}, {sOP} offen sc1")
        A(f"buffer_store_dwordx4 v[{vACC}:{vACC+3}], v{T}, {S_WS}, {sOP} offen offset:1024 sc1")
    stamp(2)

    def static_step(slot, with_atomic=False, save=False):
        vwait(("K", slot))

        def mid():
            if with_atomic:
                atomic(slot)
            issueK(slot, sOFF)
        consumeK(slot, mid)
        vwait(("V", slot), first=True)
        consumeV(slot)
        issueV(slot, sOFF)
        if save:
            A(f"s_mov_b32 s{sSL+slot}, {sOFF}")
        A(f"s_add_u32 {sOFF}, {sOFF}, {8*3072}")

    for s in range(D):
        static_step(s)
    backlog = [("reg", D + e) for e in range(E)] + [("lds", i) for i in range(NL)]
    nring = R0 - D
    done = 0
    for r in range(nring + 1):
        upto = len(backlog) if r == nring else (len(backlog) * (r + 1) + nring) // (nring + 1)
        while done < upto:
            kind, x = backlog[done]
            done += 1
            if kind == "reg":
                vwait(("K", x))
                consumeK(x)
                vwait(("V", x))
                consumeV(x)
                i = x - D
                if i < NL:
                    vwait(("L", i))
                    for k in range(6):
                        rr = vSLOT + x * 24 + 4 * k
                        A(f"ds_read_b128 v[{rr}:{rr+3}], v{vLB+(i>>2)} offset:{(i&3)*6144+1024*k}")
            else:
                A("s_waitcnt lgkmcnt(0)")
                if x == 0:
                    pass
                consumeK(D + x)
                consumeV(D + x)
        if r < nring:
            static_step(r % D)
    A(f"v_mov_b32 v{T}, 1")
    lds_inc(vZ, T, C_SFREE)
    if xr:
        A(f"s_sub_u32 s68, {sH}, {sB}")
        A("s_sub_u32 s68, s68, 20")
        A("s_and_b32 s68, s68, 31")
        A("s_lshr_b32 s68, s68, 2")
        A(f"s_cmp_eq_u32 s68, {sJ}")
    else:
        A("s_mov_b32 s68, 5")
        A(f"s_cmp_eq_u32 {sJ}, 5")
    A(f"s_cselect_b32 s77, {nA - XF // D}, {nA}")
    A(f"s_add_u32 s68, s68, {8*(S0-XF)}")
    A.label("L_loopA")
    shape = list(vmq)
    for s in range(D):
        static_step(s)
    assert vmq == shape, (vmq, shape)
    A("s_sub_u32 s77, s77, 1")
    A("s_cmp_lg_u32 s77, 0")
    A("s_cbranch_scc1 L_loopA")
    def satomic():
        A(f"s_mov_b32 s65, {1 if tk1 else D}")
        A("s_atomic_add s65, s[66:67], 0 glc")

    PF = POOL - HS
    sMK = lambda s: f"s[{40+2*s}:{41+2*s}]"
    if HS:
        A("s_mov_b32 s48, -1")
        A("s_mov_b32 s49, 0")
        A("s_mov_b32 s50, 0")
        A("s_mov_b32 s51, -1")
        for s in range(D):
            A(f"s_mov_b64 {sMK(s)}, -1")
    if not tk1:
        satomic()
    for s in range(D):
        if tk1 and s == D - 1:
            satomic()
        static_step(s, save=True)
    stamp(3)
    A.label("L_loopB")
    shape = list(vmq)
    for s in range(D):
        A(f"s_cmp_ge_u32 s{sSL+s}, {TASKB}")
        A("s_cbranch_scc1 L_s_done")
        if not tk1 and s == 0:
            A("s_waitcnt lgkmcnt(0)")
            A("s_mov_b32 s64, s65")
            satomic()
        if HS:
            A(f"s_mov_b64 exec, {sMK(s)}")
        vwait(("K", s))

        def mid(s=s):
            if tk1:
                A("s_waitcnt lgkmcnt(0)")
                A("s_mov_b32 s78, s65")
                satomic()
            else:
                A(f"s_add_u32 s78, s64, {s}")
            if HS:
                A(f"s_sub_u32 s79, s78, {PF}")
                A("s_bitcmp1_b32 s79, 0")
                A("s_cselect_b64 s[52:53], s[50:51], s[48:49]")
                A("s_lshr_b32 s79, s79, 1")
                A(f"s_add_u32 s79, s79, {PF}")
                A(f"s_cmp_lt_u32 s78, {PF}")
                A("s_cselect_b32 s78, s78, s79")
                A("s_cselect_b64 s[52:53], -1, s[52:53]")
            A(f"s_min_u32 s78, s78, {POOL}")
            A("s_lshl_b32 s79, s78, 3")
            A("s_add_u32 s79, s79, s68")
            A(f"s_add_u32 s80, s78, {8*S0-XF}")
            A(f"s_cmp_lt_u32 s78, {XF}")
            A("s_cselect_b32 s78, s79, s80")
            A(f"s_mul_i32 s{sSL+s}, s78, 3072")
            if HS:
                A("s_mov_b64 exec, s[52:53]")
            issueK(s, f"s{sSL+s}")
            if HS:
                A(f"s_mov_b64 exec, {sMK(s)}")
        consumeK(s, mid)
        vwait(("V", s), first=True)
        consumeV(s)
        if HS:
            A("s_mov_b64 exec, s[52:53]")
            A(f"s_mov_b64 {sMK(s)}, s[52:53]")
        issueV(s, f"s{sSL+s}")
    assert vmq == shape, (vmq, shape)
    A("s_branch L_loopB")
    A.label("L_s_done")
    A("s_mov_b64 exec, -1")
    stamp(4)
    t0, t1 = T, T + 1
    A(f"v_max_f32_dpp v{t0}, v{vM}, v{vM} row_ror:8 {DPP}")
    allred16_32("v_max_f32", t0, t1)
    A(f"v_sub_f32 v{t1}, v{vM}, v{t0}")
    A(f"v_mul_f32 v{t1}, {LOG2E}, v{t1}")
    A(f"v_exp_f32 v{vAL}, v{t1}")
    A(f"v_mul_f32 v{vL}, v{vL}, v{vAL}")
    for a in range(12):
        r = vACC + 2 * a
        A(f"v_pk_mul_f32 v[{r}:{r+1}], v[{r}:{r+1}], v[{vAL}:{vAL+1}] op_sel_hi:[1,0]")
    A(f"v_add_f32_dpp v{vL}, v{vL}, v{vL} row_ror:8 {DPP}")
    allred16_32("v_add_f32", vL, t1)
    for a in range(12):
        A(f"v_permlane32_swap_b32 v{vACC+a}, v{vACC+12+a}")
    for a in range(12):
        A(f"v_add_f32 v{vACC+a}, v{vACC+a}, v{vACC+12+a}")
    for a in range(6):
        A(f"v_permlane16_swap_b32 v{vACC+a}, v{vACC+6+a}")
    for a in range(6):
        A(f"v_add_f32 v{vACC+a}, v{vACC+a}, v{vACC+6+a}")
    A(f"v_and_b32 v{t1}, 8, v0")
    A(f"v_cmp_ne_u32 vcc, 0, v{t1}")
    if opc:
        O0, O1 = vQ, vQ + 4
        for r in range(3):
            A(f"v_cndmask_b32 v{vU+r}, v{vACC+3+r}, v{vACC+r}, vcc")
            A(f"v_cndmask_b32 v{O0+r}, v{vACC+r}, v{vACC+3+r}, vcc")
        A(f"v_mov_b32 v{O0+3}, v{vTAG}")
        for r in range(3):
            A(f"v_add_f32_dpp v{O0+r}, v{vU+r}, v{O0+r} row_ror:8 {DPP}")
        A(f"v_lshlrev_b32 v{t1}, 4, v0")
        A(f"buffer_store_dwordx4 v[{O0}:{O0+3}], v{t1}, {S_WS}, {sOP} offen sc1")
        A(f"v_mov_b32 v{O1}, v{t0}")
        A(f"v_mov_b32 v{O1+1}, v{vL}")
        A(f"v_mov_b32 v{O1+2}, v{vTAG}")
        A(f"v_mov_b32 v{O1+3}, v{vTAG+1}")
        A("s_mov_b64 exec, 1")
        A(f"buffer_store_dwordx4 v[{O1}:{O1+3}], v{t1}, {S_WS}, {sOP} offen offset:1024 sc1")
        A("s_mov_b64 exec, -1")
    else:
        O0, O1 = vQ, vQ + 4
        dst = [O0, O0 + 1, O1]
        for r in range(3):
            A(f"v_cndmask_b32 v{vU+r}, v{vACC+3+r}, v{vACC+r}, vcc")
            A(f"v_cndmask_b32 v{dst[r]}, v{vACC+r}, v{vACC+3+r}, vcc")
        A(f"v_and_b32 v{t1}, 1, v0")
        A(f"v_cmp_ne_u32 vcc, 0, v{t1}")
        for r in range(3):
            A(f"v_add_f32_dpp v{dst[r]}, v{vU+r}, v{dst[r]} row_ror:8 {DPP}")
        A(f"v_cndmask_b32 v{O1+1}, v{t0}, v{vL}, vcc")
        for o in (O0, O1):
            A(f"v_mov_b32 v{o+2}, v{vTAG}")
            A(f"v_mov_b32 v{o+3}, v{vTAG+1}")
        A(f"v_lshlrev_b32 v{t1}, 4, v0")
        A(f"buffer_store_dwordx4 v[{O0}:{O0+3}], v{t1}, {S_WS}, {sOP} offen sc1")
        A(f"buffer_store_dwordx4 v[{O1}:{O1+3}], v{t1}, {S_WS}, {sOP} offen offset:1024 sc1")
    stamp(5)
    A("s_barrier")
    stamp_flush(36)
    A("s_endpgm")

    A.label("L_helper")
    stamp(0)
    if prio:
        A("s_setprio 2")
    hZ, hONE, hL4, hL16 = 1, 2, 3, 4
    hAD = 5
    hX = 8
    hNC = 14
    hF = 16
    hT = 26
    hA = 32
    hD = 80
    hB = 92
    hG = 128
    hW1 = 160
    A(f"v_mov_b32 v{hZ}, 0")
    A(f"v_mov_b32 v{hONE}, 1")
    A(f"v_lshlrev_b32 v{hL4}, 2, v0")
    A(f"v_lshlrev_b32 v{hL16}, 4, v0")
    if np4:
        def get_tag(sfx):
            A(f"s_mov_b32 s81, {spin_g}")
            A.label(f"L_gf_{sfx}")
            A(f"v_readfirstlane_b32 s79, v{hNC}")
            A(f"v_readfirstlane_b32 s80, v{hNC+1}")
            A("s_cmp_eq_u32 s79, 0")
            A("s_cselect_b32 s80, 0, s80")
            A("s_cmp_lg_u32 s80, 0")
            A(f"s_cbranch_scc1 L_gfd_{sfx}")
            A("s_sleep 8")
            A(f"buffer_load_dwordx2 v[{hNC}:{hNC+1}], v{hZ}, {S_DBG}, 0 offen sc1")
            A("s_waitcnt vmcnt(0)")
            A("s_sub_u32 s81, s81, 1")
            A("s_cmp_lg_u32 s81, 0")
            A(f"s_cbranch_scc1 L_gf_{sfx}")
            A.label(f"L_gfd_{sfx}")
        for k in range(4):
            A(f"v_mov_b32 v{hG+k}, 0")
        A(f"ds_write_b128 v{hZ}, v[{hG}:{hG+3}] offset:{L_CNT}")
        A(f"ds_write_b32 v{hZ}, v{hG} offset:{L_CNT+16}")
        A(f"s_bitcmp1_b32 {sJ}, 0")
        A("s_cbranch_scc1 L_q_consumer")
        for i in range(3):
            A(f"v_add_u32 v{hT}, {64*i}, v0")
            A(f"v_mul_u32_u24 v{hT+1}, 2731, v{hT}")
            A(f"v_lshrrev_b32 v{hT+1}, 16, v{hT+1}")
            A(f"v_mul_u32_u24 v{hT+2}, 24, v{hT+1}")
            A(f"v_sub_u32 v{hT}, v{hT}, v{hT+2}")
            A(f"v_mul_u32_u24 v{hT+1}, 12288, v{hT+1}")
            A(f"v_lshl_add_u32 v{hAD+i}, v{hT}, 4, v{hT+1}")
        A("s_mul_i32 s75, s3, 1280")
        A(f"s_mul_i32 s76, {sJ}, {80*12288}")
        A(f"s_mul_i32 s77, {sG}, 384")
        A("s_add_u32 s76, s76, s77")
        A(f"s_mul_i32 s77, s3, {8*12288}")
        A("s_add_u32 s76, s76, s77")
        A("s_mul_i32 s83, s3, 3072")
        A(f"s_add_u32 s83, s83, {L_SBUF}")
        A("s_waitcnt lgkmcnt(0)")
        srd(S_X, 4, 5120)
        srd(S_WQ, 10, 640 * 6144 * 2)
        for u in range(5):
            A(f"buffer_load_dword v{hX+u}, v{hL4}, {S_X}, s75 offen offset:{256*u}")
        for blk in range(5):
            for i in range(3):
                A(f"s_add_u32 m0, s83, {blk*4*3072 + 1024*i}")
                A(f"buffer_load_dwordx4 v{hAD+i}, {S_WQ}, s76 offen nt lds")
            A(f"s_add_u32 s76, s76, {32*12288}")
        srd(S_DBG, 24, 256)
        srd(S_WS, 26, WS_SIZE)
        A("s_lshl_b32 s76, s3, 5")
        A(f"s_add_u32 s76, s76, {sG}")
        A("s_lshl_b32 s76, s76, 8")
        A(f"s_add_u32 s76, s76, {CT_OFF}")
        A(f"s_cmp_eq_u32 {sJ}, 0")
        A(f"s_cselect_b32 s76, s76, {OOB}")
        A("s_mov_b64 exec, 1")
        A(f"buffer_store_dword v{hZ}, v{hZ}, {S_WS}, s76 offen sc1")
        A("s_mov_b64 exec, -1")
        A("s_barrier")
        A("s_waitcnt vmcnt(16)")
        stamp(1, "start")
        layernorm([hX + u for u in range(5)], hX, hF, hT)
        A(f"v_add_u32 v{hAD}, s75, v{hL4}")
        for u in range(5):
            A(f"ds_write_b32 v{hAD}, v{hX+u} offset:{L_XN+256*u}")
        A(f"buffer_load_dwordx2 v[{hNC}:{hNC+1}], v{hZ}, {S_DBG}, 0 offen sc1")
        A(f"v_lshrrev_b32 v{hT}, 4, v0")
        A(f"v_and_b32 v{hT+1}, 3, v0")
        A(f"v_mul_u32_u24 v{hAD}, 1280, v{hT+1}")
        A(f"v_lshl_add_u32 v{hAD}, v{hT}, 4, v{hAD}")
        A(f"s_mul_i32 s77, {sJ}, 160")
        A(f"v_add_u32 v{hAD}, s77, v{hAD}")
        A(f"v_lshlrev_b32 v{hT}, 3, v{hT}")
        A(f"v_bfe_u32 v{hT+2}, v0, 2, 2")
        A(f"v_add_u32 v{hT}, v{hT}, v{hT+2}")
        A(f"v_mul_u32_u24 v{hAD+1}, 384, v{hT}")
        A(f"v_lshl_add_u32 v{hAD+1}, v{hT+1}, 3, v{hAD+1}")
        A("s_mul_i32 s77, s3, 96")
        A(f"s_add_u32 s77, s77, {L_SBUF}")
        A(f"v_add_u32 v{hAD+1}, s77, v{hAD+1}")
        A("s_mul_i32 s77, s3, 192")
        A(f"v_add_u32 v{hAD+2}, s77, v{hL4}")
        A("s_waitcnt vmcnt(2) lgkmcnt(0)")
        stamp(2, "start")
        lds_inc(hZ, hONE, C_SYNC0)
        lds_wait(hZ, hT, C_SYNC0, 4)
        stamp(3, "start")
        for t in range(5):
            A(f"ds_read_b128 v[{hA+4*t}:{hA+4*t+3}], v{hAD} offset:{L_XN+64*t}")
        for t in range(5):
            for tt in range(3):
                for hf in range(2):
                    r = hW1 + 12 * t + 4 * tt + 2 * hf
                    A(f"ds_read_b64_tr_b16 v[{r}:{r+1}], v{hAD+1} offset:{(32*t+4*hf)*384+32*tt}")
        for t in range(5):
            A(f"s_waitcnt lgkmcnt({min(15, 6*(4-t))})")
            for tt in range(3):
                r = hW1 + 12 * t + 4 * tt
                c = "0" if t == 0 else f"v[{hD+4*tt}:{hD+4*tt+3}]"
                A(f"v_mfma_f32_16x16x32_bf16 v[{hD+4*tt}:{hD+4*tt+3}], v[{hA+4*t}:{hA+4*t+3}], v[{r}:{r+3}], {c}")
        A("s_mov_b64 exec, 0xffff")
        for tt in range(3):
            for b in range(4):
                A(f"ds_write_b32 v{hAD+2}, v{hD+4*tt+b} offset:{L_RED+768*b+64*tt}")
        A("s_mov_b64 exec, -1")
        A("s_lshl_b32 s76, s2, 11")
        A("s_lshl_b32 s77, s3, 10")
        A("s_add_u32 s76, s76, s77")
        A("s_mul_i32 s78, s3, 768")
        A(f"v_mul_u32_u24 v{hAD}, 12, v0")
        A(f"v_add_u32 v{hAD}, s78, v{hAD}")
        A("s_waitcnt lgkmcnt(0)")
        lds_inc(hZ, hONE, C_SYNC1)
        lds_wait(hZ, hT, C_SYNC1, 4)
        for e in range(3):
            A(f"ds_read_b32 v{hD+e}, v{hAD} offset:{L_RED+4*e}")
        A("s_waitcnt vmcnt(0)")
        get_tag("p")
        A(f"v_mov_b32 v{hD+3}, v{hNC}")
        A("s_waitcnt lgkmcnt(0)")
        if not noqx:
            A(f"buffer_store_dwordx4 v[{hD}:{hD+3}], v{hL16}, {S_WS}, s76 offen sc1")
        stamp(4, "start")
        A("s_branch L_q_gather")
        A.label("L_q_consumer")
        A("s_waitcnt lgkmcnt(0)")
        srd(S_WS, 26, WS_SIZE)
        srd(S_DBG, 24, 256)
        srd(S_X, 4, 5120)
        srd(S_WQ, 10, 640 * 6144 * 2)
        A("s_lshl_b32 s77, s2, 2")
        A("s_add_u32 s77, s77, s3")
        A("s_cmp_lg_u32 s77, 4")
        A("s_cbranch_scc1 L_notag")
        A("s_memrealtime s[78:79]")
        A("s_waitcnt lgkmcnt(0)")
        A("s_or_b32 s78, s78, 1")
        A("s_or_b32 s79, s79, 0x80000000")
        A(f"v_mov_b32 v{hD}, s78")
        A(f"v_mov_b32 v{hD+1}, s79")
        A(f"v_mov_b32 v{hD+2}, 0")
        A(f"v_mov_b32 v{hD+3}, 0")
        A("s_mov_b64 exec, 1")
        A(f"buffer_atomic_cmpswap_x2 v[{hD}:{hD+3}], v{hZ}, {S_DBG}, 0 offen")
        A("s_mov_b64 exec, -1")
        A.label("L_notag")
        A("s_barrier")
        lds_inc(hZ, hONE, C_SYNC1)
        for k in range(qdelay):
            A("s_sleep 64")
        A(f"buffer_load_dwordx2 v[{hNC}:{hNC+1}], v{hZ}, {S_DBG}, 0 offen sc1")
        A("s_waitcnt vmcnt(0)")
        get_tag("c")
        A.label("L_q_gather")
        srd(S_WO, 12, 6144 * 640 * 2)
        srd(S_WG, 16, 640 * 1536 * 2)
        srd(S_WU, 18, 640 * 1536 * 2)
        srd(S_WD, 20, 1536 * 640 * 2)
        srd(S_OUT, 22, 5120)
        A("s_mov_b64 exec, 1")
        A(f"ds_write_b64 v{hZ}, v[{hNC}:{hNC+1}] offset:{L_TAG}")
        A("s_mov_b64 exec, -1")
        A(f"s_lshl_b32 s76, {sH}, 14")
        A("s_lshl_b32 s77, s3, 10")
        A("s_add_u32 s76, s76, s77")
        for k in range(1, 4):
            A(f"s_add_u32 s{76+k}, s76, {4096*k}")
        A("s_mul_i32 s80, s3, 384")
        A(f"v_mul_u32_u24 v{hAD}, 6, v0")
        A(f"v_add_u32 v{hAD}, s80, v{hAD}")
        stamp(1)
        if not noqx and qlight:
            A(f"v_lshlrev_b32 v{hAD+1}, 12, v0")
            A(f"s_mov_b32 s81, {spin_g}")
            A("s_mov_b64 exec, 0xf")
            A.label("L_qlight")
            A(f"buffer_load_dword v{hT}, v{hAD+1}, {S_WS}, s76 offen offset:1020 sc1")
            A("s_waitcnt vmcnt(0)")
            A(f"v_cmp_ne_u32 vcc, v{hT}, v{hNC}")
            A("s_cbranch_vccz L_qlightd")
            A(f"s_sleep {qsleep}")
            A("s_sub_u32 s81, s81, 1")
            A("s_cmp_lg_u32 s81, 0")
            A("s_cbranch_scc1 L_qlight")
            A.label("L_qlightd")
            A("s_mov_b64 exec, -1")
        if not noqx:
            Lp, Ld = A.newlabel("L_poll"), A.newlabel("L_pdone")
            dl = [f"buffer_load_dwordx4 v[{hG+4*u}:{hG+4*u+3}], v{hL16}, {S_WS}, s{76+u} offen sc1" for u in range(4)]
            A(f"s_mov_b32 s81, {spin_g}")
            for l in dl:
                A(l)
            A.label(Lp)
            A("s_waitcnt vmcnt(0)")
            for u in range(4):
                A(f"v_cmp_ne_u32 s[{4+2*u}:{5+2*u}], v{hG+4*u+3}, v{hNC}")
            A("s_or_b64 s[38:39], s[4:5], s[6:7]")
            A("s_or_b64 s[38:39], s[38:39], s[8:9]")
            A("s_or_b64 s[38:39], s[38:39], s[10:11]")
            A(f"s_cbranch_scc0 {Ld}")
            A(f"s_sleep {qsleep}")
            for u, l in enumerate(dl):
                A(f"s_mov_b64 exec, s[{4+2*u}:{5+2*u}]")
                A(l)
            A("s_mov_b64 exec, -1")
            A("s_sub_u32 s81, s81, 1")
            A("s_cmp_lg_u32 s81, 0")
            A(f"s_cbranch_scc1 {Lp}")
            A("s_waitcnt vmcnt(0)")
            A.label(Ld)
            stamp(6, "start")
            for e in range(3):
                A(f"v_add_f32 v{hG+e}, v{hG+e}, v{hG+4+e}")
                A(f"v_add_f32 v{hG+8+e}, v{hG+8+e}, v{hG+12+e}")
            for e in range(3):
                A(f"v_add_f32 v{hG+e}, v{hG+e}, v{hG+8+e}")
        A(f"v_cvt_pk_bf16_f32 v{hG+4}, v{hG}, v{hG+1}")
        A(f"v_cvt_pk_bf16_f32 v{hG+5}, v{hG+2}, v{hG+2}")
        A(f"ds_write_b16 v{hAD}, v{hG+4} offset:{L_QL}")
        A(f"ds_write_b16_d16_hi v{hAD}, v{hG+4} offset:{L_QL+2}")
        A(f"ds_write_b16 v{hAD}, v{hG+5} offset:{L_QL+4}")
        A("s_waitcnt lgkmcnt(0)")
        lds_inc(hZ, hONE, C_QRDY)
    else:
        for i in range(3):
            A(f"v_add_u32 v{hT}, {64*i}, v0")
            A(f"v_mul_u32_u24 v{hT+1}, 2731, v{hT}")
            A(f"v_lshrrev_b32 v{hT+1}, 16, v{hT+1}")
            A(f"v_mul_u32_u24 v{hT+2}, 24, v{hT+1}")
            A(f"v_sub_u32 v{hT}, v{hT}, v{hT+2}")
            A(f"v_mul_u32_u24 v{hT+1}, 12288, v{hT+1}")
            A(f"v_lshl_add_u32 v{hAD+i}, v{hT}, 4, v{hT+1}")
        A("s_mul_i32 s75, s3, 1280")
        A(f"s_mul_i32 s76, {sJ}, {80*12288}")
        A(f"s_mul_i32 s77, {sG}, 384")
        A("s_add_u32 s76, s76, s77")
        A(f"s_mul_i32 s77, s3, {8*12288}")
        A("s_add_u32 s76, s76, s77")
        A("s_mul_i32 s83, s3, 3072")
        A("s_waitcnt lgkmcnt(0)")
        srd(S_X, 4, 5120)
        srd(S_WQ, 10, 640 * 6144 * 2)
        for u in range(5):
            A(f"buffer_load_dword v{hX+u}, v{hL4}, {S_X}, s75 offen offset:{256*u}")
        for blk in range(3):
            if blk == 2:
                A("s_cmp_lt_u32 s3, 2")
                A(f"s_cselect_b32 s76, s76, {OOB}")
            for i in range(3):
                A(f"s_add_u32 m0, s83, {blk*4*3072 + 1024*i}")
                A(f"buffer_load_dwordx4 v{hAD+i}, {S_WQ}, s76 offen nt lds")
            A(f"s_add_u32 s76, s76, {32*12288}")
        srd(S_DBG, 24, 256)
        srd(S_WS, 26, WS_SIZE)
        A("s_add_u32 s77, s2, s3")
        A("s_cmp_lg_u32 s77, 0")
        A("s_cbranch_scc1 L_notag")
        A("s_memrealtime s[78:79]")
        A("s_waitcnt lgkmcnt(0)")
        A("s_or_b32 s78, s78, 1")
        A("s_or_b32 s79, s79, 0x80000000")
        A(f"v_mov_b32 v{hD}, s78")
        A(f"v_mov_b32 v{hD+1}, s79")
        A(f"v_mov_b32 v{hD+2}, 0")
        A(f"v_mov_b32 v{hD+3}, 0")
        A("s_mov_b64 exec, 1")
        A(f"buffer_atomic_cmpswap_x2 v[{hD}:{hD+3}], v{hZ}, {S_DBG}, 0 offen")
        A("s_mov_b64 exec, -1")
        A.label("L_notag")
        A("s_lshl_b32 s76, s3, 5")
        A(f"s_add_u32 s76, s76, {sG}")
        A("s_lshl_b32 s76, s76, 8")
        A(f"s_add_u32 s76, s76, {CT_OFF}")
        A(f"s_cmp_eq_u32 {sJ}, 0")
        A(f"s_cselect_b32 s76, s76, {OOB}")
        A("s_mov_b64 exec, 1")
        A(f"buffer_store_dword v{hZ}, v{hZ}, {S_WS}, s76 offen sc1")
        A("s_mov_b64 exec, -1")
        for k in range(4):
            A(f"v_mov_b32 v{hG+k}, 0")
        A(f"ds_write_b128 v{hZ}, v[{hG}:{hG+3}] offset:{L_CNT}")
        A(f"ds_write_b32 v{hZ}, v{hG} offset:{L_CNT+16}")
        A("s_waitcnt lgkmcnt(0)")
        A("s_barrier")
        srd(S_WO, 12, 6144 * 640 * 2)
        srd(S_WG, 16, 640 * 1536 * 2)
        srd(S_WU, 18, 640 * 1536 * 2)
        srd(S_WD, 20, 1536 * 640 * 2)
        srd(S_OUT, 22, 5120)
        A("s_waitcnt vmcnt(10)")
        stamp(1, "start")
        layernorm([hX + u for u in range(5)], hX, hF, hT)
        A(f"v_add_u32 v{hAD}, s75, v{hL4}")
        for u in range(5):
            A(f"ds_write_b32 v{hAD}, v{hX+u} offset:{L_XN+256*u}")
        A(f"buffer_load_dwordx2 v[{hNC}:{hNC+1}], v{hZ}, {S_DBG}, 0 offen sc1")
        A(f"v_lshrrev_b32 v{hT}, 4, v0")
        A(f"v_and_b32 v{hT+1}, 3, v0")
        A(f"v_mul_u32_u24 v{hAD}, 1280, v{hT+1}")
        A(f"v_lshl_add_u32 v{hAD}, v{hT}, 3, v{hAD}")
        A(f"s_mul_i32 s77, {sJ}, 160")
        A(f"v_add_u32 v{hAD}, s77, v{hAD}")
        A(f"v_bfe_u32 v{hT+2}, v0, 2, 2")
        A(f"v_lshl_add_u32 v{hT+3}, v{hT}, 2, v{hT+2}")
        A(f"v_mul_u32_u24 v{hAD+1}, 384, v{hT+3}")
        A(f"v_lshl_add_u32 v{hAD+1}, v{hT+1}, 3, v{hAD+1}")
        A("s_mul_i32 s77, s3, 96")
        A(f"v_add_u32 v{hAD+1}, s77, v{hAD+1}")
        A("s_mul_i32 s77, s3, 192")
        A(f"v_add_u32 v{hAD+2}, s77, v{hL4}")
        A("s_waitcnt vmcnt(2) lgkmcnt(0)")
        stamp(2, "start")
        lds_inc(hZ, hONE, C_SYNC0)
        lds_wait(hZ, hT, C_SYNC0, 4)
        stamp(3, "start")
        for t in range(5):
            A(f"ds_read_b64 v[{hA+2*t}:{hA+2*t+1}], v{hAD} offset:{L_XN+32*t}")
        for tt in range(3):
            for t in range(5):
                r = hB + 2 * (tt * 5 + t)
                A(f"ds_read_b64_tr_b16 v[{r}:{r+1}], v{hAD+1} offset:{16*384*t+32*tt}")
        for tt in range(3):
            A(f"s_waitcnt lgkmcnt({10-5*tt})")
            for t in range(5):
                r = hB + 2 * (tt * 5 + t)
                c = "0" if t == 0 else f"v[{hD+4*tt}:{hD+4*tt+3}]"
                A(f"v_mfma_f32_16x16x16_bf16 v[{hD+4*tt}:{hD+4*tt+3}], v[{hA+2*t}:{hA+2*t+1}], v[{r}:{r+1}], {c}")
        A("s_mov_b64 exec, 0xffff")
        for tt in range(3):
            for b in range(4):
                A(f"ds_write_b32 v{hAD+2}, v{hD+4*tt+b} offset:{L_RED+768*b+64*tt}")
        A("s_mov_b64 exec, -1")
        A("s_lshl_b32 s76, s2, 12")
        A("s_lshl_b32 s77, s3, 10")
        A("s_add_u32 s76, s76, s77")
        A("s_mul_i32 s78, s3, 768")
        A(f"v_add_u32 v{hAD}, s78, v{hL16}")
        A("s_waitcnt lgkmcnt(0)")
        lds_inc(hZ, hONE, C_SYNC1)
        lds_wait(hZ, hT, C_SYNC1, 4)
        A(f"ds_read_b128 v[{hD}:{hD+3}], v{hAD} offset:{L_RED}")
        A("s_waitcnt lgkmcnt(0)")
        A("s_mov_b32 exec_hi, 0xffff")
        if not noqx:
            A(f"buffer_store_dwordx4 v[{hD}:{hD+3}], v{hL16}, {S_WS}, s76 offen sc1")
        A("s_mov_b32 exec_hi, -1")
        stamp(4, "start")
        A(f"s_lshl_b32 s78, {sH}, 15")
        A("s_add_u32 s78, s78, s77")
        A(f"v_lshlrev_b32 v{hAD+1}, 12, v0")
        A("s_mul_i32 s77, s3, 384")
        A(f"v_lshl_add_u32 v{hAD}, v0, 3, s77")
        A("s_waitcnt vmcnt(0)")
        stamp(5, "start")
        A(f"s_mov_b32 s81, {spin_g}")
        A.label("L_gf")
        A(f"v_readfirstlane_b32 s79, v{hNC}")
        A(f"v_readfirstlane_b32 s80, v{hNC+1}")
        A("s_cmp_eq_u32 s79, 0")
        A("s_cselect_b32 s80, 0, s80")
        A("s_cmp_lg_u32 s80, 0")
        A("s_cbranch_scc1 L_gfd")
        A("s_sleep 2")
        A(f"buffer_load_dwordx2 v[{hNC}:{hNC+1}], v{hZ}, {S_DBG}, 0 offen sc1")
        A("s_waitcnt vmcnt(0)")
        A("s_sub_u32 s81, s81, 1")
        A("s_cmp_lg_u32 s81, 0")
        A("s_cbranch_scc1 L_gf")
        A.label("L_gfd")
        A("s_mov_b64 exec, 1")
        if not noqx:
            A(f"buffer_store_dwordx2 v[{hNC}:{hNC+1}], v{hZ}, {S_WS}, s76 offen offset:768 sc1")
        A(f"ds_write_b64 v{hZ}, v[{hNC}:{hNC+1}] offset:{L_TAG}")
        A("s_mov_b64 exec, -1")
        stamp(1)
        if not noqx:
            poll_tagged([f"buffer_load_dwordx2 v[{hT}:{hT+1}], v{hAD+1}, {S_WS}, s78 offen offset:768 sc1"], [hT], hNC, hT + 2,
                        sleep=qsleep, mask="0xff")
            stamp(6, "start")
            A("s_mov_b32 exec_hi, 0xffff")
            for jj in range(8):
                A(f"buffer_load_dwordx4 v[{hG+4*jj}:{hG+4*jj+3}], v{hL16}, {S_WS}, s78 offen sc1")
                A("s_add_u32 s78, s78, 4096")
            for jj in range(1, 8):
                A(f"s_waitcnt vmcnt({7-jj})")
                for e in range(4):
                    A(f"v_add_f32 v{hG+e}, v{hG+e}, v{hG+4*jj+e}")
        A("s_mov_b32 exec_hi, 0xffff")
        A(f"v_cvt_pk_bf16_f32 v{hG+4}, v{hG}, v{hG+1}")
        A(f"v_cvt_pk_bf16_f32 v{hG+5}, v{hG+2}, v{hG+3}")
        A(f"ds_write_b64 v{hAD}, v[{hG+4}:{hG+5}] offset:{L_QL}")
        A("s_mov_b32 exec_hi, -1")
        A("s_waitcnt lgkmcnt(0)")
        lds_inc(hZ, hONE, C_QRDY)
    stamp(2)
    stamp(7, "start")
    if prio:
        A("s_setprio 0")

    def tr_addr(dst, rowbytes, base, k16=False):
        A(f"v_lshrrev_b32 v{hT}, 4, v0")
        A(f"v_lshlrev_b32 v{hT}, {2 if k16 else 3}, v{hT}")
        A(f"v_bfe_u32 v{hT+1}, v0, 2, 2")
        A(f"v_add_u32 v{hT}, v{hT}, v{hT+1}")
        A(f"v_mul_u32_u24 v{dst}, {rowbytes}, v{hT}")
        A(f"v_and_b32 v{hT+1}, 3, v0")
        A(f"v_lshl_add_u32 v{dst}, v{hT+1}, 3, v{dst}")
        A(f"v_add_u32 v{dst}, {base}, v{dst}")

    def warm_code(l0, l1, tmp):
        if not warm:
            return
        lab = A.newlabel("L_pc")
        A("s_getpc_b64 s[20:21]")
        A.label(lab)
        A(f"s_add_u32 s20, s20, {l0}-{lab}")
        A("s_addc_u32 s21, s21, 0")
        A(f"v_lshlrev_b32 v{tmp}, 7, v0")
        A(f"v_min_u32 v{tmp}, ({l1}-{l0}-4)&~3, v{tmp}")
        A(f"global_load_dword v{tmp}, v{tmp}, s[20:21]")

    def warm_icache(tag):
        if not pads:
            return
        A("s_mov_b64 exec, 0")
        A(f"s_cbranch_execz L_pad0_{tag}")
        A.label(f"L_padret_{tag}")
        A("s_mov_b64 exec, -1")

    def pack24(o, src):
        for i in range(3):
            A(f"v_perm_b32 v{o+i}, v{src+i}, v{src+3}, s{44+i}")

    def set_sel():
        for i in range(3):
            A(f"s_mov_b32 s{44+i}, 0x0706050{3-i}")

    def split_halves(d):
        A(f"v_cndmask_b32 v{d}, v{d}, v{d+2}, s[34:35]")
        A(f"v_cndmask_b32 v{d+1}, v{d+1}, v{d+3}, s[34:35]")
        A(f"v_mov_b32 v{d+2}, v{hNC}")
        A(f"v_mov_b32 v{d+3}, v{hNC+1}")

    hGO = 13
    A(f"v_and_b32 v{hT}, 15, v0")
    A(f"v_lshlrev_b32 v{hGO}, 5, v{hT}")
    A(f"v_and_b32 v{hT}, 16, v0")
    A(f"v_add_u32 v{hGO}, v{hGO}, v{hT}")
    A("v_cmp_lt_u32 s[34:35], 15, v0")
    A("s_mul_i32 s83, s3, 12288")
    rH, rC = "s100", "s101"
    if xr:
        A(f"s_sub_u32 {rH}, {sG}, 24")
        A(f"s_lshl_b32 {rH}, {rH}, 3")
        A(f"s_add_u32 {rH}, {rH}, {sJ}")
        A(f"s_cmp_ge_u32 {sG}, 24")
        A("s_cbranch_scc1 L_role_red")
        A(f"s_lshl_b32 {rH}, {sJ}, 2")
        A(f"s_add_u32 {rH}, {rH}, {sG}")
        A(f"s_sub_u32 {rH}, {rH}, 20")
        A(f"s_cmp_ge_u32 {sG}, 20")
        A("s_cbranch_scc1 L_role_ffn")
        A(f"s_mul_i32 {rH}, {sG}, 13")
        A(f"s_lshr_b32 {rH}, {rH}, 6")
        A(f"s_mul_i32 {rC}, {rH}, 5")
        A(f"s_sub_u32 {rC}, {sG}, {rC}")
        A(f"s_lshl_b32 {rH}, {rH}, 3")
        A(f"s_add_u32 {rH}, {rH}, {sJ}")
    else:
        A(f"s_lshl_b32 {rH}, {sG}, 1")
        A(f"s_add_u32 {rH}, {rH}, {sJ}")
        A(f"s_sub_u32 {rH}, {rH}, 6")
        A(f"s_cmp_gt_u32 {sJ}, 5")
        A("s_cbranch_scc1 L_role_red")
        A(f"s_mov_b32 {rH}, {sG}")
        A(f"s_mov_b32 {rC}, {sJ}")
        A(f"s_cmp_eq_u32 {sJ}, 5")
        A("s_cbranch_scc1 L_role_ffn")

    A(f"s_mul_i32 s32, {rH}, {10240 if ypc else 20480}")
    A(f"s_lshl_b32 s77, {rC}, {11 if ypc else 12}")
    A("s_add_u32 s32, s32, s77")
    A(f"s_lshl_b32 s77, s3, {9 if ypc else 10}")
    set_sel()
    A("s_add_u32 s32, s32, s77")
    A(f"s_add_u32 s32, s32, {YP_OFF}")
    if touch_y:
        for k in range(4):
            A(f"v_mov_b32 v{hG+k}, 0")
        A(f"buffer_store_dwordx4 v[{hG}:{hG+3}], v{hL16}, {S_WS}, s32 offen sc1")
    if not noweights:
        A(f"v_lshrrev_b32 v{hAD}, 4, v0")
        A(f"v_mul_u32_u24 v{hAD}, 1280, v{hAD}")
        A(f"v_and_b32 v{hT}, 15, v0")
        A(f"v_lshl_add_u32 v{hAD}, v{hT}, 4, v{hAD}")
        A(f"s_mul_i32 s76, {rH}, {192*1280}")
        A(f"s_lshl_b32 s77, {rC}, 8")
        A("s_add_u32 s76, s76, s77")
        A(f"s_mul_i32 s77, s3, {48*1280}")
        A("s_add_u32 s76, s76, s77")
        if NL > 4:
            lds_wait(hZ, hT, C_SFREE, 4, sleep=16)
        for u in range(12):
            A(f"s_add_u32 m0, s83, {1024*u}")
            A(f"buffer_load_dwordx4 v{hAD}, {S_WO}, s76 offen nt lds")
            A(f"s_add_u32 s76, s76, {4*1280}")
        A("s_lshl_b32 s77, s3, 6")
        tr_addr(hAD + 1, 256, "s77")
        A("s_waitcnt vmcnt(0)")
        lds_inc(hZ, hONE, C_WSYNC)
        lds_wait(hZ, hT, C_WSYNC, 4, sleep=4)
        for tt in range(2):
            for t in range(6):
                for hf in range(2):
                    r = hW1 + 4 * (tt * 6 + t) + 2 * hf
                    A(f"ds_read_b64_tr_b16 v[{r}:{r+1}], v{hAD+1} offset:{(32*t+4*hf)*256+32*tt}")
    hAF, hOD = 122, 124
    A(f"v_and_b32 v{hT}, 3, v0")
    A(f"v_lshrrev_b32 v{hT+1}, 4, v0")
    A(f"v_mul_u32_u24 v{hAF}, 384, v{hT}")
    A(f"v_lshl_add_u32 v{hAF}, v{hT+1}, 4, v{hAF}")
    A(f"v_lshrrev_b32 v{hT}, 3, v0")
    A(f"v_mul_u32_u24 v{hT}, 3, v{hT}")
    A(f"v_and_b32 v{hT+1}, 7, v0")
    A(f"v_lshlrev_b32 v{hT+1}, 4, v{hT+1}")
    A("s_mul_i32 s76, s3, 384")
    A(f"v_add_u32 v{hT+1}, s76, v{hT+1}")
    for r in range(3):
        A(f"v_add_u32 v{hT+2}, {r}, v{hT}")
        A(f"v_lshrrev_b32 v{hT+3}, 3, v{hT+2}")
        A(f"v_lshlrev_b32 v{hT+3}, 7, v{hT+3}")
        A(f"v_and_b32 v{hT+2}, 7, v{hT+2}")
        A(f"v_lshlrev_b32 v{hT+2}, 1, v{hT+2}")
        A(f"v_add3_u32 v{hOD+r}, v{hT+1}, v{hT+2}, v{hT+3}")
    A("s_lshl_b32 s76, s3, 5")
    A(f"s_add_u32 s76, s76, {rH}")
    A("s_lshl_b32 s76, s76, 14")
    A(f"s_add_u32 s76, s76, {OP_OFF}")
    for k in range(1, 4):
        A(f"s_add_u32 s{76+k}, s76, {4096*k}")
    A(f"v_and_b32 v{hT}, 1, v0")
    A(f"v_cmp_ne_u32 s[36:37], 0, v{hT}")
    if opc:
        A(f"v_mov_b32 v{hA+4}, v{hNC}")
        A(f"v_and_b32 v{hA+5}, 7, v0")
        A(f"v_lshlrev_b32 v{hA+5}, 11, v{hA+5}")
    warm_code("L_tail_wo", "L_role_red", hT + 5)
    A("s_waitcnt lgkmcnt(0)")
    warm_icache("wo")
    A("s_barrier")
    A.label("L_tail_wo")
    if pads:
        A.pads_begin("L_pad0_wo", pads)
    stamp(3)
    if opc:
        hML, hTW = hA, hA + 4
        Lp, Ld = A.newlabel("L_poll"), A.newlabel("L_pdone")
        A.pads_pause(True)
        dl = [f"buffer_load_dwordx4 v[{hG+4*jj}:{hG+4*jj+3}], v{hL16}, {S_WS}, s{76+(jj>>1)} offen offset:{2048*(jj&1)} sc1" for jj in range(8)]
        ml = f"buffer_load_dwordx4 v[{hML}:{hML+3}], v{hTW+1}, {S_WS}, s76 offen offset:1024 sc1"
        A(f"s_mov_b32 s81, {spin_g}")
        for l in dl:
            A(l)
        A(ml)
        A.label(Lp)
        A("s_waitcnt vmcnt(0)")
        for jj in range(8):
            A(f"v_cmp_ne_u32 s[{4+2*jj}:{5+2*jj}], v{hG+4*jj+3}, v{hTW}")
        A(f"v_cmp_ne_u64 s[20:21], v[{hML+2}:{hML+3}], v[{hNC}:{hNC+1}]")
        A("s_or_b64 s[38:39], s[4:5], s[6:7]")
        for i in range(2, 9):
            A(f"s_or_b64 s[38:39], s[38:39], s[{4+2*i}:{5+2*i}]")
        A(f"s_cbranch_scc0 {Ld}")
        if psleep:
            A(f"s_sleep {psleep}")
        for i, l in enumerate(dl + [ml]):
            A(f"s_mov_b64 exec, s[{4+2*i}:{5+2*i}]")
            A(l)
        A("s_mov_b64 exec, -1")
        A("s_sub_u32 s81, s81, 1")
        A("s_cmp_lg_u32 s81, 0")
        A(f"s_cbranch_scc1 {Lp}")
        A("s_waitcnt vmcnt(0)")
        A.label(Ld)
        A.pads_pause(False)
        stamp(4)
        A(f"v_max_f32_dpp v{hT}, v{hML}, v{hML} quad_perm:[1,0,3,2] {DPP}")
        A(f"v_max_f32_dpp v{hT}, v{hT}, v{hT} quad_perm:[2,3,0,1] {DPP}")
        A(f"v_max_f32_dpp v{hT}, v{hT}, v{hT} row_half_mirror {DPP}")
        A(f"v_sub_f32 v{hT}, v{hML}, v{hT}")
        A(f"v_mul_f32 v{hT}, {LOG2E}, v{hT}")
        A(f"v_exp_f32 v{hT}, v{hT}")
        A(f"v_mul_f32 v{hT+1}, v{hT}, v{hML+1}")
        A(f"v_add_f32_dpp v{hT+1}, v{hT+1}, v{hT+1} quad_perm:[1,0,3,2] {DPP}")
        A(f"v_add_f32_dpp v{hT+1}, v{hT+1}, v{hT+1} quad_perm:[2,3,0,1] {DPP}")
        A(f"v_add_f32_dpp v{hT+1}, v{hT+1}, v{hT+1} row_half_mirror {DPP}")
        A(f"v_rcp_f32 v{hT+1}, v{hT+1}")
        A(f"v_mul_f32 v{hT}, v{hT}, v{hT+1}")
        for jj in range(8):
            A(f"v_readlane_b32 s{4+jj}, v{hT}, {jj}")
        for r in range(3):
            A(f"v_mul_f32 v{hT+2+r}, s4, v{hG+r}")
        for jj in range(1, 8):
            for r in range(3):
                A(f"v_fmac_f32 v{hT+2+r}, s{4+jj}, v{hG+4*jj+r}")
    else:
        g0 = lambda jj: hG + 4 * jj
        g1 = lambda jj: hA + 4 * jj
        lt = []
        for jj in range(8):
            for k, g in enumerate((g0(jj), g1(jj))):
                lt.append(f"buffer_load_dwordx4 v[{g}:{g+3}], v{hL16}, {S_WS}, s{76+(jj>>1)} offen offset:{2048*(jj&1)+1024*k} sc1")
        if selpoll:
            poll_sel([(lt[2*jj:2*jj+2], [g0(jj) + 2, g1(jj) + 2]) for jj in range(8)], hNC, sleep=psleep)
        else:
            poll_tagged(lt, [g0(jj) + 2 for jj in range(8)] + [g1(jj) + 2 for jj in range(8)], hNC, hT, sleep=psleep)
        stamp(4)
        hMx, hWt = hB, hB + 8
        for jj in range(8):
            A(f"v_mov_b32_dpp v{hMx+jj}, v{g1(jj)+1} quad_perm:[1,0,3,2] {DPP}")
        for jj in range(8):
            A(f"v_cndmask_b32 v{hWt+jj}, v{g1(jj)+1}, v{hMx+jj}, s[36:37]")
            A(f"v_cndmask_b32 v{hMx+jj}, v{hMx+jj}, v{g1(jj)+1}, s[36:37]")
        A(f"v_max3_f32 v{hT}, v{hWt}, v{hWt+1}, v{hWt+2}")
        A(f"v_max3_f32 v{hT+1}, v{hWt+3}, v{hWt+4}, v{hWt+5}")
        A(f"v_max3_f32 v{hT}, v{hT}, v{hWt+6}, v{hWt+7}")
        A(f"v_max_f32 v{hT}, v{hT}, v{hT+1}")
        for jj in range(8):
            A(f"v_sub_f32 v{hWt+jj}, v{hWt+jj}, v{hT}")
        for jj in range(8):
            A(f"v_mul_f32 v{hWt+jj}, {LOG2E}, v{hWt+jj}")
        for jj in range(8):
            A(f"v_exp_f32 v{hWt+jj}, v{hWt+jj}")
        oreg = lambda jj, r: (g0(jj), g0(jj) + 1, g1(jj))[r]
        A(f"v_mul_f32 v{hT+1}, v{hWt}, v{hMx}")
        for r in range(3):
            A(f"v_mul_f32 v{hT+2+r}, v{hWt}, v{oreg(0, r)}")
        for jj in range(1, 8):
            A(f"v_fmac_f32 v{hT+1}, v{hWt+jj}, v{hMx+jj}")
            for r in range(3):
                A(f"v_fmac_f32 v{hT+2+r}, v{hWt+jj}, v{oreg(jj, r)}")
        A(f"v_rcp_f32 v{hT}, v{hT+1}")
        for r in range(3):
            A(f"v_mul_f32 v{hT+2+r}, v{hT+2+r}, v{hT}")
    A(f"v_cvt_pk_bf16_f32 v{hT}, v{hT+2}, v{hT+3}")
    A(f"v_cvt_pk_bf16_f32 v{hT+1}, v{hT+4}, v{hT+4}")
    A(f"ds_write_b16 v{hOD}, v{hT} offset:{L_OL}")
    A(f"ds_write_b16_d16_hi v{hOD+1}, v{hT} offset:{L_OL}")
    A(f"ds_write_b16 v{hOD+2}, v{hT+1} offset:{L_OL}")
    A("s_waitcnt lgkmcnt(0)")
    A("s_barrier")
    for t in range(6):
        A(f"ds_read_b128 v[{hA+4*t}:{hA+4*t+3}], v{hAF} offset:{L_OL+64*t}")
    for t in range(6):
        A(f"s_waitcnt lgkmcnt({5-t})")
        for tt in range(2):
            r = hW1 + 4 * (tt * 6 + t)
            c = "0" if t == 0 else f"v[{hD+4*tt}:{hD+4*tt+3}]"
            A(f"v_mfma_f32_16x16x32_bf16 v[{hD+4*tt}:{hD+4*tt+3}], v[{hA+4*t}:{hA+4*t+3}], v[{r}:{r+3}], {c}")
    A("s_mov_b32 exec_hi, 0")
    if ypc:
        A(f"v_mov_b32 v{hD+11}, v{hNC}")
        for e in range(4):
            A(f"v_cndmask_b32 v{hD+e}, v{hD+e}, v{hD+4+e}, s[34:35]")
        pack24(hD + 8, hD)
        A(f"buffer_store_dwordx4 v[{hD+8}:{hD+11}], v{hL16}, {S_WS}, s32 offen sc1")
    else:
        for tt in range(2):
            split_halves(hD + 4 * tt)
            A(f"buffer_store_dwordx4 v[{hD+4*tt}:{hD+4*tt+3}], v{hGO}, {S_WS}, s32 offen offset:{512*tt} sc1")
    A("s_mov_b32 exec_hi, -1")
    if pads:
        A.pads_end("L_padret_wo")
    stamp(5)
    A("s_branch L_h_end")

    A.label("L_role_red")
    A("s_lshl_b32 s77, s3, 6")
    A(f"s_add_u32 s33, {rH}, s77")
    A("s_cmp_ge_u32 s33, 80")
    A("s_cbranch_scc1 L_h_end")
    A("s_lshl_b32 s36, s33, 7")
    A(f"s_add_u32 s36, s36, {HB_OFF}")
    A("s_lshl_b32 s37, s33, 4")
    if touch_y:
        for k in range(4):
            A(f"v_mov_b32 v{hG+k}, 0")
        A("s_mov_b64 exec, 0xff")
        A(f"buffer_store_dwordx4 v[{hG}:{hG+3}], v{hL16}, {S_WS}, s36 offen sc1")
        A("s_mov_b64 exec, -1")
    if ypc:
        hRS = hB
        A(f"v_and_b32 v{hT+2}, 7, v0")
        A(f"v_lshlrev_b32 v{hT+3}, 1, v{hT+2}")
        for bb in range(4):
            A(f"buffer_load_ushort v{hX+bb}, v{hT+3}, {S_X}, s37 offen offset:{1280*bb}")
        A(f"v_and_b32 v{hT+4}, 1, v0")
        A(f"v_cmp_ne_u32 s[34:35], 0, v{hT+4}")
        A(f"v_mul_u32_u24 v{hAD}, 2558, v{hT+4}")
        A(f"v_add_u32 v{hAD}, v{hAD}, v{hT+3}")
        A(f"v_lshlrev_b32 v{hAD+2}, 4, v{hT+2}")
        A(f"v_lshrrev_b32 v{hT+4}, 3, v0")
        A(f"v_mul_u32_u24 v{hAD+1}, 10240, v{hT+4}")
        A(f"v_lshl_add_u32 v{hAD+1}, v{hT+2}, 4, v{hAD+1}")
        A("s_mov_b32 s44, 0x0c040000")
        A("s_mov_b32 s45, 0x07060000")
        A("s_waitcnt vmcnt(0)")
        for bb in range(4):
            A(f"v_lshlrev_b32 v{hRS+bb}, 16, v{hX+bb}")
        warm_code("L_tail_red", "L_role_ffn", hT + 5)
        warm_icache("red")
        A("s_barrier")
        A.label("L_tail_red")
        if pads:
            A.pads_begin("L_pad0_red", pads)
        stamp(3)

        def reduce32c(base_off, st):
            A("s_lshl_b32 s76, s33, 7")
            A(f"s_add_u32 s76, s76, {base_off}")
            for u in range(1, 4):
                A(f"s_add_u32 s{76+u}, s76, {81920*u}")
            Lp, Ld = A.newlabel("L_poll"), A.newlabel("L_pdone")
            A.pads_pause(True)
            dl = [f"buffer_load_dwordx4 v[{hG+4*u}:{hG+4*u+3}], v{hAD+1}, {S_WS}, s{76+u} offen sc1" for u in range(4)]
            A(f"s_mov_b32 s81, {spin_g}")
            for l in dl:
                A(l)
            A.label(Lp)
            A("s_waitcnt vmcnt(0)")
            for u in range(4):
                A(f"v_cmp_ne_u32 s[{4+2*u}:{5+2*u}], v{hG+4*u+3}, v{hNC}")
            A("s_or_b64 s[38:39], s[4:5], s[6:7]")
            A("s_or_b64 s[38:39], s[38:39], s[8:9]")
            A("s_or_b64 s[38:39], s[38:39], s[10:11]")
            A(f"s_cbranch_scc0 {Ld}")
            if psleep:
                A(f"s_sleep {psleep}")
            for u, l in enumerate(dl):
                A(f"s_mov_b64 exec, s[{4+2*u}:{5+2*u}]")
                A(l)
            A("s_mov_b64 exec, -1")
            A("s_sub_u32 s81, s81, 1")
            A("s_cmp_lg_u32 s81, 0")
            A(f"s_cbranch_scc1 {Lp}")
            A("s_waitcnt vmcnt(0)")
            A.label(Ld)
            A.pads_pause(False)
            stamp(st)
            for u in range(4):
                g = hG + 4 * u
                A(f"v_lshlrev_b32 v{hT}, 24, v{g}")
                A(f"v_and_b32 v{hT+1}, 0xff, v{g+1}")
                A(f"v_lshl_or_b32 v{hT}, v{hT+1}, 16, v{hT}")
                A(f"v_and_b32 v{hT+1}, 0xff, v{g+2}")
                A(f"v_lshl_or_b32 v{g+3}, v{hT+1}, 8, v{hT}")
                for e in range(3):
                    A(f"v_and_b32 v{g+e}, 0xffffff00, v{g+e}")
            for e in range(4):
                A(f"v_add_f32 v{hG+e}, v{hG+e}, v{hG+4+e}")
                A(f"v_add_f32 v{hG+8+e}, v{hG+8+e}, v{hG+12+e}")
            for e in range(4):
                A(f"v_add_f32 v{hG+e}, v{hG+e}, v{hG+8+e}")
            for e in range(4):
                A(f"v_add_f32_dpp v{hG+e}, v{hG+e}, v{hG+e} row_ror:8 {DPP}")
            for sw in ("v_permlane16_swap_b32", "v_permlane32_swap_b32"):
                for e in range(4):
                    A(f"v_mov_b32 v{hG+4+e}, v{hG+e}")
                for e in range(4):
                    A(f"{sw} v{hG+e}, v{hG+4+e}")
                for e in range(4):
                    A(f"v_add_f32 v{hG+e}, v{hG+e}, v{hG+4+e}")
            for p_ in range(2):
                A(f"v_cvt_pk_bf16_f32 v{hG+4+p_}, v{hG+2*p_}, v{hG+2*p_+1}")
            for p_ in range(2):
                A(f"v_lshlrev_b32 v{hG+2*p_}, 16, v{hG+4+p_}")
                A(f"v_and_b32 v{hG+2*p_+1}, 0xffff0000, v{hG+4+p_}")
            for e in range(4):
                A(f"v_add_f32 v{hG+e}, v{hG+e}, v{hRS+e}")
            for p_ in range(2):
                A(f"v_cvt_pk_bf16_f32 v{hG+4+p_}, v{hG+2*p_}, v{hG+2*p_+1}")
            for p_ in range(2):
                A(f"v_lshlrev_b32 v{hRS+2*p_}, 16, v{hG+4+p_}")
                A(f"v_and_b32 v{hRS+2*p_+1}, 0xffff0000, v{hG+4+p_}")
            A(f"v_cndmask_b32 v{hG+6}, v{hG+5}, v{hG+4}, s[34:35]")
            A(f"v_cndmask_b32 v{hG+7}, v{hG+4}, v{hG+5}, s[34:35]")
            A(f"v_mov_b32_dpp v{hG+6}, v{hG+6} quad_perm:[1,0,3,2] {DPP}")
            A(f"v_cndmask_b32 v{hG+4}, v{hG+7}, v{hG+6}, s[34:35]")
            A(f"v_cndmask_b32 v{hG+5}, v{hG+6}, v{hG+7}, s[34:35]")
            A(f"v_and_b32 v{hD}, 0xffff, v{hG+4}")
            A(f"v_lshl_or_b32 v{hD}, v{hG+5}, 16, v{hD}")
            A(f"v_and_b32 v{hG+5}, 0xffff0000, v{hG+5}")
            A(f"v_lshrrev_b32 v{hD+1}, 16, v{hG+4}")
            A(f"v_or_b32 v{hD+1}, v{hD+1}, v{hG+5}")

        reduce32c(YP_OFF, 4)
        A(f"v_mov_b32 v{hD+2}, v{hNC}")
        A(f"v_mov_b32 v{hD+3}, v{hNC+1}")
        A("s_mov_b64 exec, 0xff")
        A(f"buffer_store_dwordx4 v[{hD}:{hD+3}], v{hAD+2}, {S_WS}, s36 offen sc1")
        A("s_mov_b64 exec, -1")
        stamp(5)
        reduce32c(ZP_OFF, 6)
        A("s_mov_b64 exec, 0xff")
        A(f"buffer_store_dword v{hD}, v{hAD}, {S_OUT}, s37 offen")
        A(f"buffer_store_dword v{hD+1}, v{hAD}, {S_OUT}, s37 offen offset:1280")
        A("s_mov_b64 exec, -1")
        if pads:
            A.pads_end("L_padret_red")
        A("s_branch L_h_end")
    else:
        A(f"v_and_b32 v{hT+2}, 1, v0")
        A(f"v_mul_u32_u24 v{hAD}, 2560, v{hT+2}")
        A(f"v_and_b32 v{hT+3}, 14, v0")
        A(f"v_add_u32 v{hAD}, v{hAD}, v{hT+3}")
        A(f"buffer_load_ushort v{hX}, v{hAD}, {S_X}, s37 offen")
        A(f"buffer_load_ushort v{hX+1}, v{hAD}, {S_X}, s37 offen offset:1280")
        A(f"v_bfe_u32 v{hT+3}, v0, 2, 2")
        A(f"v_lshlrev_b32 v{hAD+2}, 5, v{hT+3}")
        A(f"v_lshl_add_u32 v{hAD+2}, v{hT+2}, 4, v{hAD+2}")
        A(f"v_lshrrev_b32 v{hT+2}, 4, v0")
        A(f"v_mul_u32_u24 v{hAD+1}, 20480, v{hT+2}")
        A(f"v_and_b32 v{hT+2}, 15, v0")
        A(f"v_lshl_add_u32 v{hAD+1}, v{hT+2}, 4, v{hAD+1}")
        hRS = hB
        A("s_waitcnt vmcnt(0)")
        A(f"v_lshlrev_b32 v{hRS}, 16, v{hX}")
        A(f"v_lshlrev_b32 v{hRS+1}, 16, v{hX+1}")
        warm_code("L_tail_red", "L_role_ffn", hT + 5)
        warm_icache("red")
        A("s_barrier")
        A.label("L_tail_red")
        if pads:
            A.pads_begin("L_pad0_red", pads)
        stamp(3)

        def reduce32(base_off, st):
            A("s_lshl_b32 s76, s33, 8")
            A(f"s_add_u32 s76, s76, {base_off}")
            lt = []
            for u in range(8):
                lt.append(f"buffer_load_dwordx4 v[{hG+4*u}:{hG+4*u+3}], v{hAD+1}, {S_WS}, s76 offen sc1")
                lt.append(f"s_add_u32 s76, s76, {4*20480}" if u < 7 else f"s_sub_u32 s76, s76, {7*4*20480}")
            if selpoll:
                for u in range(8):
                    A(f"s_add_u32 s{20+u}, s76, {4*20480*u}")
                poll_sel([([f"buffer_load_dwordx4 v[{hG+4*u}:{hG+4*u+3}], v{hAD+1}, {S_WS}, s{20+u} offen sc1"], [hG + 4 * u + 2]) for u in range(8)],
                         hNC, sleep=psleep)
            else:
                poll_tagged(lt, [hG + 4 * u + 2 for u in range(8)], hNC, hT, sleep=psleep)
            stamp(st)
            for st2 in (4, 2, 1):
                for u in range(st2):
                    for e in range(2):
                        A(f"v_add_f32 v{hG+4*u+e}, v{hG+4*u+e}, v{hG+4*(u+st2)+e}")
            for sw in ("v_permlane16_swap_b32", "v_permlane32_swap_b32"):
                for e in range(2):
                    A(f"v_mov_b32 v{hG+4+e}, v{hG+e}")
                for e in range(2):
                    A(f"{sw} v{hG+e}, v{hG+4+e}")
                for e in range(2):
                    A(f"v_add_f32 v{hG+e}, v{hG+e}, v{hG+4+e}")
            A(f"v_cvt_pk_bf16_f32 v{hG}, v{hG}, v{hG+1}")
            A(f"v_lshlrev_b32 v{hG+2}, 16, v{hG}")
            A(f"v_and_b32 v{hG+3}, 0xffff0000, v{hG}")
            A(f"v_add_f32 v{hG+2}, v{hG+2}, v{hRS}")
            A(f"v_add_f32 v{hG+3}, v{hG+3}, v{hRS+1}")
            A(f"v_cvt_pk_bf16_f32 v{hG}, v{hG+2}, v{hG+3}")
            A(f"v_lshlrev_b32 v{hRS}, 16, v{hG}")
            A(f"v_and_b32 v{hRS+1}, 0xffff0000, v{hG}")
            A(f"v_mov_b32_dpp v{hG+1}, v{hG} quad_perm:[2,3,0,1] {DPP}")
            A(f"v_and_b32 v{hD}, 0xffff, v{hG}")
            A(f"v_lshl_or_b32 v{hD}, v{hG+1}, 16, v{hD}")
            A(f"v_and_b32 v{hG+1}, 0xffff0000, v{hG+1}")
            A(f"v_lshrrev_b32 v{hD+1}, 16, v{hG}")
            A(f"v_or_b32 v{hD+1}, v{hD+1}, v{hG+1}")

        reduce32(YP_OFF, 4)
        A(f"v_mov_b32 v{hD+2}, v{hNC}")
        A(f"v_mov_b32 v{hD+3}, v{hNC+1}")
        A("s_mov_b64 exec, 0x3333")
        A(f"buffer_store_dwordx4 v[{hD}:{hD+3}], v{hAD+2}, {S_WS}, s36 offen sc1")
        A("s_mov_b64 exec, -1")
        stamp(5)
        reduce32(ZP_OFF, 6)
        A("s_mov_b64 exec, 0x3333")
        A(f"buffer_store_dword v{hD}, v{hAD}, {S_OUT}, s37 offen")
        A(f"buffer_store_dword v{hD+1}, v{hAD}, {S_OUT}, s37 offen offset:1280")
        A("s_mov_b64 exec, -1")
        if pads:
            A.pads_end("L_padret_red")
        A("s_branch L_h_end")

    A.label("L_role_ffn")
    fA, fD, fWD, fWG = 32, 52, 76, 136
    fD2 = fWG
    A(f"s_mul_i32 s32, {rH}, {10240 if ypc else 20480}")
    A(f"s_mul_i32 s77, s3, {2560 if ypc else 5120}")
    set_sel()
    A("s_add_u32 s32, s32, s77")
    A(f"s_add_u32 s32, s32, {ZP_OFF}")
    A("s_add_u32 s33, s32, 4096")
    if touch_y:
        for k in range(4):
            A(f"v_mov_b32 v{hG+k}, 0")
        for k in range(5):
            A(f"buffer_store_dwordx4 v[{hG}:{hG+3}], v{hL16}, {S_WS}, {'s32' if k < 4 else 's33'} offen offset:{1024*(k&3)} sc1")
    if not noweights:
        A(f"v_mul_u32_u24 v{hT}, 43, v0")
        A(f"v_lshrrev_b32 v{hT}, 8, v{hT}")
        A(f"v_mul_u32_u24 v{hT+1}, 6, v{hT}")
        A(f"v_sub_u32 v{hT+1}, v0, v{hT+1}")
        A(f"v_mul_u32_u24 v{hAD}, 3072, v{hT}")
        A(f"v_lshl_add_u32 v{hAD}, v{hT+1}, 4, v{hAD}")
        tr_addr(hAD + 1, 96, "s83")
        if NL > 4:
            lds_wait(hZ, hT, C_SFREE, 4, sleep=16)
        for mi, srdn in enumerate((S_WG, S_WU)):
            A(f"s_mul_i32 s76, {rH}, 96")
            A(f"s_mul_i32 s77, s3, {160*3072}")
            A("s_add_u32 s76, s76, s77")
            for (t0_, nt) in ((0, 3), (3, 2)):
                A("s_mov_b32 exec_hi, 0xffff")
                for u in range(4 * nt):
                    A(f"s_add_u32 m0, s83, {768*u}")
                    A(f"buffer_load_dwordx4 v{hAD}, {srdn}, s76 offen nt lds")
                    A(f"s_add_u32 s76, s76, {8*3072}")
                A("s_mov_b32 exec_hi, -1")
                A("s_waitcnt vmcnt(0)")
                for tile in range(3):
                    for t in range(nt):
                        for hf in range(2):
                            r = fWG + 4 * ((mi * 3 + tile) * 5 + t0_ + t) + 2 * hf
                            A(f"ds_read_b64_tr_b16 v[{r}:{r+1}], v{hAD+1} offset:{(32*t+4*hf)*96+32*tile}")
                A("s_waitcnt lgkmcnt(0)")
        A(f"s_mul_i32 s76, {rH}, {48*1280}")
        A("s_mul_i32 s77, s3, 15360")
        A("s_add_u32 s76, s76, s77")
        A(f"s_add_u32 s77, s77, {L_SBUF}")
        lds_wait(hZ, hT, C_SFREE, 4, sleep=16)
        for u in range(15):
            A(f"s_add_u32 m0, s77, {1024*u}")
            A(f"buffer_load_dwordx4 v{hL16}, {S_WD}, s76 offen nt lds")
            A("s_add_u32 s76, s76, 1024")
        A("s_mul_i32 s77, s3, 320")
        A(f"s_add_u32 s77, s77, {L_SBUF}")
        tr_addr(hAD + 1, 1280, "s77", k16=True)
        A("s_waitcnt vmcnt(0)")
        lds_inc(hZ, hONE, C_WSYNC)
        lds_wait(hZ, hT, C_WSYNC, 4, sleep=4)
        for nt in range(10):
            for t in range(3):
                r = fWD + 2 * (nt * 3 + t)
                A(f"ds_read_b64_tr_b16 v[{r}:{r+1}], v{hAD+1} offset:{16*t*1280+32*nt}")
        A("s_waitcnt lgkmcnt(0)")
    fXW, fAF, fRW, fRR, fAW, fA2, fHL = 5, 6, 7, 72, 73, 74, 75
    fD = 52
    fRR, fAW, fA2, fHL = 1, 2, 3, 4
    A("s_mul_i32 s75, s3, 1280")
    A("s_lshr_b32 s79, s3, 1")
    A("s_lshl_b32 s79, s79, 4")
    A(f"s_add_u32 s76, s79, {HB_OFF}")
    A("s_add_u32 s77, s76, 4096")
    A("s_add_u32 s78, s76, 8192")
    A(f"v_add_u32 v{fXW}, s75, v{hL4}")
    A(f"v_and_b32 v{hT}, 3, v0")
    A(f"v_lshrrev_b32 v{hT+1}, 4, v0")
    A(f"v_mul_u32_u24 v{fAF}, 1280, v{hT}")
    A(f"v_lshl_add_u32 v{fAF}, v{hT+1}, 4, v{fAF}")
    A("s_mul_i32 s79, s3, 320")
    A(f"v_add_u32 v{fAF}, s79, v{fAF}")
    A("s_mul_i32 s79, s3, 1536")
    A(f"v_add_u32 v{fRW}, s79, v{hL16}")
    A(f"v_and_b32 v{hT+2}, 15, v0")
    A(f"v_lshlrev_b32 v{fRR}, 4, v{hT+2}")
    A(f"v_lshl_add_u32 v{fRR}, v{hT+1}, 2, v{fRR}")
    A("s_lshl_b32 s79, s3, 8")
    A(f"v_add_u32 v{fRR}, s79, v{fRR}")
    A(f"v_mul_u32_u24 v{fAW}, 96, v{hT+1}")
    A(f"v_lshl_add_u32 v{fAW}, v{hT+2}, 1, v{fAW}")
    A("s_lshl_b32 s79, s3, 5")
    A(f"v_add_u32 v{fAW}, s79, v{fAW}")
    A(f"v_mul_u32_u24 v{fA2}, 96, v{hT}")
    A(f"v_lshl_add_u32 v{fA2}, v{hT+1}, 3, v{fA2}")
    A(f"v_lshlrev_b32 v{fHL}, 5, v0")
    A("s_bitcmp1_b32 s3, 0")
    A("s_cselect_b64 s[36:37], -1, 0")
    warm_code("L_tail_ffn", "L_end", hT + 5)
    warm_icache("ffn")
    A("s_barrier")
    A.label("L_tail_ffn")
    if pads:
        A.pads_begin("L_pad0_ffn", pads)
    stamp(3)
    lt = [f"buffer_load_dwordx4 v[{fA+4*u}:{fA+4*u+3}], v{fHL}, {S_WS}, s{76+(u>>1)} offen offset:{2048*(u&1)} sc1" for u in range(5)]
    if selpoll:
        poll_sel([([lt[u]], [fA + 4 * u + 2]) for u in range(5)], hNC, sleep=psleep)
    else:
        poll_tagged(lt, [fA + 4 * u + 2 for u in range(5)], hNC, hT, sleep=psleep)
    stamp(4)
    for u in range(5):
        A(f"v_cndmask_b32 v{hX+u}, v{fA+4*u}, v{fA+4*u+1}, s[36:37]")
    layernorm([hX + u for u in range(5)], hX, hF, hT)
    for u in range(5):
        A(f"ds_write_b32 v{fXW}, v{hX+u} offset:{L_XN+256*u}")
    A("s_waitcnt lgkmcnt(0)")
    A("s_barrier")
    for t in range(5):
        A(f"ds_read_b128 v[{fA+4*t}:{fA+4*t+3}], v{fAF} offset:{L_XN+64*t}")
    for t in range(5):
        A(f"s_waitcnt lgkmcnt({4-t})")
        for tile in range(6):
            r = fWG + 4 * (tile * 5 + t)
            c = "0" if t == 0 else f"v[{fD+4*tile}:{fD+4*tile+3}]"
            A(f"v_mfma_f32_16x16x32_bf16 v[{fD+4*tile}:{fD+4*tile+3}], v[{fA+4*t}:{fA+4*t+3}], v[{r}:{r+3}], {c}")
    A("s_mov_b64 exec, 0xffff")
    for tile in range(6):
        A(f"ds_write_b128 v{fRW}, v[{fD+4*tile}:{fD+4*tile+3}] offset:{L_RED+256*tile}")
    A("s_mov_b64 exec, -1")
    A("s_waitcnt lgkmcnt(0)")
    A("s_barrier")
    A("s_cmp_eq_u32 s3, 3")
    A("s_cbranch_scc1 L_noact")
    for ww in range(4):
        for gu in range(2):
            A(f"ds_read_b32 v{hF+4*gu+ww}, v{fRR} offset:{L_RED+1536*ww+768*gu}")
    A("s_waitcnt lgkmcnt(0)")
    for gu in range(2):
        f = hF + 4 * gu
        A(f"v_add_f32 v{f}, v{f}, v{f+1}")
        A(f"v_add_f32 v{f+2}, v{f+2}, v{f+3}")
        A(f"v_add_f32 v{f}, v{f}, v{f+2}")
    rnd(hF, hF)
    rnd(hF + 4, hF + 4)
    A(f"v_mul_f32 v{hF+1}, 0xbfb8aa3b, v{hF}")
    A(f"v_exp_f32 v{hF+1}, v{hF+1}")
    A(f"v_add_f32 v{hF+1}, 1.0, v{hF+1}")
    A(f"v_rcp_f32 v{hF+1}, v{hF+1}")
    A(f"v_mul_f32 v{hF}, v{hF}, v{hF+1}")
    rnd(hF, hF)
    A(f"v_mul_f32 v{hF}, v{hF}, v{hF+4}")
    A(f"v_cvt_pk_bf16_f32 v{hF}, v{hF}, v{hF}")
    A(f"ds_write_b16 v{fAW}, v{hF} offset:{L_OL}")
    A("s_waitcnt lgkmcnt(0)")
    A.label("L_noact")
    if ypc:
        A(f"v_and_b32 v{hT}, 16, v0")
        A(f"v_cmp_ne_u32 s[34:35], 0, v{hT}")
        A("v_cmp_lt_u32 s[38:39], 31, v0")
        A(f"v_lshlrev_b32 v{hGO}, 4, v0")
        for p in range(3):
            A(f"v_mov_b32 v{fD+4*p+3}, v{hNC}")
    elif fast2:
        A(f"v_and_b32 v{hT}, 16, v0")
        A(f"v_cmp_ne_u32 s[34:35], 0, v{hT}")
        A("v_cmp_lt_u32 s[38:39], 31, v0")
        A(f"v_lshrrev_b32 v{hT}, 5, v0")
        A(f"v_lshl_add_u32 v{hGO}, v{hT}, 9, v{hGO}")
        for p in range(5):
            A(f"v_mov_b32 v{fD+4*p+2}, v{hNC}")
            A(f"v_mov_b32 v{fD+4*p+3}, v{hNC+1}")
    A("s_barrier")
    for t in range(3):
        A(f"ds_read_b64 v[{fA+2*t}:{fA+2*t+1}], v{fA2} offset:{L_OL+32*t}")
    if ypc:
        fO = fD
        A("s_waitcnt lgkmcnt(0)")

        def quad_store(p):
            n = 4 if p < 2 else 2
            t_ = [fD2 + 16 * p + 4 * i for i in range(n)]
            for e in range(4):
                A(f"v_cndmask_b32 v{t_[0]+e}, v{t_[0]+e}, v{t_[1]+e}, s[34:35]")
                if n == 4:
                    A(f"v_cndmask_b32 v{t_[2]+e}, v{t_[2]+e}, v{t_[3]+e}, s[34:35]")
                    A(f"v_cndmask_b32 v{t_[0]+e}, v{t_[0]+e}, v{t_[2]+e}, s[38:39]")
            pack24(fO + 4 * p, t_[0])
            if n == 2:
                A("s_mov_b32 exec_hi, 0")
            A(f"buffer_store_dwordx4 v[{fO+4*p}:{fO+4*p+3}], v{hGO}, {S_WS}, s32 offen offset:{1024*p} sc1")
            if n == 2:
                A("s_mov_b32 exec_hi, -1")
        for nt in range(10):
            for t in range(3):
                r = fWD + 2 * (nt * 3 + t)
                c = "0" if t == 0 else f"v[{fD2+4*nt}:{fD2+4*nt+3}]"
                A(f"v_mfma_f32_16x16x16_bf16 v[{fD2+4*nt}:{fD2+4*nt+3}], v[{fA+2*t}:{fA+2*t+1}], v[{r}:{r+1}], {c}")
            if nt == 5:
                quad_store(0)
            if nt == 9:
                quad_store(1)
        quad_store(2)
    elif fast2:
        fO = fD
        A("s_waitcnt lgkmcnt(0)")

        def pair_store(p):
            ta, tb, o = fD2 + 8 * p, fD2 + 8 * p + 4, fO + 4 * p
            for e in range(2):
                A(f"v_cndmask_b32 v{ta+e}, v{ta+e}, v{ta+2+e}, s[34:35]")
                A(f"v_cndmask_b32 v{tb+e}, v{tb+e}, v{tb+2+e}, s[34:35]")
                A(f"v_cndmask_b32 v{o+e}, v{ta+e}, v{tb+e}, s[38:39]")
            A(f"buffer_store_dwordx4 v[{o}:{o+3}], v{hGO}, {S_WS}, {'s32' if p < 4 else 's33'} offen offset:{1024*(p&3)} sc1")
        for nt in range(10):
            for t in range(3):
                r = fWD + 2 * (nt * 3 + t)
                c = "0" if t == 0 else f"v[{fD2+4*nt}:{fD2+4*nt+3}]"
                A(f"v_mfma_f32_16x16x16_bf16 v[{fD2+4*nt}:{fD2+4*nt+3}], v[{fA+2*t}:{fA+2*t+1}], v[{r}:{r+1}], {c}")
            if nt >= 3 and nt % 2 == 1:
                pair_store((nt - 3) // 2)
        pair_store(4)
    else:
        for t in range(3):
            A(f"s_waitcnt lgkmcnt({2-t})")
            for nt in range(10):
                r = fWD + 2 * (nt * 3 + t)
                c = "0" if t == 0 else f"v[{fD2+4*nt}:{fD2+4*nt+3}]"
                A(f"v_mfma_f32_16x16x16_bf16 v[{fD2+4*nt}:{fD2+4*nt+3}], v[{fA+2*t}:{fA+2*t+1}], v[{r}:{r+1}], {c}")
        A("s_mov_b32 exec_hi, 0")
        for nt in range(10):
            split_halves(fD2 + 4 * nt)
            A(f"buffer_store_dwordx4 v[{fD2+4*nt}:{fD2+4*nt+3}], v{hGO}, {S_WS}, {'s32' if nt < 8 else 's33'} offen offset:{512*(nt&7)} sc1")
        A("s_mov_b32 exec_hi, -1")
    if pads:
        A.pads_end("L_padret_ffn")
    stamp(5)
    A.label("L_h_end")
    stamp(7)
    stamp_flush(32)
    A.label("L_end")
    A("s_endpgm")
    s = wrap(A.text(), HEADER + DOC, 256, 512, LDS_BYTES, 256, 102)
    s = s.replace("  .amdhsa_group_segment_fixed_size 0\n", "  .amdhsa_group_segment_fixed_size 0\n  .amdhsa_float_denorm_mode_32 3\n")
    return s


if __name__ == "__main__":
    kw = eval("dict(%s)" % (sys.argv[2] if len(sys.argv) > 2 else ""))
    open(sys.argv[1], "w").write(gen(**kw))
```

```python
import sys
sys.path.insert(0, "work")
from asmlib import *

HEADER = open("sequential_preLN__gqa_block_cached__swiglu_ffn__decode.s.ref").read().split("; Override launch")[0]
DOC = """; One persistent launch: 256 workgroups x 8 waves, one workgroup per CU (G = wg>>3, j = wg&7).  Generated by a script.
;  waves 0..3: q projection (rows split over the even-j workgroups of a head), then stage the later weights as MFMA
;              fragments in registers and run the tail: j<5 wo block, j>=6 reducers (+ residual), j==5 SwiGLU FFN slice.
; Hand-offs between workgroups go through d_ws with write-through (sc1) stores and sc1 loads; every 16-byte granule
"""

QP_OFF = 0x000000
OP_OFF = 0x200000
YP_OFF = 0x400000
ZP_OFF = 0x500000
HB_OFF = 0x600000
CT_OFF = 0x610000
ST_OFF = 0x800000
WS_SIZE = 0x1000000
OOB = 0x80000000
TASKB = 4096 * 384

L_STAGE = 0
L_XN = 49152
L_QL = L_XN + 5120
L_OL = L_QL + 1536
L_RED = L_OL + 1536
L_CNT = L_RED + 6144
L_SBUF = L_CNT + 64
C_SYNC0, C_SYNC1, C_QRDY, C_SFREE, C_WSYNC, C_DRY, L_TAG, C_WSYNC2 = [L_CNT + x for x in (0, 4, 8, 12, 16, 20, 24, 32)]

LOG2E = "0x3fb8aa3b"
SCALE = "0x3d93cd3a"
EPS = "0x3727c5ac"
INV640 = "0x3acccccd"
F640 = "0x44200000"

S_WS, S_K, S_V, S_X, S_WQ, S_DBG, S_WO, S_WG, S_WU, S_WD, S_OUT = [f"s[{28+4*i}:{31+4*i}]" for i in range(11)]
sG, sJ, sB, sH = "s72", "s73", "s74", "s82"
DPP = "row_mask:0xf bank_mask:0xf"


def gen(D=2, S0=54, XF=16, PACE=3, NL=4, stamps=False, spin_g=2000000, spin_l=8000000, prio=True, psleep=1, qsleep=8,
        mix=True, nocompute=False, noweights=False, noqx=False, touch_op=False, touch_y=False, selpoll=True, ln1=True, satom=True, early=True, warm=True, fast2=True, pads=0, tk1=False, HS=0, opc=True, ypc=True, np4=True, xr=False, qdelay=0, qlight=True, LT=24, late='', tlb=False):
    NS = 8
    E = NS - D
    NL1 = min(NL, 4)
    assert NL <= 6
    LDS_BYTES = L_SBUF + 4 * 4 * 6144
    assert LDS_BYTES <= 163840
    NB = E + NL
    R0 = D * (1 + -(-NB // (2 * D)))
    assert (S0 - NS - NL) % D == 0
    nA = (S0 - NS - NL - R0) // D - 1
    POOL = 512 - 8 * S0 + XF
    assert XF % D == 0 and XF // D < nA and NL <= E
    A = Asm()

    def srd(name, ptr_lo, size, add=None):
        r = int(name[2:name.index(":")])
        if add is None:
            A(f"s_mov_b32 s{r}, s{ptr_lo}")
            A(f"s_mov_b32 s{r+1}, s{ptr_lo+1}")
        else:
            A(f"s_add_u32 s{r}, s{ptr_lo}, {add}")
            A(f"s_addc_u32 s{r+1}, s{ptr_lo+1}, 0")
        A(f"s_mov_b32 s{r+2}, {size}")
        A(f"s_mov_b32 s{r+3}, 0x20000")

    def stamp(k, which="main"):
        if stamps and (which == stamps or (which == "main" and stamps is True) or k == 0):
            A(f"s_memrealtime s[{84+2*k}:{85+2*k}]")

    def stamp_flush(vt):
        if not stamps:
            return
        A("s_waitcnt lgkmcnt(0)")
        for k in range(16):
            A(f"v_mov_b32 v{vt+k}, s{84+k}")
        A("s_lshl_b32 s81, s2, 3")
        A("s_add_u32 s81, s81, s3")
        A("s_lshl_b32 s81, s81, 6")
        A(f"s_add_u32 s81, s81, {ST_OFF}")
        A(f"v_mov_b32 v{vt+16}, 0")
        A("s_mov_b64 exec, 1")
        for k in range(4):
            A(f"buffer_store_dwordx4 v[{vt+4*k}:{vt+4*k+3}], v{vt+16}, {S_WS}, s81 offen offset:{16*k}")
        A("s_mov_b64 exec, -1")

    def allred16_32(op, x, t):
        A(f"v_mov_b32 v{t}, v{x}")
        A(f"v_permlane16_swap_b32 v{x}, v{t}")
        A(f"{op} v{x}, v{x}, v{t}")
        A(f"v_mov_b32 v{t}, v{x}")
        A(f"v_permlane32_swap_b32 v{x}, v{t}")
        A(f"{op} v{x}, v{x}, v{t}")

    def allred64(op, x, t):
        for pat in ("quad_perm:[1,0,3,2]", "quad_perm:[2,3,0,1]", "row_ror:4", "row_ror:8"):
            A(f"{op}_dpp v{x}, v{x}, v{x} {pat} {DPP}")
        allred16_32(op, x, t)

    def rnd(dst, src):
        A(f"v_cvt_pk_bf16_f32 v{dst}, v{src}, v{src}")
        A(f"v_lshlrev_b32 v{dst}, 16, v{dst}")

    def div640(x, t0, t1):
        A(f"v_mul_f32 v{t0}, {INV640}, v{x}")
        A(f"v_fma_f32 v{t1}, -v{t0}, s80, v{x}")
        A(f"v_mul_f32 v{t1}, {INV640}, v{t1}")
        A(f"v_add_f32 v{x}, v{t0}, v{t1}")

    def layernorm(src, dst, f, t):
        A(f"s_mov_b32 s80, {F640}")
        for u in range(5):
            A(f"v_lshlrev_b32 v{f+2*u}, 16, v{src[u]}")
            A(f"v_and_b32 v{f+2*u+1}, 0xffff0000, v{src[u]}")
        A(f"v_add_f32 v{t}, v{f}, v{f+1}")
        A(f"v_add_f32 v{t+1}, v{f+2}, v{f+3}")
        A(f"v_add_f32 v{t+2}, v{f+4}, v{f+5}")
        A(f"v_add_f32 v{t+3}, v{f+6}, v{f+7}")
        A(f"v_add_f32 v{t+4}, v{f+8}, v{f+9}")
        A(f"v_add_f32 v{t}, v{t}, v{t+1}")
        A(f"v_add_f32 v{t+2}, v{t+2}, v{t+3}")
        A(f"v_add_f32 v{t}, v{t}, v{t+4}")
        A(f"v_add_f32 v{t}, v{t}, v{t+2}")
        if ln1:
            A(f"v_readfirstlane_b32 s79, v{f}")
            A(f"v_subrev_f32 v{t+2}, s79, v{f}")
            A(f"v_mul_f32 v{t+1}, v{t+2}, v{t+2}")
            for i in range(1, 10):
                A(f"v_subrev_f32 v{t+2+(i&1)}, s79, v{f+i}")
                A(f"v_fmac_f32 v{t+1}, v{t+2+(i&1)}, v{t+2+(i&1)}")
            for pat in ("quad_perm:[1,0,3,2]", "quad_perm:[2,3,0,1]", "row_ror:4", "row_ror:8"):
                for x in (t, t + 1):
                    A(f"v_add_f32_dpp v{x}, v{x}, v{x} {pat} {DPP}")
            for sw in ("v_permlane16_swap_b32", "v_permlane32_swap_b32"):
                for x in (t, t + 1):
                    A(f"v_mov_b32 v{x+2}, v{x}")
                for x in (t, t + 1):
                    A(f"{sw} v{x}, v{x+2}")
                for x in (t, t + 1):
                    A(f"v_add_f32 v{x}, v{x}, v{x+2}")
            div640(t, t + 2, t + 3)
            div640(t + 1, t + 4, t + 5)
            A(f"v_subrev_f32 v{t+2}, s79, v{t}")
            A(f"v_fma_f32 v{t+1}, -v{t+2}, v{t+2}, v{t+1}")
            A(f"v_max_f32 v{t+1}, 0, v{t+1}")
        else:
            allred64("v_add_f32", t, t + 1)
            div640(t, t + 1, t + 2)
            A(f"v_sub_f32 v{t+2}, v{f}, v{t}")
            A(f"v_mul_f32 v{t+1}, v{t+2}, v{t+2}")
            for i in range(1, 10):
                A(f"v_sub_f32 v{t+2+(i&1)}, v{f+i}, v{t}")
                A(f"v_fmac_f32 v{t+1}, v{t+2+(i&1)}, v{t+2+(i&1)}")
            allred64("v_add_f32", t + 1, t + 2)
            div640(t + 1, t + 2, t + 3)
        rnd(t, t)
        rnd(t + 1, t + 1)
        A(f"v_add_f32 v{t+1}, {EPS}, v{t+1}")
        rnd(t + 1, t + 1)
        A(f"v_sqrt_f32 v{t+1}, v{t+1}")
        rnd(t + 1, t + 1)
        A(f"v_rcp_f32 v{t+2}, v{t+1}")
        for u in range(5):
            a, b = f + 2 * u, f + 2 * u + 1
            A(f"v_sub_f32 v{a}, v{a}, v{t}")
            A(f"v_sub_f32 v{b}, v{b}, v{t}")
            A(f"v_cvt_pk_bf16_f32 v{b}, v{a}, v{b}")
            A(f"v_lshlrev_b32 v{a}, 16, v{b}")
            A(f"v_and_b32 v{b}, 0xffff0000, v{b}")
            A(f"v_mul_f32 v{t+3}, v{a}, v{t+2}")
            A(f"v_mul_f32 v{t+4}, v{b}, v{t+2}")
            A(f"v_fma_f32 v{a}, -v{t+3}, v{t+1}, v{a}")
            A(f"v_fma_f32 v{b}, -v{t+4}, v{t+1}, v{b}")
            A(f"v_fmac_f32 v{t+3}, v{a}, v{t+2}")
            A(f"v_fmac_f32 v{t+4}, v{b}, v{t+2}")
            A(f"v_cvt_pk_bf16_f32 v{dst+u}, v{t+3}, v{t+4}")

    def poll_tagged(loads, tagpairs, tag, tmp, sleep=0, mask=None):
        Lp, Ld = A.newlabel("L_poll"), A.newlabel("L_pdone")
        A(f"s_mov_b32 s81, {spin_g}")
        if mask is not None:
            A(f"s_mov_b64 exec, {mask}")
        A.label(Lp)
        for l in loads:
            A(l)
        A("s_waitcnt vmcnt(0)")
        if len(tagpairs) == 1:
            r = tagpairs[0]
            A(f"v_cmp_ne_u64 vcc, v[{r}:{r+1}], v[{tag}:{tag+1}]")
        else:
            for i, r in enumerate(tagpairs):
                if i == 0:
                    A(f"v_xor_b32 v{tmp}, v{r}, v{tag}")
                    A(f"v_xor_b32 v{tmp+1}, v{r+1}, v{tag+1}")
                else:
                    A(f"v_xor_b32 v{tmp+2}, v{r}, v{tag}")
                    A(f"v_xor_b32 v{tmp+3}, v{r+1}, v{tag+1}")
                    A(f"v_or3_b32 v{tmp+(i&1)}, v{tmp+(i&1)}, v{tmp+2}, v{tmp+3}")
            A(f"v_or_b32 v{tmp}, v{tmp}, v{tmp+1}")
            A(f"v_cmp_ne_u32 vcc, 0, v{tmp}")
        A(f"s_cbranch_vccz {Ld}")
        if sleep:
            A(f"s_sleep {sleep}")
        A("s_sub_u32 s81, s81, 1")
        A("s_cmp_lg_u32 s81, 0")
        A(f"s_cbranch_scc1 {Lp}")
        A.label(Ld)
        if mask is not None:
            A("s_mov_b64 exec, -1")

    def poll_sel(groups, tag, sleep=0):
        Lp, Ld = A.newlabel("L_poll"), A.newlabel("L_pdone")
        A.pads_pause(True)
        A(f"s_mov_b32 s81, {spin_g}")
        for loads, _ in groups:
            for l in loads:
                A(l)
        A.label(Lp)
        A("s_waitcnt vmcnt(0)")
        for i, (_, pairs) in enumerate(groups):
            m = f"s[{4+2*i}:{5+2*i}]"
            for k, r in enumerate(pairs):
                if k == 0:
                    A(f"v_cmp_ne_u64 {m}, v[{r}:{r+1}], v[{tag}:{tag+1}]")
                else:
                    A(f"v_cmp_ne_u64 vcc, v[{r}:{r+1}], v[{tag}:{tag+1}]")
                    A(f"s_or_b64 {m}, {m}, vcc")
        A("s_or_b64 s[38:39], s[4:5], s[6:7]")
        for i in range(2, len(groups)):
            A(f"s_or_b64 s[38:39], s[38:39], s[{4+2*i}:{5+2*i}]")
        A(f"s_cbranch_scc0 {Ld}")
        if sleep:
            A(f"s_sleep {sleep}")
        for i, (loads, _) in enumerate(groups):
            A(f"s_mov_b64 exec, s[{4+2*i}:{5+2*i}]")
            for l in loads:
                A(l)
        A("s_mov_b64 exec, -1")
        A("s_sub_u32 s81, s81, 1")
        A("s_cmp_lg_u32 s81, 0")
        A(f"s_cbranch_scc1 {Lp}")
        A("s_waitcnt vmcnt(0)")
        A.label(Ld)
        A.pads_pause(False)

    def lds_wait(addr_v, val_v, off, target, sleep=1):
        Lp, Ld = A.newlabel("L_lw"), A.newlabel("L_lwd")
        A(f"s_mov_b32 s81, {spin_l}")
        A.label(Lp)
        A(f"ds_read_b32 v{val_v}, v{addr_v} offset:{off}")
        A("s_waitcnt lgkmcnt(0)")
        A(f"v_readfirstlane_b32 s79, v{val_v}")
        A(f"s_cmp_ge_u32 s79, {target}")
        A(f"s_cbranch_scc1 {Ld}")
        A(f"s_sleep {sleep}")
        A("s_sub_u32 s81, s81, 1")
        A("s_cmp_lg_u32 s81, 0")
        A(f"s_cbranch_scc1 {Lp}")
        A.label(Ld)

    def lds_inc(zero_v, one_v, off):
        A("s_mov_b64 exec, 1")
        A(f"ds_add_u32 v{zero_v}, v{one_v} offset:{off}")
        A("s_mov_b64 exec, -1")

    A("s_cmp_ge_u32 s2, 256")
    A("s_cbranch_scc1 L_end")
    A("s_load_dwordx16 s[4:19], s[0:1], 0")
    A("s_load_dwordx8 s[20:27], s[0:1], 64")
    A("v_lshrrev_b32 v1, 6, v0")
    A("v_and_b32 v0, 63, v0")
    A("v_readfirstlane_b32 s3, v1")
    A(f"s_lshr_b32 {sG}, s2, 3")
    A(f"s_and_b32 {sJ}, s2, 7")
    A(f"s_and_b32 {sB}, s3, 3")
    if xr:
        A(f"s_lshl_b32 {sH}, {sJ}, 2")
        A(f"s_add_u32 {sH}, {sH}, {sB}")
        A(f"s_add_u32 {sH}, {sH}, {sG}")
        A(f"s_and_b32 {sH}, {sH}, 31")
    elif mix:
        A(f"s_mul_i32 {sH}, {sB}, {sJ}")
        A(f"s_add_u32 {sH}, {sH}, {sG}")
        A(f"s_and_b32 {sH}, {sH}, 31")
    else:
        A(f"s_mov_b32 {sH}, {sG}")
    if stamps:
        for k in range(16):
            A(f"s_mov_b32 s{84+k}, 0")
    A("s_cmp_lt_u32 s3, 4")
    A("s_cbranch_scc1 L_helper")

    vOFF, vZ = 1, 2
    T = 3
    vTAG = 8
    vM, vL = 11, 12
    vAL, vP = 14, 16
    vU = 18
    vLB = 22
    vQ = 24
    vACC = 36
    vTK = 60
    vSLOT = 64
    sOFF, sCT, sOP = "s75", "s76", "s83"
    sSL = 60

    kreg = lambda slot, i: vSLOT + slot * 24 + 4 * i
    vreg = lambda slot, i: vSLOT + slot * 24 + 12 + 4 * i
    vmq = []

    def vwait(tag, first=False):
        idx = [k for k, t in enumerate(vmq) if t == tag]
        if not idx:
            return
        i = idx[2] if first else idx[-1]
        n = len(vmq) - 1 - i
        assert n <= 63
        A(f"s_waitcnt vmcnt({n})")
        del vmq[:i + 1]

    def issueK(slot, soff):
        for i in range(3):
            r = kreg(slot, i)
            A(f"buffer_load_dwordx4 v[{r}:{r+3}], v{vOFF}, {S_K}, {soff} offen offset:{128*i} nt")
            vmq.append(("K", slot))

    def issueV(slot, soff):
        for i in range(3):
            r = vreg(slot, i)
            A(f"buffer_load_dwordx4 v[{r}:{r+3}], v{vOFF}, {S_V}, {soff} offen offset:{128*i} nt")
            vmq.append(("V", slot))

    def atomic(slot):
        A(f"v_mov_b32 v{vTK+slot}, 1")
        A("s_mov_b64 exec, 1")
        A(f"buffer_atomic_add v{vTK+slot}, v{vZ}, {S_WS}, {sCT} offen sc0")
        A("s_mov_b64 exec, -1")
        vmq.append(("T", slot))

    def consumeK(slot, mid=None):
        t0, t1, t2, t3, t4 = T, T + 1, T + 2, T + 3, T + 4
        k = kreg(slot, 0)
        if nocompute:
            for e in range(0, 12, 4):
                A(f"v_xor_b32 v{vL}, v{vL}, v{k+e}")
            if mid:
                mid()
            return
        for e in range(6):
            A(f"v_dot2_f32_bf16 v{t0}, v{k+e}, v{vQ+e}, " + ("0" if e == 0 else f"v{t0}"))
            A(f"v_dot2_f32_bf16 v{t1}, v{k+6+e}, v{vQ+6+e}, " + ("0" if e == 0 else f"v{t1}"))
        if mid:
            mid()
        A(f"v_add_f32 v{t0}, v{t0}, v{t1}")
        A(f"v_add_f32_dpp v{t0}, v{t0}, v{t0} quad_perm:[1,0,3,2] {DPP}")
        A(f"v_add_f32_dpp v{t0}, v{t0}, v{t0} quad_perm:[2,3,0,1] {DPP}")
        A(f"v_add_f32_dpp v{t0}, v{t0}, v{t0} row_half_mirror {DPP}")
        rnd(t1, t0)
        A(f"v_mul_f32 v{t1}, {SCALE}, v{t1}")
        rnd(t1, t1)
        A(f"v_max_f32 v{t2}, v{vM}, v{t1}")
        A(f"v_sub_f32 v{t3}, v{vM}, v{t2}")
        A(f"v_sub_f32 v{t4}, v{t1}, v{t2}")
        A(f"v_mul_f32 v{t3}, {LOG2E}, v{t3}")
        A(f"v_mul_f32 v{t4}, {LOG2E}, v{t4}")
        A(f"v_exp_f32 v{vAL}, v{t3}")
        A(f"v_exp_f32 v{vP}, v{t4}")
        A(f"v_mov_b32 v{vM}, v{t2}")
        A(f"v_fma_f32 v{vL}, v{vL}, v{vAL}, v{vP}")
        for a in range(12):
            r = vACC + 2 * a
            A(f"v_pk_mul_f32 v[{r}:{r+1}], v[{r}:{r+1}], v[{vAL}:{vAL+1}] op_sel_hi:[1,0]")

    def consumeV(slot):
        v = vreg(slot, 0)
        if nocompute:
            for e in range(0, 12, 4):
                A(f"v_xor_b32 v{vL}, v{vL}, v{v+e}")
            return
        for a in range(12):
            u = vU + 2 * (a & 1)
            r = vACC + 2 * a
            A(f"v_lshlrev_b32 v{u}, 16, v{v+a}")
            A(f"v_and_b32 v{u+1}, 0xffff0000, v{v+a}")
            A(f"v_pk_fma_f32 v[{r}:{r+1}], v[{u}:{u+1}], v[{vP}:{vP+1}], v[{r}:{r+1}] op_sel_hi:[1,0,1]")

    stamp(0)
    A(f"v_lshrrev_b32 v{T}, 3, v0")
    A(f"v_mul_u32_u24 v{T}, 384, v{T}")
    A(f"v_and_b32 v{T+1}, 7, v0")
    A(f"v_lshl_add_u32 v{vOFF}, v{T+1}, 4, v{T}")
    A(f"s_lshl_b32 s77, {sB}, 5")
    A(f"s_add_u32 s77, s77, {sH}")
    A(f"s_mul_i32 s78, s77, {TASKB}")
    A(f"s_mul_i32 {sOFF}, {sJ}, 3072")
    A("s_waitcnt lgkmcnt(0)")
    srd(S_K, 6, TASKB, "s78")
    srd(S_V, 8, TASKB, "s78")

    def s_setup():
        A(f"v_mov_b32 v{vZ}, 0")
        A(f"s_lshl_b32 {sCT}, s77, 8")
        A(f"s_add_u32 {sCT}, {sCT}, {CT_OFF}")
        A(f"s_lshl_b32 {sOP}, s77, 3")
        A(f"s_add_u32 {sOP}, {sOP}, {sJ}")
        A(f"s_lshl_b32 {sOP}, {sOP}, 11")
        A(f"s_add_u32 {sOP}, {sOP}, {OP_OFF}")
        A(f"s_mul_i32 s77, {sB}, {4*6144}")
        A(f"s_add_u32 s77, s77, {L_SBUF}")
        A(f"s_mul_i32 s80, {sB}, 12288")
        A(f"v_lshlrev_b32 v{vLB+1}, 4, v0")
        A(f"v_add_u32 v{vLB}, s77, v{vLB+1}")
        A(f"v_add_u32 v{vLB+1}, s80, v{vLB+1}")
        srd(S_WS, 26, WS_SIZE)
        A(f"s_add_u32 s66, s26, {sCT}")
        A("s_addc_u32 s67, s27, 0")
        A("s_barrier")
    if not early:
        s_setup()
    last = lambda n: ("V", n) if n < NS else ("L", n - NS)
    for n in range(NS + NL):
        if n >= PACE:
            vwait(last(n - PACE))
            if n - PACE + 2 < 8:
                stamp(n - PACE + 2, "start")
        if n < NS:
            issueK(n, sOFF)
            issueV(n, sOFF)
        else:
            li = n - NS
            if li == (0 if np4 else 4):
                lds_wait(vZ, T, C_SYNC1, 4)
            for kv in range(2):
                for i in range(3):
                    A(f"s_add_u32 m0, {'s77' if li < 4 else 's80'}, {(li&3)*6144 + (3*kv+i)*1024 - 128*i}")
                    A(f"buffer_load_dwordx4 v{vOFF}, {S_K if kv == 0 else S_V}, {sOFF} offen offset:{128*i} nt lds")
                    vmq.append(("L", n - NS))
        A(f"s_add_u32 {sOFF}, {sOFF}, {8*3072}")
        if n == PACE - 1 and early:
            s_setup()
        if n == PACE - 1:
            A(f"v_mov_b32 v{vM}, 0xff7fffff")
            A(f"v_mov_b32 v{vL}, 0")
            for a in range(24):
                A(f"v_mov_b32 v{vACC+a}, 0")
    stamp(1)
    lds_wait(vZ, T, C_QRDY, 4)
    A(f"v_and_b32 v{T}, 7, v0")
    A(f"v_lshlrev_b32 v{T}, 4, v{T}")
    A(f"s_mul_i32 s78, {sB}, 384")
    A(f"v_add_u32 v{T}, s78, v{T}")
    for i in range(3):
        A(f"ds_read_b128 v[{vQ+4*i}:{vQ+4*i+3}], v{T} offset:{L_QL+128*i}")
    A(f"ds_read_b64 v[{vTAG}:{vTAG+1}], v{vZ} offset:{L_TAG}")
    A("s_waitcnt lgkmcnt(0)")
    if touch_op:
        A(f"v_lshlrev_b32 v{T}, 4, v0")
        A(f"buffer_store_dwordx4 v[{vACC}:{vACC+3}], v{T}, {S_WS}, {sOP} offen sc1")
        A(f"buffer_store_dwordx4 v[{vACC}:{vACC+3}], v{T}, {S_WS}, {sOP} offen offset:1024 sc1")
    stamp(2)

    def static_step(slot, with_atomic=False, save=False):
        vwait(("K", slot))

        def mid():
            if with_atomic:
                atomic(slot)
            issueK(slot, sOFF)
        consumeK(slot, mid)
        vwait(("V", slot), first=True)
        consumeV(slot)
        issueV(slot, sOFF)
        if save:
            A(f"s_mov_b32 s{sSL+slot}, {sOFF}")
        A(f"s_add_u32 {sOFF}, {sOFF}, {8*3072}")

    for s in range(D):
        static_step(s)
    backlog = [("reg", D + e) for e in range(E)] + [("lds", i) for i in range(NL)]
    nring = R0 - D
    done = 0
    for r in range(nring + 1):
        upto = len(backlog) if r == nring else (len(backlog) * (r + 1) + nring) // (nring + 1)
        while done < upto:
            kind, x = backlog[done]
            done += 1
            if kind == "reg":
                vwait(("K", x))
                consumeK(x)
                vwait(("V", x))
                consumeV(x)
                i = x - D
                if i < NL:
                    vwait(("L", i))
                    for k in range(6):
                        rr = vSLOT + x * 24 + 4 * k
                        A(f"ds_read_b128 v[{rr}:{rr+3}], v{vLB+(i>>2)} offset:{(i&3)*6144+1024*k}")
            else:
                A("s_waitcnt lgkmcnt(0)")
                if x == 0:
                    pass
                consumeK(D + x)
                consumeV(D + x)
        if r < nring:
            static_step(r % D)
    A(f"v_mov_b32 v{T}, 1")
    lds_inc(vZ, T, C_SFREE)
    if xr:
        A(f"s_sub_u32 s68, {sH}, {sB}")
        A("s_sub_u32 s68, s68, 20")
        A("s_and_b32 s68, s68, 31")
        A("s_lshr_b32 s68, s68, 2")
        A(f"s_cmp_eq_u32 s68, {sJ}")
    else:
        A("s_mov_b32 s68, 5")
        A(f"s_cmp_eq_u32 {sJ}, 5")
    A(f"s_cselect_b32 s77, {nA - XF // D}, {nA}")
    A(f"s_add_u32 s68, s68, {8*(S0-XF)}")
    A.label("L_loopA")
    shape = list(vmq)
    for s in range(D):
        static_step(s)
    assert vmq == shape, (vmq, shape)
    A("s_sub_u32 s77, s77, 1")
    A("s_cmp_lg_u32 s77, 0")
    A("s_cbranch_scc1 L_loopA")
    def satomic():
        A(f"s_mov_b32 s65, {1 if tk1 else D}")
        A("s_atomic_add s65, s[66:67], 0 glc")

    PF = POOL - HS
    sMK = lambda s: f"s[{40+2*s}:{41+2*s}]"
    if HS:
        A("s_mov_b32 s48, -1")
        A("s_mov_b32 s49, 0")
        A("s_mov_b32 s50, 0")
        A("s_mov_b32 s51, -1")
        for s in range(D):
            A(f"s_mov_b64 {sMK(s)}, -1")
    trig = any(k in late for k in ("wo", "wd", "gu"))
    if trig:
        A(f"s_mov_b32 s69, {POOL - LT}")
        A("v_mov_b32 v10, 1")
    if not tk1:
        satomic()
    for s in range(D):
        if tk1 and s == D - 1:
            satomic()
        static_step(s, save=True)
    stamp(3)
    A.label("L_loopB")
    shape = list(vmq)
    for s in range(D):
        A(f"s_cmp_ge_u32 s{sSL+s}, {TASKB}")
        A("s_cbranch_scc1 L_s_done")
        if not tk1 and s == 0:
            A("s_waitcnt lgkmcnt(0)")
            A("s_mov_b32 s64, s65")
            satomic()
        if HS:
            A(f"s_mov_b64 exec, {sMK(s)}")
        vwait(("K", s))

        def mid(s=s):
            if tk1:
                A("s_waitcnt lgkmcnt(0)")
                A("s_mov_b32 s78, s65")
                satomic()
            else:
                A(f"s_add_u32 s78, s64, {s}")
            if trig and s == 0:
                lab = A.newlabel("L_nodry")
                A("s_cmp_lt_u32 s78, s69")
                A(f"s_cbranch_scc1 {lab}")
                lds_inc(vZ, 10, C_DRY)
                A("s_mov_b32 s69, -1")
                A.label(lab)
            if HS:
                A(f"s_sub_u32 s79, s78, {PF}")
                A("s_bitcmp1_b32 s79, 0")
                A("s_cselect_b64 s[52:53], s[50:51], s[48:49]")
                A("s_lshr_b32 s79, s79, 1")
                A(f"s_add_u32 s79, s79, {PF}")
                A(f"s_cmp_lt_u32 s78, {PF}")
                A("s_cselect_b32 s78, s78, s79")
                A("s_cselect_b64 s[52:53], -1, s[52:53]")
            A(f"s_min_u32 s78, s78, {POOL}")
            A("s_lshl_b32 s79, s78, 3")
            A("s_add_u32 s79, s79, s68")
            A(f"s_add_u32 s80, s78, {8*S0-XF}")
            A(f"s_cmp_lt_u32 s78, {XF}")
            A("s_cselect_b32 s78, s79, s80")
            A(f"s_mul_i32 s{sSL+s}, s78, 3072")
            if HS:
                A("s_mov_b64 exec, s[52:53]")
            issueK(s, f"s{sSL+s}")
            if HS:
                A(f"s_mov_b64 exec, {sMK(s)}")
        consumeK(s, mid)
        vwait(("V", s), first=True)
        consumeV(s)
        if HS:
            A("s_mov_b64 exec, s[52:53]")
            A(f"s_mov_b64 {sMK(s)}, s[52:53]")
        issueV(s, f"s{sSL+s}")
    assert vmq == shape, (vmq, shape)
    A("s_branch L_loopB")
    A.label("L_s_done")
    A("s_mov_b64 exec, -1")
    stamp(4)
    t0, t1 = T, T + 1
    A(f"v_max_f32_dpp v{t0}, v{vM}, v{vM} row_ror:8 {DPP}")
    allred16_32("v_max_f32", t0, t1)
    A(f"v_sub_f32 v{t1}, v{vM}, v{t0}")
    A(f"v_mul_f32 v{t1}, {LOG2E}, v{t1}")
    A(f"v_exp_f32 v{vAL}, v{t1}")
    A(f"v_mul_f32 v{vL}, v{vL}, v{vAL}")
    for a in range(12):
        r = vACC + 2 * a
        A(f"v_pk_mul_f32 v[{r}:{r+1}], v[{r}:{r+1}], v[{vAL}:{vAL+1}] op_sel_hi:[1,0]")
    A(f"v_add_f32_dpp v{vL}, v{vL}, v{vL} row_ror:8 {DPP}")
    allred16_32("v_add_f32", vL, t1)
    for a in range(12):
        A(f"v_permlane32_swap_b32 v{vACC+a}, v{vACC+12+a}")
    for a in range(12):
        A(f"v_add_f32 v{vACC+a}, v{vACC+a}, v{vACC+12+a}")
    for a in range(6):
        A(f"v_permlane16_swap_b32 v{vACC+a}, v{vACC+6+a}")
    for a in range(6):
        A(f"v_add_f32 v{vACC+a}, v{vACC+a}, v{vACC+6+a}")
    A(f"v_and_b32 v{t1}, 8, v0")
    A(f"v_cmp_ne_u32 vcc, 0, v{t1}")
    if opc:
        O0, O1 = vQ, vQ + 4
        for r in range(3):
            A(f"v_cndmask_b32 v{vU+r}, v{vACC+3+r}, v{vACC+r}, vcc")
            A(f"v_cndmask_b32 v{O0+r}, v{vACC+r}, v{vACC+3+r}, vcc")
        A(f"v_mov_b32 v{O0+3}, v{vTAG}")
        for r in range(3):
            A(f"v_add_f32_dpp v{O0+r}, v{vU+r}, v{O0+r} row_ror:8 {DPP}")
        A(f"v_lshlrev_b32 v{t1}, 4, v0")
        A(f"buffer_store_dwordx4 v[{O0}:{O0+3}], v{t1}, {S_WS}, {sOP} offen sc1")
        A(f"v_mov_b32 v{O1}, v{t0}")
        A(f"v_mov_b32 v{O1+1}, v{vL}")
        A(f"v_mov_b32 v{O1+2}, v{vTAG}")
        A(f"v_mov_b32 v{O1+3}, v{vTAG+1}")
        A("s_mov_b64 exec, 1")
        A(f"buffer_store_dwordx4 v[{O1}:{O1+3}], v{t1}, {S_WS}, {sOP} offen offset:1024 sc1")
        A("s_mov_b64 exec, -1")
    else:
        O0, O1 = vQ, vQ + 4
        dst = [O0, O0 + 1, O1]
        for r in range(3):
            A(f"v_cndmask_b32 v{vU+r}, v{vACC+3+r}, v{vACC+r}, vcc")
            A(f"v_cndmask_b32 v{dst[r]}, v{vACC+r}, v{vACC+3+r}, vcc")
        A(f"v_and_b32 v{t1}, 1, v0")
        A(f"v_cmp_ne_u32 vcc, 0, v{t1}")
        for r in range(3):
            A(f"v_add_f32_dpp v{dst[r]}, v{vU+r}, v{dst[r]} row_ror:8 {DPP}")
        A(f"v_cndmask_b32 v{O1+1}, v{t0}, v{vL}, vcc")
        for o in (O0, O1):
            A(f"v_mov_b32 v{o+2}, v{vTAG}")
            A(f"v_mov_b32 v{o+3}, v{vTAG+1}")
        A(f"v_lshlrev_b32 v{t1}, 4, v0")
        A(f"buffer_store_dwordx4 v[{O0}:{O0+3}], v{t1}, {S_WS}, {sOP} offen sc1")
        A(f"buffer_store_dwordx4 v[{O1}:{O1+3}], v{t1}, {S_WS}, {sOP} offen offset:1024 sc1")
    stamp(5)
    A("s_barrier")
    stamp_flush(36)
    A("s_endpgm")

    A.label("L_helper")
    stamp(0)
    if prio:
        A("s_setprio 2")
    hZ, hONE, hL4, hL16 = 1, 2, 3, 4
    hAD = 5
    hX = 8
    hNC = 14
    hF = 16
    hT = 26
    hA = 32
    hD = 80
    hB = 92
    hG = 128
    hW1 = 160
    A(f"v_mov_b32 v{hZ}, 0")
    A(f"v_mov_b32 v{hONE}, 1")
    A(f"v_lshlrev_b32 v{hL4}, 2, v0")
    A(f"v_lshlrev_b32 v{hL16}, 4, v0")
    if np4:
        def get_tag(sfx):
            A(f"s_mov_b32 s81, {spin_g}")
            A.label(f"L_gf_{sfx}")
            A(f"v_readfirstlane_b32 s79, v{hNC}")
            A(f"v_readfirstlane_b32 s80, v{hNC+1}")
            A("s_cmp_eq_u32 s79, 0")
            A("s_cselect_b32 s80, 0, s80")
            A("s_cmp_lg_u32 s80, 0")
            A(f"s_cbranch_scc1 L_gfd_{sfx}")
            A("s_sleep 8")
            A(f"buffer_load_dwordx2 v[{hNC}:{hNC+1}], v{hZ}, {S_DBG}, 0 offen sc1")
            A("s_waitcnt vmcnt(0)")
            A("s_sub_u32 s81, s81, 1")
            A("s_cmp_lg_u32 s81, 0")
            A(f"s_cbranch_scc1 L_gf_{sfx}")
            A.label(f"L_gfd_{sfx}")
        for k in range(4):
            A(f"v_mov_b32 v{hG+k}, 0")
        A(f"ds_write_b128 v{hZ}, v[{hG}:{hG+3}] offset:{L_CNT}")
        A(f"ds_write_b64 v{hZ}, v[{hG}:{hG+1}] offset:{L_CNT+16}")
        A(f"ds_write_b32 v{hZ}, v{hG} offset:{L_CNT+32}")
        A(f"s_bitcmp1_b32 {sJ}, 0")
        A("s_cbranch_scc1 L_q_consumer")
        for i in range(3):
            A(f"v_add_u32 v{hT}, {64*i}, v0")
            A(f"v_mul_u32_u24 v{hT+1}, 2731, v{hT}")
            A(f"v_lshrrev_b32 v{hT+1}, 16, v{hT+1}")
            A(f"v_mul_u32_u24 v{hT+2}, 24, v{hT+1}")
            A(f"v_sub_u32 v{hT}, v{hT}, v{hT+2}")
            A(f"v_mul_u32_u24 v{hT+1}, 12288, v{hT+1}")
            A(f"v_lshl_add_u32 v{hAD+i}, v{hT}, 4, v{hT+1}")
        A("s_mul_i32 s75, s3, 1280")
        A(f"s_mul_i32 s76, {sJ}, {80*12288}")
        A(f"s_mul_i32 s77, {sG}, 384")
        A("s_add_u32 s76, s76, s77")
        A(f"s_mul_i32 s77, s3, {8*12288}")
        A("s_add_u32 s76, s76, s77")
        A("s_mul_i32 s83, s3, 3072")
        A(f"s_add_u32 s83, s83, {L_SBUF}")
        A("s_waitcnt lgkmcnt(0)")
        srd(S_X, 4, 5120)
        srd(S_WQ, 10, 640 * 6144 * 2)
        for u in range(5):
            A(f"buffer_load_dword v{hX+u}, v{hL4}, {S_X}, s75 offen offset:{256*u}")
        for blk in range(5):
            for i in range(3):
                A(f"s_add_u32 m0, s83, {blk*4*3072 + 1024*i}")
                A(f"buffer_load_dwordx4 v{hAD+i}, {S_WQ}, s76 offen nt lds")
            A(f"s_add_u32 s76, s76, {32*12288}")
        srd(S_DBG, 24, 256)
        srd(S_WS, 26, WS_SIZE)
        A("s_lshl_b32 s76, s3, 5")
        A(f"s_add_u32 s76, s76, {sG}")
        A("s_lshl_b32 s76, s76, 8")
        A(f"s_add_u32 s76, s76, {CT_OFF}")
        A(f"s_cmp_eq_u32 {sJ}, 0")
        A(f"s_cselect_b32 s76, s76, {OOB}")
        A("s_mov_b64 exec, 1")
        A(f"buffer_store_dword v{hZ}, v{hZ}, {S_WS}, s76 offen sc1")
        A("s_mov_b64 exec, -1")
        A("s_barrier")
        A("s_waitcnt vmcnt(16)")
        stamp(1, "start")
        layernorm([hX + u for u in range(5)], hX, hF, hT)
        A(f"v_add_u32 v{hAD}, s75, v{hL4}")
        for u in range(5):
            A(f"ds_write_b32 v{hAD}, v{hX+u} offset:{L_XN+256*u}")
        A(f"buffer_load_dwordx2 v[{hNC}:{hNC+1}], v{hZ}, {S_DBG}, 0 offen sc1")
        A(f"v_lshrrev_b32 v{hT}, 4, v0")
        A(f"v_and_b32 v{hT+1}, 3, v0")
        A(f"v_mul_u32_u24 v{hAD}, 1280, v{hT+1}")
        A(f"v_lshl_add_u32 v{hAD}, v{hT}, 4, v{hAD}")
        A(f"s_mul_i32 s77, {sJ}, 160")
        A(f"v_add_u32 v{hAD}, s77, v{hAD}")
        A(f"v_lshlrev_b32 v{hT}, 3, v{hT}")
        A(f"v_bfe_u32 v{hT+2}, v0, 2, 2")
        A(f"v_add_u32 v{hT}, v{hT}, v{hT+2}")
        A(f"v_mul_u32_u24 v{hAD+1}, 384, v{hT}")
        A(f"v_lshl_add_u32 v{hAD+1}, v{hT+1}, 3, v{hAD+1}")
        A("s_mul_i32 s77, s3, 96")
        A(f"s_add_u32 s77, s77, {L_SBUF}")
        A(f"v_add_u32 v{hAD+1}, s77, v{hAD+1}")
        A("s_mul_i32 s77, s3, 192")
        A(f"v_add_u32 v{hAD+2}, s77, v{hL4}")
        A("s_waitcnt vmcnt(2) lgkmcnt(0)")
        stamp(2, "start")
        lds_inc(hZ, hONE, C_SYNC0)
        lds_wait(hZ, hT, C_SYNC0, 4)
        stamp(3, "start")
        for t in range(5):
            A(f"ds_read_b128 v[{hA+4*t}:{hA+4*t+3}], v{hAD} offset:{L_XN+64*t}")
        for t in range(5):
            for tt in range(3):
                for hf in range(2):
                    r = hW1 + 12 * t + 4 * tt + 2 * hf
                    A(f"ds_read_b64_tr_b16 v[{r}:{r+1}], v{hAD+1} offset:{(32*t+4*hf)*384+32*tt}")
        for t in range(5):
            A(f"s_waitcnt lgkmcnt({min(15, 6*(4-t))})")
            for tt in range(3):
                r = hW1 + 12 * t + 4 * tt
                c = "0" if t == 0 else f"v[{hD+4*tt}:{hD+4*tt+3}]"
                A(f"v_mfma_f32_16x16x32_bf16 v[{hD+4*tt}:{hD+4*tt+3}], v[{hA+4*t}:{hA+4*t+3}], v[{r}:{r+3}], {c}")
        A("s_mov_b64 exec, 0xffff")
        for tt in range(3):
            for b in range(4):
                A(f"ds_write_b32 v{hAD+2}, v{hD+4*tt+b} offset:{L_RED+768*b+64*tt}")
        A("s_mov_b64 exec, -1")
        A("s_lshl_b32 s76, s2, 11")
        A("s_lshl_b32 s77, s3, 10")
        A("s_add_u32 s76, s76, s77")
        A("s_mul_i32 s78, s3, 768")
        A(f"v_mul_u32_u24 v{hAD}, 12, v0")
        A(f"v_add_u32 v{hAD}, s78, v{hAD}")
        A("s_waitcnt lgkmcnt(0)")
        lds_inc(hZ, hONE, C_SYNC1)
        lds_wait(hZ, hT, C_SYNC1, 4)
        for e in range(3):
            A(f"ds_read_b32 v{hD+e}, v{hAD} offset:{L_RED+4*e}")
        A("s_waitcnt vmcnt(0)")
        get_tag("p")
        A(f"v_mov_b32 v{hD+3}, v{hNC}")
        A("s_waitcnt lgkmcnt(0)")
        if not noqx:
            A(f"buffer_store_dwordx4 v[{hD}:{hD+3}], v{hL16}, {S_WS}, s76 offen sc1")
        stamp(4, "start")
        A("s_branch L_q_gather")
        A.label("L_q_consumer")
        A("s_waitcnt lgkmcnt(0)")
        srd(S_WS, 26, WS_SIZE)
        srd(S_DBG, 24, 256)
        srd(S_X, 4, 5120)
        srd(S_WQ, 10, 640 * 6144 * 2)
        A("s_lshl_b32 s77, s2, 2")
        A("s_add_u32 s77, s77, s3")
        A("s_cmp_lg_u32 s77, 4")
        A("s_cbranch_scc1 L_notag")
        A("s_memrealtime s[78:79]")
        A("s_waitcnt lgkmcnt(0)")
        A("s_or_b32 s78, s78, 1")
        A("s_or_b32 s79, s79, 0x80000000")
        A(f"v_mov_b32 v{hD}, s78")
        A(f"v_mov_b32 v{hD+1}, s79")
        A(f"v_mov_b32 v{hD+2}, 0")
        A(f"v_mov_b32 v{hD+3}, 0")
        A("s_mov_b64 exec, 1")
        A(f"buffer_atomic_cmpswap_x2 v[{hD}:{hD+3}], v{hZ}, {S_DBG}, 0 offen")
        A("s_mov_b64 exec, -1")
        A.label("L_notag")
        A("s_barrier")
        lds_inc(hZ, hONE, C_SYNC1)
        for k in range(qdelay):
            A("s_sleep 64")
        A(f"buffer_load_dwordx2 v[{hNC}:{hNC+1}], v{hZ}, {S_DBG}, 0 offen sc1")
        A("s_waitcnt vmcnt(0)")
        get_tag("c")
        A.label("L_q_gather")
        srd(S_WO, 12, 6144 * 640 * 2)
        srd(S_WG, 16, 640 * 1536 * 2)
        srd(S_WU, 18, 640 * 1536 * 2)
        srd(S_WD, 20, 1536 * 640 * 2)
        srd(S_OUT, 22, 5120)
        A("s_mov_b64 exec, 1")
        A(f"ds_write_b64 v{hZ}, v[{hNC}:{hNC+1}] offset:{L_TAG}")
        A("s_mov_b64 exec, -1")
        A(f"s_lshl_b32 s76, {sH}, 14")
        A("s_lshl_b32 s77, s3, 10")
        A("s_add_u32 s76, s76, s77")
        for k in range(1, 4):
            A(f"s_add_u32 s{76+k}, s76, {4096*k}")
        A("s_mul_i32 s80, s3, 384")
        A(f"v_mul_u32_u24 v{hAD}, 6, v0")
        A(f"v_add_u32 v{hAD}, s80, v{hAD}")
        stamp(1)
        if not noqx and qlight:
            A(f"v_lshlrev_b32 v{hAD+1}, 12, v0")
            A(f"s_mov_b32 s81, {spin_g}")
            A("s_mov_b64 exec, 0xf")
            A.label("L_qlight")
            A(f"buffer_load_dword v{hT}, v{hAD+1}, {S_WS}, s76 offen offset:1020 sc1")
            A("s_waitcnt vmcnt(0)")
            A(f"v_cmp_ne_u32 vcc, v{hT}, v{hNC}")
            A("s_cbranch_vccz L_qlightd")
            A(f"s_sleep {qsleep}")
            A("s_sub_u32 s81, s81, 1")
            A("s_cmp_lg_u32 s81, 0")
            A("s_cbranch_scc1 L_qlight")
            A.label("L_qlightd")
            A("s_mov_b64 exec, -1")
        if not noqx:
            Lp, Ld = A.newlabel("L_poll"), A.newlabel("L_pdone")
            dl = [f"buffer_load_dwordx4 v[{hG+4*u}:{hG+4*u+3}], v{hL16}, {S_WS}, s{76+u} offen sc1" for u in range(4)]
            A(f"s_mov_b32 s81, {spin_g}")
            for l in dl:
                A(l)
            A.label(Lp)
            A("s_waitcnt vmcnt(0)")
            for u in range(4):
                A(f"v_cmp_ne_u32 s[{4+2*u}:{5+2*u}], v{hG+4*u+3}, v{hNC}")
            A("s_or_b64 s[38:39], s[4:5], s[6:7]")
            A("s_or_b64 s[38:39], s[38:39], s[8:9]")
            A("s_or_b64 s[38:39], s[38:39], s[10:11]")
            A(f"s_cbranch_scc0 {Ld}")
            A(f"s_sleep {qsleep}")
            for u, l in enumerate(dl):
                A(f"s_mov_b64 exec, s[{4+2*u}:{5+2*u}]")
                A(l)
            A("s_mov_b64 exec, -1")
            A("s_sub_u32 s81, s81, 1")
            A("s_cmp_lg_u32 s81, 0")
            A(f"s_cbranch_scc1 {Lp}")
            A("s_waitcnt vmcnt(0)")
            A.label(Ld)
            stamp(6, "start")
            for e in range(3):
                A(f"v_add_f32 v{hG+e}, v{hG+e}, v{hG+4+e}")
                A(f"v_add_f32 v{hG+8+e}, v{hG+8+e}, v{hG+12+e}")
            for e in range(3):
                A(f"v_add_f32 v{hG+e}, v{hG+e}, v{hG+8+e}")
        A(f"v_cvt_pk_bf16_f32 v{hG+4}, v{hG}, v{hG+1}")
        A(f"v_cvt_pk_bf16_f32 v{hG+5}, v{hG+2}, v{hG+2}")
        A(f"ds_write_b16 v{hAD}, v{hG+4} offset:{L_QL}")
        A(f"ds_write_b16_d16_hi v{hAD}, v{hG+4} offset:{L_QL+2}")
        A(f"ds_write_b16 v{hAD}, v{hG+5} offset:{L_QL+4}")
        A("s_waitcnt lgkmcnt(0)")
        lds_inc(hZ, hONE, C_QRDY)
    else:
        for i in range(3):
            A(f"v_add_u32 v{hT}, {64*i}, v0")
            A(f"v_mul_u32_u24 v{hT+1}, 2731, v{hT}")
            A(f"v_lshrrev_b32 v{hT+1}, 16, v{hT+1}")
            A(f"v_mul_u32_u24 v{hT+2}, 24, v{hT+1}")
            A(f"v_sub_u32 v{hT}, v{hT}, v{hT+2}")
            A(f"v_mul_u32_u24 v{hT+1}, 12288, v{hT+1}")
            A(f"v_lshl_add_u32 v{hAD+i}, v{hT}, 4, v{hT+1}")
        A("s_mul_i32 s75, s3, 1280")
        A(f"s_mul_i32 s76, {sJ}, {80*12288}")
        A(f"s_mul_i32 s77, {sG}, 384")
        A("s_add_u32 s76, s76, s77")
        A(f"s_mul_i32 s77, s3, {8*12288}")
        A("s_add_u32 s76, s76, s77")
        A("s_mul_i32 s83, s3, 3072")
        A("s_waitcnt lgkmcnt(0)")
        srd(S_X, 4, 5120)
        srd(S_WQ, 10, 640 * 6144 * 2)
        for u in range(5):
            A(f"buffer_load_dword v{hX+u}, v{hL4}, {S_X}, s75 offen offset:{256*u}")
        for blk in range(3):
            if blk == 2:
                A("s_cmp_lt_u32 s3, 2")
                A(f"s_cselect_b32 s76, s76, {OOB}")
            for i in range(3):
                A(f"s_add_u32 m0, s83, {blk*4*3072 + 1024*i}")
                A(f"buffer_load_dwordx4 v{hAD+i}, {S_WQ}, s76 offen nt lds")
            A(f"s_add_u32 s76, s76, {32*12288}")
        srd(S_DBG, 24, 256)
        srd(S_WS, 26, WS_SIZE)
        A("s_add_u32 s77, s2, s3")
        A("s_cmp_lg_u32 s77, 0")
        A("s_cbranch_scc1 L_notag")
        A("s_memrealtime s[78:79]")
        A("s_waitcnt lgkmcnt(0)")
        A("s_or_b32 s78, s78, 1")
        A("s_or_b32 s79, s79, 0x80000000")
        A(f"v_mov_b32 v{hD}, s78")
        A(f"v_mov_b32 v{hD+1}, s79")
        A(f"v_mov_b32 v{hD+2}, 0")
        A(f"v_mov_b32 v{hD+3}, 0")
        A("s_mov_b64 exec, 1")
        A(f"buffer_atomic_cmpswap_x2 v[{hD}:{hD+3}], v{hZ}, {S_DBG}, 0 offen")
        A("s_mov_b64 exec, -1")
        A.label("L_notag")
        A("s_lshl_b32 s76, s3, 5")
        A(f"s_add_u32 s76, s76, {sG}")
        A("s_lshl_b32 s76, s76, 8")
        A(f"s_add_u32 s76, s76, {CT_OFF}")
        A(f"s_cmp_eq_u32 {sJ}, 0")
        A(f"s_cselect_b32 s76, s76, {OOB}")
        A("s_mov_b64 exec, 1")
        A(f"buffer_store_dword v{hZ}, v{hZ}, {S_WS}, s76 offen sc1")
        A("s_mov_b64 exec, -1")
        for k in range(4):
            A(f"v_mov_b32 v{hG+k}, 0")
        A(f"ds_write_b128 v{hZ}, v[{hG}:{hG+3}] offset:{L_CNT}")
        A(f"ds_write_b64 v{hZ}, v[{hG}:{hG+1}] offset:{L_CNT+16}")
        A(f"ds_write_b32 v{hZ}, v{hG} offset:{L_CNT+32}")
        A("s_waitcnt lgkmcnt(0)")
        A("s_barrier")
        srd(S_WO, 12, 6144 * 640 * 2)
        srd(S_WG, 16, 640 * 1536 * 2)
        srd(S_WU, 18, 640 * 1536 * 2)
        srd(S_WD, 20, 1536 * 640 * 2)
        srd(S_OUT, 22, 5120)
        A("s_waitcnt vmcnt(10)")
        stamp(1, "start")
        layernorm([hX + u for u in range(5)], hX, hF, hT)
        A(f"v_add_u32 v{hAD}, s75, v{hL4}")
        for u in range(5):
            A(f"ds_write_b32 v{hAD}, v{hX+u} offset:{L_XN+256*u}")
        A(f"buffer_load_dwordx2 v[{hNC}:{hNC+1}], v{hZ}, {S_DBG}, 0 offen sc1")
        A(f"v_lshrrev_b32 v{hT}, 4, v0")
        A(f"v_and_b32 v{hT+1}, 3, v0")
        A(f"v_mul_u32_u24 v{hAD}, 1280, v{hT+1}")
        A(f"v_lshl_add_u32 v{hAD}, v{hT}, 3, v{hAD}")
        A(f"s_mul_i32 s77, {sJ}, 160")
        A(f"v_add_u32 v{hAD}, s77, v{hAD}")
        A(f"v_bfe_u32 v{hT+2}, v0, 2, 2")
        A(f"v_lshl_add_u32 v{hT+3}, v{hT}, 2, v{hT+2}")
        A(f"v_mul_u32_u24 v{hAD+1}, 384, v{hT+3}")
        A(f"v_lshl_add_u32 v{hAD+1}, v{hT+1}, 3, v{hAD+1}")
        A("s_mul_i32 s77, s3, 96")
        A(f"v_add_u32 v{hAD+1}, s77, v{hAD+1}")
        A("s_mul_i32 s77, s3, 192")
        A(f"v_add_u32 v{hAD+2}, s77, v{hL4}")
        A("s_waitcnt vmcnt(2) lgkmcnt(0)")
        stamp(2, "start")
        lds_inc(hZ, hONE, C_SYNC0)
        lds_wait(hZ, hT, C_SYNC0, 4)
        stamp(3, "start")
        for t in range(5):
            A(f"ds_read_b64 v[{hA+2*t}:{hA+2*t+1}], v{hAD} offset:{L_XN+32*t}")
        for tt in range(3):
            for t in range(5):
                r = hB + 2 * (tt * 5 + t)
                A(f"ds_read_b64_tr_b16 v[{r}:{r+1}], v{hAD+1} offset:{16*384*t+32*tt}")
        for tt in range(3):
            A(f"s_waitcnt lgkmcnt({10-5*tt})")
            for t in range(5):
                r = hB + 2 * (tt * 5 + t)
                c = "0" if t == 0 else f"v[{hD+4*tt}:{hD+4*tt+3}]"
                A(f"v_mfma_f32_16x16x16_bf16 v[{hD+4*tt}:{hD+4*tt+3}], v[{hA+2*t}:{hA+2*t+1}], v[{r}:{r+1}], {c}")
        A("s_mov_b64 exec, 0xffff")
        for tt in range(3):
            for b in range(4):
                A(f"ds_write_b32 v{hAD+2}, v{hD+4*tt+b} offset:{L_RED+768*b+64*tt}")
        A("s_mov_b64 exec, -1")
        A("s_lshl_b32 s76, s2, 12")
        A("s_lshl_b32 s77, s3, 10")
        A("s_add_u32 s76, s76, s77")
        A("s_mul_i32 s78, s3, 768")
        A(f"v_add_u32 v{hAD}, s78, v{hL16}")
        A("s_waitcnt lgkmcnt(0)")
        lds_inc(hZ, hONE, C_SYNC1)
        lds_wait(hZ, hT, C_SYNC1, 4)
        A(f"ds_read_b128 v[{hD}:{hD+3}], v{hAD} offset:{L_RED}")
        A("s_waitcnt lgkmcnt(0)")
        A("s_mov_b32 exec_hi, 0xffff")
        if not noqx:
            A(f"buffer_store_dwordx4 v[{hD}:{hD+3}], v{hL16}, {S_WS}, s76 offen sc1")
        A("s_mov_b32 exec_hi, -1")
        stamp(4, "start")
        A(f"s_lshl_b32 s78, {sH}, 15")
        A("s_add_u32 s78, s78, s77")
        A(f"v_lshlrev_b32 v{hAD+1}, 12, v0")
        A("s_mul_i32 s77, s3, 384")
        A(f"v_lshl_add_u32 v{hAD}, v0, 3, s77")
        A("s_waitcnt vmcnt(0)")
        stamp(5, "start")
        A(f"s_mov_b32 s81, {spin_g}")
        A.label("L_gf")
        A(f"v_readfirstlane_b32 s79, v{hNC}")
        A(f"v_readfirstlane_b32 s80, v{hNC+1}")
        A("s_cmp_eq_u32 s79, 0")
        A("s_cselect_b32 s80, 0, s80")
        A("s_cmp_lg_u32 s80, 0")
        A("s_cbranch_scc1 L_gfd")
        A("s_sleep 2")
        A(f"buffer_load_dwordx2 v[{hNC}:{hNC+1}], v{hZ}, {S_DBG}, 0 offen sc1")
        A("s_waitcnt vmcnt(0)")
        A("s_sub_u32 s81, s81, 1")
        A("s_cmp_lg_u32 s81, 0")
        A("s_cbranch_scc1 L_gf")
        A.label("L_gfd")
        A("s_mov_b64 exec, 1")
        if not noqx:
            A(f"buffer_store_dwordx2 v[{hNC}:{hNC+1}], v{hZ}, {S_WS}, s76 offen offset:768 sc1")
        A(f"ds_write_b64 v{hZ}, v[{hNC}:{hNC+1}] offset:{L_TAG}")
        A("s_mov_b64 exec, -1")
        stamp(1)
        if not noqx:
            poll_tagged([f"buffer_load_dwordx2 v[{hT}:{hT+1}], v{hAD+1}, {S_WS}, s78 offen offset:768 sc1"], [hT], hNC, hT + 2,
                        sleep=qsleep, mask="0xff")
            stamp(6, "start")
            A("s_mov_b32 exec_hi, 0xffff")
            for jj in range(8):
                A(f"buffer_load_dwordx4 v[{hG+4*jj}:{hG+4*jj+3}], v{hL16}, {S_WS}, s78 offen sc1")
                A("s_add_u32 s78, s78, 4096")
            for jj in range(1, 8):
                A(f"s_waitcnt vmcnt({7-jj})")
                for e in range(4):
                    A(f"v_add_f32 v{hG+e}, v{hG+e}, v{hG+4*jj+e}")
        A("s_mov_b32 exec_hi, 0xffff")
        A(f"v_cvt_pk_bf16_f32 v{hG+4}, v{hG}, v{hG+1}")
        A(f"v_cvt_pk_bf16_f32 v{hG+5}, v{hG+2}, v{hG+3}")
        A(f"ds_write_b64 v{hAD}, v[{hG+4}:{hG+5}] offset:{L_QL}")
        A("s_mov_b32 exec_hi, -1")
        A("s_waitcnt lgkmcnt(0)")
        lds_inc(hZ, hONE, C_QRDY)
    stamp(2)
    stamp(7, "start")
    if prio:
        A("s_setprio 0")

    def tr_addr(dst, rowbytes, base, k16=False):
        A(f"v_lshrrev_b32 v{hT}, 4, v0")
        A(f"v_lshlrev_b32 v{hT}, {2 if k16 else 3}, v{hT}")
        A(f"v_bfe_u32 v{hT+1}, v0, 2, 2")
        A(f"v_add_u32 v{hT}, v{hT}, v{hT+1}")
        A(f"v_mul_u32_u24 v{dst}, {rowbytes}, v{hT}")
        A(f"v_and_b32 v{hT+1}, 3, v0")
        A(f"v_lshl_add_u32 v{dst}, v{hT+1}, 3, v{dst}")
        A(f"v_add_u32 v{dst}, {base}, v{dst}")

    def warm_code(l0, l1, tmp):
        if not warm:
            return
        lab = A.newlabel("L_pc")
        A("s_getpc_b64 s[20:21]")
        A.label(lab)
        A(f"s_add_u32 s20, s20, {l0}-{lab}")
        A("s_addc_u32 s21, s21, 0")
        A(f"v_lshlrev_b32 v{tmp}, 7, v0")
        A(f"v_min_u32 v{tmp}, ({l1}-{l0}-4)&~3, v{tmp}")
        A(f"global_load_dword v{tmp}, v{tmp}, s[20:21]")

    def warm_icache(tag):
        if not pads:
            return
        A("s_mov_b64 exec, 0")
        A(f"s_cbranch_execz L_pad0_{tag}")
        A.label(f"L_padret_{tag}")
        A("s_mov_b64 exec, -1")

    def pack24(o, src):
        for i in range(3):
            A(f"v_perm_b32 v{o+i}, v{src+i}, v{src+3}, s{44+i}")

    def set_sel():
        for i in range(3):
            A(f"s_mov_b32 s{44+i}, 0x0706050{3-i}")

    def split_halves(d):
        A(f"v_cndmask_b32 v{d}, v{d}, v{d+2}, s[34:35]")
        A(f"v_cndmask_b32 v{d+1}, v{d+1}, v{d+3}, s[34:35]")
        A(f"v_mov_b32 v{d+2}, v{hNC}")
        A(f"v_mov_b32 v{d+3}, v{hNC+1}")

    hGO = 13
    A(f"v_and_b32 v{hT}, 15, v0")
    A(f"v_lshlrev_b32 v{hGO}, 5, v{hT}")
    A(f"v_and_b32 v{hT}, 16, v0")
    A(f"v_add_u32 v{hGO}, v{hGO}, v{hT}")
    A("v_cmp_lt_u32 s[34:35], 15, v0")
    A("s_mul_i32 s83, s3, 12288")
    rH, rC = "s100", "s101"
    if xr:
        A(f"s_sub_u32 {rH}, {sG}, 24")
        A(f"s_lshl_b32 {rH}, {rH}, 3")
        A(f"s_add_u32 {rH}, {rH}, {sJ}")
        A(f"s_cmp_ge_u32 {sG}, 24")
        A("s_cbranch_scc1 L_role_red")
        A(f"s_lshl_b32 {rH}, {sJ}, 2")
        A(f"s_add_u32 {rH}, {rH}, {sG}")
        A(f"s_sub_u32 {rH}, {rH}, 20")
        A(f"s_cmp_ge_u32 {sG}, 20")
        A("s_cbranch_scc1 L_role_ffn")
        A(f"s_mul_i32 {rH}, {sG}, 13")
        A(f"s_lshr_b32 {rH}, {rH}, 6")
        A(f"s_mul_i32 {rC}, {rH}, 5")
        A(f"s_sub_u32 {rC}, {sG}, {rC}")
        A(f"s_lshl_b32 {rH}, {rH}, 3")
        A(f"s_add_u32 {rH}, {rH}, {sJ}")
    else:
        A(f"s_lshl_b32 {rH}, {sG}, 1")
        A(f"s_add_u32 {rH}, {rH}, {sJ}")
        A(f"s_sub_u32 {rH}, {rH}, 6")
        A(f"s_cmp_gt_u32 {sJ}, 5")
        A("s_cbranch_scc1 L_role_red")
        A(f"s_mov_b32 {rH}, {sG}")
        A(f"s_mov_b32 {rC}, {sJ}")
        A(f"s_cmp_eq_u32 {sJ}, 5")
        A("s_cbranch_scc1 L_role_ffn")

    A(f"s_mul_i32 s32, {rH}, {10240 if ypc else 20480}")
    A(f"s_lshl_b32 s77, {rC}, {11 if ypc else 12}")
    A("s_add_u32 s32, s32, s77")
    A(f"s_lshl_b32 s77, s3, {9 if ypc else 10}")
    set_sel()
    A("s_add_u32 s32, s32, s77")
    A(f"s_add_u32 s32, s32, {YP_OFF}")
    if touch_y:
        for k in range(4):
            A(f"v_mov_b32 v{hG+k}, 0")
        A(f"buffer_store_dwordx4 v[{hG}:{hG+3}], v{hL16}, {S_WS}, s32 offen sc1")
    if not noweights:
        A(f"v_lshrrev_b32 v{hAD}, 4, v0")
        A(f"v_mul_u32_u24 v{hAD}, 1280, v{hAD}")
        A(f"v_and_b32 v{hT}, 15, v0")
        A(f"v_lshl_add_u32 v{hAD}, v{hT}, 4, v{hAD}")
        A(f"s_mul_i32 s76, {rH}, {192*1280}")
        A(f"s_lshl_b32 s77, {rC}, 8")
        A("s_add_u32 s76, s76, s77")
        A(f"s_mul_i32 s77, s3, {48*1280}")
        A("s_add_u32 s76, s76, s77")
        if NL > 4:
            lds_wait(hZ, hT, C_SFREE, 4, sleep=16)
        if "wo" in late:
            lds_wait(hZ, hT, C_DRY, 1, sleep=8)
        for u in range(12):
            A(f"s_add_u32 m0, s83, {1024*u}")
            A(f"buffer_load_dwordx4 v{hAD}, {S_WO}, s76 offen nt lds")
            A(f"s_add_u32 s76, s76, {4*1280}")
        A("s_lshl_b32 s77, s3, 6")
        tr_addr(hAD + 1, 256, "s77")
        A("s_waitcnt vmcnt(0)")
        lds_inc(hZ, hONE, C_WSYNC)
        lds_wait(hZ, hT, C_WSYNC, 4, sleep=4)
        for tt in range(2):
            for t in range(6):
                for hf in range(2):
                    r = hW1 + 4 * (tt * 6 + t) + 2 * hf
                    A(f"ds_read_b64_tr_b16 v[{r}:{r+1}], v{hAD+1} offset:{(32*t+4*hf)*256+32*tt}")
    hAF, hOD = 122, 124
    A(f"v_and_b32 v{hT}, 3, v0")
    A(f"v_lshrrev_b32 v{hT+1}, 4, v0")
    A(f"v_mul_u32_u24 v{hAF}, 384, v{hT}")
    A(f"v_lshl_add_u32 v{hAF}, v{hT+1}, 4, v{hAF}")
    A(f"v_lshrrev_b32 v{hT}, 3, v0")
    A(f"v_mul_u32_u24 v{hT}, 3, v{hT}")
    A(f"v_and_b32 v{hT+1}, 7, v0")
    A(f"v_lshlrev_b32 v{hT+1}, 4, v{hT+1}")
    A("s_mul_i32 s76, s3, 384")
    A(f"v_add_u32 v{hT+1}, s76, v{hT+1}")
    for r in range(3):
        A(f"v_add_u32 v{hT+2}, {r}, v{hT}")
        A(f"v_lshrrev_b32 v{hT+3}, 3, v{hT+2}")
        A(f"v_lshlrev_b32 v{hT+3}, 7, v{hT+3}")
        A(f"v_and_b32 v{hT+2}, 7, v{hT+2}")
        A(f"v_lshlrev_b32 v{hT+2}, 1, v{hT+2}")
        A(f"v_add3_u32 v{hOD+r}, v{hT+1}, v{hT+2}, v{hT+3}")
    A("s_lshl_b32 s76, s3, 5")
    A(f"s_add_u32 s76, s76, {rH}")
    A("s_lshl_b32 s76, s76, 14")
    A(f"s_add_u32 s76, s76, {OP_OFF}")
    for k in range(1, 4):
        A(f"s_add_u32 s{76+k}, s76, {4096*k}")
    A(f"v_and_b32 v{hT}, 1, v0")
    A(f"v_cmp_ne_u32 s[36:37], 0, v{hT}")
    if opc:
        A(f"v_mov_b32 v{hA+4}, v{hNC}")
        A(f"v_and_b32 v{hA+5}, 7, v0")
        A(f"v_lshlrev_b32 v{hA+5}, 11, v{hA+5}")
    warm_code("L_tail_wo", "L_role_red", hT + 5)
    A("s_waitcnt lgkmcnt(0)")
    warm_icache("wo")
    A("s_barrier")
    A.label("L_tail_wo")
    if pads:
        A.pads_begin("L_pad0_wo", pads)
    stamp(3)
    if opc:
        hML, hTW = hA, hA + 4
        Lp, Ld = A.newlabel("L_poll"), A.newlabel("L_pdone")
        A.pads_pause(True)
        dl = [f"buffer_load_dwordx4 v[{hG+4*jj}:{hG+4*jj+3}], v{hL16}, {S_WS}, s{76+(jj>>1)} offen offset:{2048*(jj&1)} sc1" for jj in range(8)]
        ml = f"buffer_load_dwordx4 v[{hML}:{hML+3}], v{hTW+1}, {S_WS}, s76 offen offset:1024 sc1"
        A(f"s_mov_b32 s81, {spin_g}")
        for l in dl:
            A(l)
        A(ml)
        A.label(Lp)
        A("s_waitcnt vmcnt(0)")
        for jj in range(8):
            A(f"v_cmp_ne_u32 s[{4+2*jj}:{5+2*jj}], v{hG+4*jj+3}, v{hTW}")
        A(f"v_cmp_ne_u64 s[20:21], v[{hML+2}:{hML+3}], v[{hNC}:{hNC+1}]")
        A("s_or_b64 s[38:39], s[4:5], s[6:7]")
        for i in range(2, 9):
            A(f"s_or_b64 s[38:39], s[38:39], s[{4+2*i}:{5+2*i}]")
        A(f"s_cbranch_scc0 {Ld}")
        if psleep:
            A(f"s_sleep {psleep}")
        for i, l in enumerate(dl + [ml]):
            A(f"s_mov_b64 exec, s[{4+2*i}:{5+2*i}]")
            A(l)
        A("s_mov_b64 exec, -1")
        A("s_sub_u32 s81, s81, 1")
        A("s_cmp_lg_u32 s81, 0")
        A(f"s_cbranch_scc1 {Lp}")
        A("s_waitcnt vmcnt(0)")
        A.label(Ld)
        A.pads_pause(False)
        stamp(4)
        A(f"v_max_f32_dpp v{hT}, v{hML}, v{hML} quad_perm:[1,0,3,2] {DPP}")
        A(f"v_max_f32_dpp v{hT}, v{hT}, v{hT} quad_perm:[2,3,0,1] {DPP}")
        A(f"v_max_f32_dpp v{hT}, v{hT}, v{hT} row_half_mirror {DPP}")
        A(f"v_sub_f32 v{hT}, v{hML}, v{hT}")
        A(f"v_mul_f32 v{hT}, {LOG2E}, v{hT}")
        A(f"v_exp_f32 v{hT}, v{hT}")
        A(f"v_mul_f32 v{hT+1}, v{hT}, v{hML+1}")
        A(f"v_add_f32_dpp v{hT+1}, v{hT+1}, v{hT+1} quad_perm:[1,0,3,2] {DPP}")
        A(f"v_add_f32_dpp v{hT+1}, v{hT+1}, v{hT+1} quad_perm:[2,3,0,1] {DPP}")
        A(f"v_add_f32_dpp v{hT+1}, v{hT+1}, v{hT+1} row_half_mirror {DPP}")
        A(f"v_rcp_f32 v{hT+1}, v{hT+1}")
        A(f"v_mul_f32 v{hT}, v{hT}, v{hT+1}")
        for jj in range(8):
            A(f"v_readlane_b32 s{4+jj}, v{hT}, {jj}")
        for r in range(3):
            A(f"v_mul_f32 v{hT+2+r}, s4, v{hG+r}")
        for jj in range(1, 8):
            for r in range(3):
                A(f"v_fmac_f32 v{hT+2+r}, s{4+jj}, v{hG+4*jj+r}")
    else:
        g0 = lambda jj: hG + 4 * jj
        g1 = lambda jj: hA + 4 * jj
        lt = []
        for jj in range(8):
            for k, g in enumerate((g0(jj), g1(jj))):
                lt.append(f"buffer_load_dwordx4 v[{g}:{g+3}], v{hL16}, {S_WS}, s{76+(jj>>1)} offen offset:{2048*(jj&1)+1024*k} sc1")
        if selpoll:
            poll_sel([(lt[2*jj:2*jj+2], [g0(jj) + 2, g1(jj) + 2]) for jj in range(8)], hNC, sleep=psleep)
        else:
            poll_tagged(lt, [g0(jj) + 2 for jj in range(8)] + [g1(jj) + 2 for jj in range(8)], hNC, hT, sleep=psleep)
        stamp(4)
        hMx, hWt = hB, hB + 8
        for jj in range(8):
            A(f"v_mov_b32_dpp v{hMx+jj}, v{g1(jj)+1} quad_perm:[1,0,3,2] {DPP}")
        for jj in range(8):
            A(f"v_cndmask_b32 v{hWt+jj}, v{g1(jj)+1}, v{hMx+jj}, s[36:37]")
            A(f"v_cndmask_b32 v{hMx+jj}, v{hMx+jj}, v{g1(jj)+1}, s[36:37]")
        A(f"v_max3_f32 v{hT}, v{hWt}, v{hWt+1}, v{hWt+2}")
        A(f"v_max3_f32 v{hT+1}, v{hWt+3}, v{hWt+4}, v{hWt+5}")
        A(f"v_max3_f32 v{hT}, v{hT}, v{hWt+6}, v{hWt+7}")
        A(f"v_max_f32 v{hT}, v{hT}, v{hT+1}")
        for jj in range(8):
            A(f"v_sub_f32 v{hWt+jj}, v{hWt+jj}, v{hT}")
        for jj in range(8):
            A(f"v_mul_f32 v{hWt+jj}, {LOG2E}, v{hWt+jj}")
        for jj in range(8):
            A(f"v_exp_f32 v{hWt+jj}, v{hWt+jj}")
        oreg = lambda jj, r: (g0(jj), g0(jj) + 1, g1(jj))[r]
        A(f"v_mul_f32 v{hT+1}, v{hWt}, v{hMx}")
        for r in range(3):
            A(f"v_mul_f32 v{hT+2+r}, v{hWt}, v{oreg(0, r)}")
        for jj in range(1, 8):
            A(f"v_fmac_f32 v{hT+1}, v{hWt+jj}, v{hMx+jj}")
            for r in range(3):
                A(f"v_fmac_f32 v{hT+2+r}, v{hWt+jj}, v{oreg(jj, r)}")
        A(f"v_rcp_f32 v{hT}, v{hT+1}")
        for r in range(3):
            A(f"v_mul_f32 v{hT+2+r}, v{hT+2+r}, v{hT}")
    A(f"v_cvt_pk_bf16_f32 v{hT}, v{hT+2}, v{hT+3}")
    A(f"v_cvt_pk_bf16_f32 v{hT+1}, v{hT+4}, v{hT+4}")
    A(f"ds_write_b16 v{hOD}, v{hT} offset:{L_OL}")
    A(f"ds_write_b16_d16_hi v{hOD+1}, v{hT} offset:{L_OL}")
    A(f"ds_write_b16 v{hOD+2}, v{hT+1} offset:{L_OL}")
    A("s_waitcnt lgkmcnt(0)")
    A("s_barrier")
    for t in range(6):
        A(f"ds_read_b128 v[{hA+4*t}:{hA+4*t+3}], v{hAF} offset:{L_OL+64*t}")
    for t in range(6):
        A(f"s_waitcnt lgkmcnt({5-t})")
        for tt in range(2):
            r = hW1 + 4 * (tt * 6 + t)
            c = "0" if t == 0 else f"v[{hD+4*tt}:{hD+4*tt+3}]"
            A(f"v_mfma_f32_16x16x32_bf16 v[{hD+4*tt}:{hD+4*tt+3}], v[{hA+4*t}:{hA+4*t+3}], v[{r}:{r+3}], {c}")
    A("s_mov_b32 exec_hi, 0")
    if ypc:
        A(f"v_mov_b32 v{hD+11}, v{hNC}")
        for e in range(4):
            A(f"v_cndmask_b32 v{hD+e}, v{hD+e}, v{hD+4+e}, s[34:35]")
        pack24(hD + 8, hD)
        A(f"buffer_store_dwordx4 v[{hD+8}:{hD+11}], v{hL16}, {S_WS}, s32 offen sc1")
    else:
        for tt in range(2):
            split_halves(hD + 4 * tt)
            A(f"buffer_store_dwordx4 v[{hD+4*tt}:{hD+4*tt+3}], v{hGO}, {S_WS}, s32 offen offset:{512*tt} sc1")
    A("s_mov_b32 exec_hi, -1")
    if pads:
        A.pads_end("L_padret_wo")
    stamp(5)
    A("s_branch L_h_end")

    A.label("L_role_red")
    A("s_lshl_b32 s77, s3, 6")
    A(f"s_add_u32 s33, {rH}, s77")
    A("s_cmp_ge_u32 s33, 80")
    A("s_cbranch_scc1 L_h_end")
    A("s_lshl_b32 s36, s33, 7")
    A(f"s_add_u32 s36, s36, {HB_OFF}")
    A("s_lshl_b32 s37, s33, 4")
    if touch_y:
        for k in range(4):
            A(f"v_mov_b32 v{hG+k}, 0")
        A("s_mov_b64 exec, 0xff")
        A(f"buffer_store_dwordx4 v[{hG}:{hG+3}], v{hL16}, {S_WS}, s36 offen sc1")
        A("s_mov_b64 exec, -1")
    if ypc:
        hRS = hB
        A(f"v_and_b32 v{hT+2}, 7, v0")
        A(f"v_lshlrev_b32 v{hT+3}, 1, v{hT+2}")
        for bb in range(4):
            A(f"buffer_load_ushort v{hX+bb}, v{hT+3}, {S_X}, s37 offen offset:{1280*bb}")
        A(f"v_and_b32 v{hT+4}, 1, v0")
        A(f"v_cmp_ne_u32 s[34:35], 0, v{hT+4}")
        A(f"v_mul_u32_u24 v{hAD}, 2558, v{hT+4}")
        A(f"v_add_u32 v{hAD}, v{hAD}, v{hT+3}")
        A(f"v_lshlrev_b32 v{hAD+2}, 4, v{hT+2}")
        A(f"v_lshrrev_b32 v{hT+4}, 3, v0")
        A(f"v_mul_u32_u24 v{hAD+1}, 10240, v{hT+4}")
        A(f"v_lshl_add_u32 v{hAD+1}, v{hT+2}, 4, v{hAD+1}")
        A("s_mov_b32 s44, 0x0c040000")
        A("s_mov_b32 s45, 0x07060000")
        if tlb:
            A(f"buffer_load_dword v{hG}, v{hAD}, {S_OUT}, s37 offen")
        A("s_waitcnt vmcnt(0)")
        for bb in range(4):
            A(f"v_lshlrev_b32 v{hRS+bb}, 16, v{hX+bb}")
        warm_code("L_tail_red", "L_role_ffn", hT + 5)
        warm_icache("red")
        A("s_barrier")
        A.label("L_tail_red")
        if pads:
            A.pads_begin("L_pad0_red", pads)
        stamp(3)

        def reduce32c(base_off, st):
            A("s_lshl_b32 s76, s33, 7")
            A(f"s_add_u32 s76, s76, {base_off}")
            for u in range(1, 4):
                A(f"s_add_u32 s{76+u}, s76, {81920*u}")
            Lp, Ld = A.newlabel("L_poll"), A.newlabel("L_pdone")
            A.pads_pause(True)
            dl = [f"buffer_load_dwordx4 v[{hG+4*u}:{hG+4*u+3}], v{hAD+1}, {S_WS}, s{76+u} offen sc1" for u in range(4)]
            A(f"s_mov_b32 s81, {spin_g}")
            for l in dl:
                A(l)
            A.label(Lp)
            A("s_waitcnt vmcnt(0)")
            for u in range(4):
                A(f"v_cmp_ne_u32 s[{4+2*u}:{5+2*u}], v{hG+4*u+3}, v{hNC}")
            A("s_or_b64 s[38:39], s[4:5], s[6:7]")
            A("s_or_b64 s[38:39], s[38:39], s[8:9]")
            A("s_or_b64 s[38:39], s[38:39], s[10:11]")
            A(f"s_cbranch_scc0 {Ld}")
            if psleep:
                A(f"s_sleep {psleep}")
            for u, l in enumerate(dl):
                A(f"s_mov_b64 exec, s[{4+2*u}:{5+2*u}]")
                A(l)
            A("s_mov_b64 exec, -1")
            A("s_sub_u32 s81, s81, 1")
            A("s_cmp_lg_u32 s81, 0")
            A(f"s_cbranch_scc1 {Lp}")
            A("s_waitcnt vmcnt(0)")
            A.label(Ld)
            A.pads_pause(False)
            stamp(st)
            for u in range(4):
                g = hG + 4 * u
                A(f"v_lshlrev_b32 v{hT}, 24, v{g}")
                A(f"v_and_b32 v{hT+1}, 0xff, v{g+1}")
                A(f"v_lshl_or_b32 v{hT}, v{hT+1}, 16, v{hT}")
                A(f"v_and_b32 v{hT+1}, 0xff, v{g+2}")
                A(f"v_lshl_or_b32 v{g+3}, v{hT+1}, 8, v{hT}")
                for e in range(3):
                    A(f"v_and_b32 v{g+e}, 0xffffff00, v{g+e}")
            for e in range(4):
                A(f"v_add_f32 v{hG+e}, v{hG+e}, v{hG+4+e}")
                A(f"v_add_f32 v{hG+8+e}, v{hG+8+e}, v{hG+12+e}")
            for e in range(4):
                A(f"v_add_f32 v{hG+e}, v{hG+e}, v{hG+8+e}")
            for e in range(4):
                A(f"v_add_f32_dpp v{hG+e}, v{hG+e}, v{hG+e} row_ror:8 {DPP}")
            for sw in ("v_permlane16_swap_b32", "v_permlane32_swap_b32"):
                for e in range(4):
                    A(f"v_mov_b32 v{hG+4+e}, v{hG+e}")
                for e in range(4):
                    A(f"{sw} v{hG+e}, v{hG+4+e}")
                for e in range(4):
                    A(f"v_add_f32 v{hG+e}, v{hG+e}, v{hG+4+e}")
            for p_ in range(2):
                A(f"v_cvt_pk_bf16_f32 v{hG+4+p_}, v{hG+2*p_}, v{hG+2*p_+1}")
            for p_ in range(2):
                A(f"v_lshlrev_b32 v{hG+2*p_}, 16, v{hG+4+p_}")
                A(f"v_and_b32 v{hG+2*p_+1}, 0xffff0000, v{hG+4+p_}")
            for e in range(4):
                A(f"v_add_f32 v{hG+e}, v{hG+e}, v{hRS+e}")
            for p_ in range(2):
                A(f"v_cvt_pk_bf16_f32 v{hG+4+p_}, v{hG+2*p_}, v{hG+2*p_+1}")
            for p_ in range(2):
                A(f"v_lshlrev_b32 v{hRS+2*p_}, 16, v{hG+4+p_}")
                A(f"v_and_b32 v{hRS+2*p_+1}, 0xffff0000, v{hG+4+p_}")
            A(f"v_cndmask_b32 v{hG+6}, v{hG+5}, v{hG+4}, s[34:35]")
            A(f"v_cndmask_b32 v{hG+7}, v{hG+4}, v{hG+5}, s[34:35]")
            A(f"v_mov_b32_dpp v{hG+6}, v{hG+6} quad_perm:[1,0,3,2] {DPP}")
            A(f"v_cndmask_b32 v{hG+4}, v{hG+7}, v{hG+6}, s[34:35]")
            A(f"v_cndmask_b32 v{hG+5}, v{hG+6}, v{hG+7}, s[34:35]")
            A(f"v_and_b32 v{hD}, 0xffff, v{hG+4}")
            A(f"v_lshl_or_b32 v{hD}, v{hG+5}, 16, v{hD}")
            A(f"v_and_b32 v{hG+5}, 0xffff0000, v{hG+5}")
            A(f"v_lshrrev_b32 v{hD+1}, 16, v{hG+4}")
            A(f"v_or_b32 v{hD+1}, v{hD+1}, v{hG+5}")

        reduce32c(YP_OFF, 4)
        A(f"v_mov_b32 v{hD+2}, v{hNC}")
        A(f"v_mov_b32 v{hD+3}, v{hNC+1}")
        A("s_mov_b64 exec, 0xff")
        A(f"buffer_store_dwordx4 v[{hD}:{hD+3}], v{hAD+2}, {S_WS}, s36 offen sc1")
        A("s_mov_b64 exec, -1")
        stamp(5)
        reduce32c(ZP_OFF, 6)
        A("s_mov_b64 exec, 0xff")
        A(f"buffer_store_dword v{hD}, v{hAD}, {S_OUT}, s37 offen")
        A(f"buffer_store_dword v{hD+1}, v{hAD}, {S_OUT}, s37 offen offset:1280")
        A("s_mov_b64 exec, -1")
        if pads:
            A.pads_end("L_padret_red")
        A("s_branch L_h_end")
    else:
        A(f"v_and_b32 v{hT+2}, 1, v0")
        A(f"v_mul_u32_u24 v{hAD}, 2560, v{hT+2}")
        A(f"v_and_b32 v{hT+3}, 14, v0")
        A(f"v_add_u32 v{hAD}, v{hAD}, v{hT+3}")
        A(f"buffer_load_ushort v{hX}, v{hAD}, {S_X}, s37 offen")
        A(f"buffer_load_ushort v{hX+1}, v{hAD}, {S_X}, s37 offen offset:1280")
        A(f"v_bfe_u32 v{hT+3}, v0, 2, 2")
        A(f"v_lshlrev_b32 v{hAD+2}, 5, v{hT+3}")
        A(f"v_lshl_add_u32 v{hAD+2}, v{hT+2}, 4, v{hAD+2}")
        A(f"v_lshrrev_b32 v{hT+2}, 4, v0")
        A(f"v_mul_u32_u24 v{hAD+1}, 20480, v{hT+2}")
        A(f"v_and_b32 v{hT+2}, 15, v0")
        A(f"v_lshl_add_u32 v{hAD+1}, v{hT+2}, 4, v{hAD+1}")
        hRS = hB
        A("s_waitcnt vmcnt(0)")
        A(f"v_lshlrev_b32 v{hRS}, 16, v{hX}")
        A(f"v_lshlrev_b32 v{hRS+1}, 16, v{hX+1}")
        warm_code("L_tail_red", "L_role_ffn", hT + 5)
        warm_icache("red")
        A("s_barrier")
        A.label("L_tail_red")
        if pads:
            A.pads_begin("L_pad0_red", pads)
        stamp(3)

        def reduce32(base_off, st):
            A("s_lshl_b32 s76, s33, 8")
            A(f"s_add_u32 s76, s76, {base_off}")
            lt = []
            for u in range(8):
                lt.append(f"buffer_load_dwordx4 v[{hG+4*u}:{hG+4*u+3}], v{hAD+1}, {S_WS}, s76 offen sc1")
                lt.append(f"s_add_u32 s76, s76, {4*20480}" if u < 7 else f"s_sub_u32 s76, s76, {7*4*20480}")
            if selpoll:
                for u in range(8):
                    A(f"s_add_u32 s{20+u}, s76, {4*20480*u}")
                poll_sel([([f"buffer_load_dwordx4 v[{hG+4*u}:{hG+4*u+3}], v{hAD+1}, {S_WS}, s{20+u} offen sc1"], [hG + 4 * u + 2]) for u in range(8)],
                         hNC, sleep=psleep)
            else:
                poll_tagged(lt, [hG + 4 * u + 2 for u in range(8)], hNC, hT, sleep=psleep)
            stamp(st)
            for st2 in (4, 2, 1):
                for u in range(st2):
                    for e in range(2):
                        A(f"v_add_f32 v{hG+4*u+e}, v{hG+4*u+e}, v{hG+4*(u+st2)+e}")
            for sw in ("v_permlane16_swap_b32", "v_permlane32_swap_b32"):
                for e in range(2):
                    A(f"v_mov_b32 v{hG+4+e}, v{hG+e}")
                for e in range(2):
                    A(f"{sw} v{hG+e}, v{hG+4+e}")
                for e in range(2):
                    A(f"v_add_f32 v{hG+e}, v{hG+e}, v{hG+4+e}")
            A(f"v_cvt_pk_bf16_f32 v{hG}, v{hG}, v{hG+1}")
            A(f"v_lshlrev_b32 v{hG+2}, 16, v{hG}")
            A(f"v_and_b32 v{hG+3}, 0xffff0000, v{hG}")
            A(f"v_add_f32 v{hG+2}, v{hG+2}, v{hRS}")
            A(f"v_add_f32 v{hG+3}, v{hG+3}, v{hRS+1}")
            A(f"v_cvt_pk_bf16_f32 v{hG}, v{hG+2}, v{hG+3}")
            A(f"v_lshlrev_b32 v{hRS}, 16, v{hG}")
            A(f"v_and_b32 v{hRS+1}, 0xffff0000, v{hG}")
            A(f"v_mov_b32_dpp v{hG+1}, v{hG} quad_perm:[2,3,0,1] {DPP}")
            A(f"v_and_b32 v{hD}, 0xffff, v{hG}")
            A(f"v_lshl_or_b32 v{hD}, v{hG+1}, 16, v{hD}")
            A(f"v_and_b32 v{hG+1}, 0xffff0000, v{hG+1}")
            A(f"v_lshrrev_b32 v{hD+1}, 16, v{hG}")
            A(f"v_or_b32 v{hD+1}, v{hD+1}, v{hG+1}")

        reduce32(YP_OFF, 4)
        A(f"v_mov_b32 v{hD+2}, v{hNC}")
        A(f"v_mov_b32 v{hD+3}, v{hNC+1}")
        A("s_mov_b64 exec, 0x3333")
        A(f"buffer_store_dwordx4 v[{hD}:{hD+3}], v{hAD+2}, {S_WS}, s36 offen sc1")
        A("s_mov_b64 exec, -1")
        stamp(5)
        reduce32(ZP_OFF, 6)
        A("s_mov_b64 exec, 0x3333")
        A(f"buffer_store_dword v{hD}, v{hAD}, {S_OUT}, s37 offen")
        A(f"buffer_store_dword v{hD+1}, v{hAD}, {S_OUT}, s37 offen offset:1280")
        A("s_mov_b64 exec, -1")
        if pads:
            A.pads_end("L_padret_red")
        A("s_branch L_h_end")

    A.label("L_role_ffn")
    fA, fD, fWD, fWG = 32, 52, 76, 136
    fD2 = fWG

    def load_wd(z, o, l16, ad):
        A(f"s_mul_i32 s22, {rH}, {48*1280}")
        A("s_mul_i32 s23, s3, 15360")
        A("s_add_u32 s22, s22, s23")
        A(f"s_add_u32 s23, s23, {L_SBUF}")
        lds_wait(z, hT, C_SFREE, 4, sleep=16)
        if "wd" in late:
            lds_wait(z, hT, C_DRY, 1, sleep=8)
        for u in range(15):
            A(f"s_add_u32 m0, s23, {1024*u}")
            A(f"buffer_load_dwordx4 v{l16}, {S_WD}, s22 offen nt lds")
            A("s_add_u32 s22, s22, 1024")
        A("s_mul_i32 s23, s3, 320")
        A(f"s_add_u32 s23, s23, {L_SBUF}")
        tr_addr(ad, 1280, "s23", k16=True)
        A("s_waitcnt vmcnt(0)")
        lds_inc(z, o, C_WSYNC)
        lds_wait(z, hT, C_WSYNC, 4, sleep=4)
        for nt in range(10):
            for t in range(3):
                r = fWD + 2 * (nt * 3 + t)
                A(f"ds_read_b64_tr_b16 v[{r}:{r+1}], v{ad} offset:{16*t*1280+32*nt}")
        A("s_waitcnt lgkmcnt(0)")

    A(f"s_mul_i32 s32, {rH}, {10240 if ypc else 20480}")
    A(f"s_mul_i32 s77, s3, {2560 if ypc else 5120}")
    set_sel()
    A("s_add_u32 s32, s32, s77")
    A(f"s_add_u32 s32, s32, {ZP_OFF}")
    A("s_add_u32 s33, s32, 4096")
    if touch_y:
        for k in range(4):
            A(f"v_mov_b32 v{hG+k}, 0")
        for k in range(5):
            A(f"buffer_store_dwordx4 v[{hG}:{hG+3}], v{hL16}, {S_WS}, {'s32' if k < 4 else 's33'} offen offset:{1024*(k&3)} sc1")
    if not noweights:
        A(f"v_mul_u32_u24 v{hT}, 43, v0")
        A(f"v_lshrrev_b32 v{hT}, 8, v{hT}")
        A(f"v_mul_u32_u24 v{hT+1}, 6, v{hT}")
        A(f"v_sub_u32 v{hT+1}, v0, v{hT+1}")
        A(f"v_mul_u32_u24 v{hAD}, 3072, v{hT}")
        A(f"v_lshl_add_u32 v{hAD}, v{hT+1}, 4, v{hAD}")
        if "gu" in late:
            A("s_mul_i32 s78, s3, 24576")
            A(f"s_add_u32 s78, s78, {L_SBUF}")
            tr_addr(hAD + 1, 96, "s78")
            tr_addr(hAD + 2, 96, "s83")
            lds_wait(hZ, hT, C_SFREE, 4, sleep=16)
            lds_wait(hZ, hT, C_DRY, 1, sleep=8)
            A("s_mov_b32 exec_hi, 0xffff")
            for mi, srdn in enumerate((S_WG, S_WU)):
                A(f"s_mul_i32 s76, {rH}, 96")
                A(f"s_mul_i32 s77, s3, {160*3072}")
                A("s_add_u32 s76, s76, s77")
                for u in range(20):
                    if mi == 1 and u >= 12:
                        A(f"s_add_u32 m0, s83, {768*(u-12)}")
                    else:
                        A(f"s_add_u32 m0, s78, {15360*mi+768*u}")
                    A(f"buffer_load_dwordx4 v{hAD}, {srdn}, s76 offen nt lds")
                    A(f"s_add_u32 s76, s76, {8*3072}")
            A("s_mov_b32 exec_hi, -1")
            for mi in range(2):
                A(f"s_waitcnt vmcnt({20*(1-mi)})")
                for tile in range(3):
                    for t in range(5):
                        for hf in range(2):
                            r = fWG + 4 * ((mi * 3 + tile) * 5 + t) + 2 * hf
                            if mi == 1 and t >= 3:
                                A(f"ds_read_b64_tr_b16 v[{r}:{r+1}], v{hAD+2} offset:{(32*(t-3)+4*hf)*96+32*tile}")
                            else:
                                A(f"ds_read_b64_tr_b16 v[{r}:{r+1}], v{hAD+1} offset:{15360*mi+(32*t+4*hf)*96+32*tile}")
            A("s_waitcnt lgkmcnt(0)")
            lds_inc(hZ, hONE, C_WSYNC2)
            lds_wait(hZ, hT, C_WSYNC2, 4, sleep=2)
        else:
            tr_addr(hAD + 1, 96, "s83")
            if NL > 4:
                lds_wait(hZ, hT, C_SFREE, 4, sleep=16)
            for mi, srdn in enumerate((S_WG, S_WU)):
                A(f"s_mul_i32 s76, {rH}, 96")
                A(f"s_mul_i32 s77, s3, {160*3072}")
                A("s_add_u32 s76, s76, s77")
                for (t0_, nt) in ((0, 3), (3, 2)):
                    A("s_mov_b32 exec_hi, 0xffff")
                    for u in range(4 * nt):
                        A(f"s_add_u32 m0, s83, {768*u}")
                        A(f"buffer_load_dwordx4 v{hAD}, {srdn}, s76 offen nt lds")
                        A(f"s_add_u32 s76, s76, {8*3072}")
                    A("s_mov_b32 exec_hi, -1")
                    A("s_waitcnt vmcnt(0)")
                    for tile in range(3):
                        for t in range(nt):
                            for hf in range(2):
                                r = fWG + 4 * ((mi * 3 + tile) * 5 + t0_ + t) + 2 * hf
                                A(f"ds_read_b64_tr_b16 v[{r}:{r+1}], v{hAD+1} offset:{(32*t+4*hf)*96+32*tile}")
                    A("s_waitcnt lgkmcnt(0)")
        if "b4" not in late:
            load_wd(hZ, hONE, hL16, hAD + 1)
    fXW, fAF, fRW, fRR, fAW, fA2, fHL = 5, 6, 7, 72, 73, 74, 75
    fD = 52
    fRR, fAW, fA2, fHL = 1, 2, 3, 4
    A("s_mul_i32 s75, s3, 1280")
    A("s_lshr_b32 s79, s3, 1")
    A("s_lshl_b32 s79, s79, 4")
    A(f"s_add_u32 s76, s79, {HB_OFF}")
    A("s_add_u32 s77, s76, 4096")
    A("s_add_u32 s78, s76, 8192")
    A(f"v_add_u32 v{fXW}, s75, v{hL4}")
    A(f"v_and_b32 v{hT}, 3, v0")
    A(f"v_lshrrev_b32 v{hT+1}, 4, v0")
    A(f"v_mul_u32_u24 v{fAF}, 1280, v{hT}")
    A(f"v_lshl_add_u32 v{fAF}, v{hT+1}, 4, v{fAF}")
    A("s_mul_i32 s79, s3, 320")
    A(f"v_add_u32 v{fAF}, s79, v{fAF}")
    A("s_mul_i32 s79, s3, 1536")
    A(f"v_add_u32 v{fRW}, s79, v{hL16}")
    A(f"v_and_b32 v{hT+2}, 15, v0")
    A(f"v_lshlrev_b32 v{fRR}, 4, v{hT+2}")
    A(f"v_lshl_add_u32 v{fRR}, v{hT+1}, 2, v{fRR}")
    A("s_lshl_b32 s79, s3, 8")
    A(f"v_add_u32 v{fRR}, s79, v{fRR}")
    A(f"v_mul_u32_u24 v{fAW}, 96, v{hT+1}")
    A(f"v_lshl_add_u32 v{fAW}, v{hT+2}, 1, v{fAW}")
    A("s_lshl_b32 s79, s3, 5")
    A(f"v_add_u32 v{fAW}, s79, v{fAW}")
    A(f"v_mul_u32_u24 v{fA2}, 96, v{hT}")
    A(f"v_lshl_add_u32 v{fA2}, v{hT+1}, 3, v{fA2}")
    A(f"v_lshlrev_b32 v{fHL}, 5, v0")
    A("s_bitcmp1_b32 s3, 0")
    A("s_cselect_b64 s[36:37], -1, 0")
    warm_code("L_tail_ffn", "L_end", hT + 5)
    warm_icache("ffn")
    A("s_barrier")
    if "b4" in late and not noweights:
        A(f"v_mov_b32 v{hX}, 0")
        A(f"v_mov_b32 v{hX+1}, 1")
        A(f"v_lshlrev_b32 v{hX+2}, 4, v0")
        load_wd(hX, hX + 1, hX + 2, hX + 3)
    A.label("L_tail_ffn")
    if pads:
        A.pads_begin("L_pad0_ffn", pads)
    stamp(3)
    lt = [f"buffer_load_dwordx4 v[{fA+4*u}:{fA+4*u+3}], v{fHL}, {S_WS}, s{76+(u>>1)} offen offset:{2048*(u&1)} sc1" for u in range(5)]
    if selpoll:
        poll_sel([([lt[u]], [fA + 4 * u + 2]) for u in range(5)], hNC, sleep=psleep)
    else:
        poll_tagged(lt, [fA + 4 * u + 2 for u in range(5)], hNC, hT, sleep=psleep)
    stamp(4)
    for u in range(5):
        A(f"v_cndmask_b32 v{hX+u}, v{fA+4*u}, v{fA+4*u+1}, s[36:37]")
    layernorm([hX + u for u in range(5)], hX, hF, hT)
    for u in range(5):
        A(f"ds_write_b32 v{fXW}, v{hX+u} offset:{L_XN+256*u}")
    A("s_waitcnt lgkmcnt(0)")
    A("s_barrier")
    for t in range(5):
        A(f"ds_read_b128 v[{fA+4*t}:{fA+4*t+3}], v{fAF} offset:{L_XN+64*t}")
    for t in range(5):
        A(f"s_waitcnt lgkmcnt({4-t})")
        for tile in range(6):
            r = fWG + 4 * (tile * 5 + t)
            c = "0" if t == 0 else f"v[{fD+4*tile}:{fD+4*tile+3}]"
            A(f"v_mfma_f32_16x16x32_bf16 v[{fD+4*tile}:{fD+4*tile+3}], v[{fA+4*t}:{fA+4*t+3}], v[{r}:{r+3}], {c}")
    A("s_mov_b64 exec, 0xffff")
    for tile in range(6):
        A(f"ds_write_b128 v{fRW}, v[{fD+4*tile}:{fD+4*tile+3}] offset:{L_RED+256*tile}")
    A("s_mov_b64 exec, -1")
    A("s_waitcnt lgkmcnt(0)")
    A("s_barrier")
    A("s_cmp_eq_u32 s3, 3")
    A("s_cbranch_scc1 L_noact")
    for ww in range(4):
        for gu in range(2):
            A(f"ds_read_b32 v{hF+4*gu+ww}, v{fRR} offset:{L_RED+1536*ww+768*gu}")
    A("s_waitcnt lgkmcnt(0)")
    for gu in range(2):
        f = hF + 4 * gu
        A(f"v_add_f32 v{f}, v{f}, v{f+1}")
        A(f"v_add_f32 v{f+2}, v{f+2}, v{f+3}")
        A(f"v_add_f32 v{f}, v{f}, v{f+2}")
    rnd(hF, hF)
    rnd(hF + 4, hF + 4)
    A(f"v_mul_f32 v{hF+1}, 0xbfb8aa3b, v{hF}")
    A(f"v_exp_f32 v{hF+1}, v{hF+1}")
    A(f"v_add_f32 v{hF+1}, 1.0, v{hF+1}")
    A(f"v_rcp_f32 v{hF+1}, v{hF+1}")
    A(f"v_mul_f32 v{hF}, v{hF}, v{hF+1}")
    rnd(hF, hF)
    A(f"v_mul_f32 v{hF}, v{hF}, v{hF+4}")
    A(f"v_cvt_pk_bf16_f32 v{hF}, v{hF}, v{hF}")
    A(f"ds_write_b16 v{fAW}, v{hF} offset:{L_OL}")
    A("s_waitcnt lgkmcnt(0)")
    A.label("L_noact")
    if ypc:
        A(f"v_and_b32 v{hT}, 16, v0")
        A(f"v_cmp_ne_u32 s[34:35], 0, v{hT}")
        A("v_cmp_lt_u32 s[38:39], 31, v0")
        A(f"v_lshlrev_b32 v{hGO}, 4, v0")
        for p in range(3):
            A(f"v_mov_b32 v{fD+4*p+3}, v{hNC}")
    elif fast2:
        A(f"v_and_b32 v{hT}, 16, v0")
        A(f"v_cmp_ne_u32 s[34:35], 0, v{hT}")
        A("v_cmp_lt_u32 s[38:39], 31, v0")
        A(f"v_lshrrev_b32 v{hT}, 5, v0")
        A(f"v_lshl_add_u32 v{hGO}, v{hT}, 9, v{hGO}")
        for p in range(5):
            A(f"v_mov_b32 v{fD+4*p+2}, v{hNC}")
            A(f"v_mov_b32 v{fD+4*p+3}, v{hNC+1}")
    A("s_barrier")
    for t in range(3):
        A(f"ds_read_b64 v[{fA+2*t}:{fA+2*t+1}], v{fA2} offset:{L_OL+32*t}")
    if ypc:
        fO = fD
        A("s_waitcnt lgkmcnt(0)")

        def quad_store(p):
            n = 4 if p < 2 else 2
            t_ = [fD2 + 16 * p + 4 * i for i in range(n)]
            for e in range(4):
                A(f"v_cndmask_b32 v{t_[0]+e}, v{t_[0]+e}, v{t_[1]+e}, s[34:35]")
                if n == 4:
                    A(f"v_cndmask_b32 v{t_[2]+e}, v{t_[2]+e}, v{t_[3]+e}, s[34:35]")
                    A(f"v_cndmask_b32 v{t_[0]+e}, v{t_[0]+e}, v{t_[2]+e}, s[38:39]")
            pack24(fO + 4 * p, t_[0])
            if n == 2:
                A("s_mov_b32 exec_hi, 0")
            A(f"buffer_store_dwordx4 v[{fO+4*p}:{fO+4*p+3}], v{hGO}, {S_WS}, s32 offen offset:{1024*p} sc1")
            if n == 2:
                A("s_mov_b32 exec_hi, -1")
        for nt in range(10):
            for t in range(3):
                r = fWD + 2 * (nt * 3 + t)
                c = "0" if t == 0 else f"v[{fD2+4*nt}:{fD2+4*nt+3}]"
                A(f"v_mfma_f32_16x16x16_bf16 v[{fD2+4*nt}:{fD2+4*nt+3}], v[{fA+2*t}:{fA+2*t+1}], v[{r}:{r+1}], {c}")
            if nt == 5:
                quad_store(0)
            if nt == 9:
                quad_store(1)
        quad_store(2)
    elif fast2:
        fO = fD
        A("s_waitcnt lgkmcnt(0)")

        def pair_store(p):
            ta, tb, o = fD2 + 8 * p, fD2 + 8 * p + 4, fO + 4 * p
            for e in range(2):
                A(f"v_cndmask_b32 v{ta+e}, v{ta+e}, v{ta+2+e}, s[34:35]")
                A(f"v_cndmask_b32 v{tb+e}, v{tb+e}, v{tb+2+e}, s[34:35]")
                A(f"v_cndmask_b32 v{o+e}, v{ta+e}, v{tb+e}, s[38:39]")
            A(f"buffer_store_dwordx4 v[{o}:{o+3}], v{hGO}, {S_WS}, {'s32' if p < 4 else 's33'} offen offset:{1024*(p&3)} sc1")
        for nt in range(10):
            for t in range(3):
                r = fWD + 2 * (nt * 3 + t)
                c = "0" if t == 0 else f"v[{fD2+4*nt}:{fD2+4*nt+3}]"
                A(f"v_mfma_f32_16x16x16_bf16 v[{fD2+4*nt}:{fD2+4*nt+3}], v[{fA+2*t}:{fA+2*t+1}], v[{r}:{r+1}], {c}")
            if nt >= 3 and nt % 2 == 1:
                pair_store((nt - 3) // 2)
        pair_store(4)
    else:
        for t in range(3):
            A(f"s_waitcnt lgkmcnt({2-t})")
            for nt in range(10):
                r = fWD + 2 * (nt * 3 + t)
                c = "0" if t == 0 else f"v[{fD2+4*nt}:{fD2+4*nt+3}]"
                A(f"v_mfma_f32_16x16x16_bf16 v[{fD2+4*nt}:{fD2+4*nt+3}], v[{fA+2*t}:{fA+2*t+1}], v[{r}:{r+1}], {c}")
        A("s_mov_b32 exec_hi, 0")
        for nt in range(10):
            split_halves(fD2 + 4 * nt)
            A(f"buffer_store_dwordx4 v[{fD2+4*nt}:{fD2+4*nt+3}], v{hGO}, {S_WS}, {'s32' if nt < 8 else 's33'} offen offset:{512*(nt&7)} sc1")
        A("s_mov_b32 exec_hi, -1")
    if pads:
        A.pads_end("L_padret_ffn")
    stamp(5)
    A.label("L_h_end")
    stamp(7)
    stamp_flush(32)
    A.label("L_end")
    A("s_endpgm")
    s = wrap(A.text(), HEADER + DOC, 256, 512, LDS_BYTES, 256, 102)
    s = s.replace("  .amdhsa_group_segment_fixed_size 0\n", "  .amdhsa_group_segment_fixed_size 0\n  .amdhsa_float_denorm_mode_32 3\n")
    return s


if __name__ == "__main__":
    kw = eval("dict(%s)" % (sys.argv[2] if len(sys.argv) > 2 else ""))
    open(sys.argv[1], "w").write(gen(**kw))
```

```python
import sys
sys.path.insert(0, "work")
from asmlib import *

HEADER = open("sequential_preLN__gqa_block_cached__swiglu_ffn__decode.s.ref").read().split("; Override launch")[0]
DOC = """; One persistent launch: 256 workgroups x 8 waves, one workgroup per CU (G = wg>>3, j = wg&7).  Generated by a script.
;  waves 0..3: q projection (rows split over the even-j workgroups of a head), then stage the later weights as MFMA
;              fragments in registers and run the tail: j<5 wo block, j>=6 reducers (+ residual), j==5 SwiGLU FFN slice.
; Hand-offs between workgroups go through d_ws with write-through (sc1) stores and sc1 loads; every 16-byte granule
"""

QP_OFF = 0x000000
OP_OFF = 0x200000
YP_OFF = 0x400000
ZP_OFF = 0x500000
HB_OFF = 0x600000
CT_OFF = 0x610000
ST_OFF = 0x800000
WS_SIZE = 0x1000000
OOB = 0x80000000
TASKB = 4096 * 384

L_STAGE = 0
L_XN = 49152
L_QL = L_XN + 5120
L_OL = L_QL + 1536
L_RED = L_OL + 1536
L_CNT = L_RED + 6144
L_SBUF = L_CNT + 64
C_SYNC0, C_SYNC1, C_QRDY, C_SFREE, C_WSYNC, C_DRY, L_TAG, C_WSYNC2 = [L_CNT + x for x in (0, 4, 8, 12, 16, 20, 24, 32)]

LOG2E = "0x3fb8aa3b"
SCALE = "0x3d93cd3a"
EPS = "0x3727c5ac"
INV640 = "0x3acccccd"
F640 = "0x44200000"

S_WS, S_K, S_V, S_X, S_WQ, S_DBG, S_WO, S_WG, S_WU, S_WD, S_OUT = [f"s[{28+4*i}:{31+4*i}]" for i in range(11)]
sG, sJ, sB, sH = "s72", "s73", "s74", "s82"
DPP = "row_mask:0xf bank_mask:0xf"


def gen(D=2, S0=54, XF=16, PACE=3, NL=4, stamps=False, spin_g=2000000, spin_l=8000000, prio=True, psleep=1, qsleep=8,
        mix=True, nocompute=False, noweights=False, noqx=False, touch_op=False, touch_y=False, selpoll=True, ln1=True, satom=True, early=True, warm=True, fast2=True, pads=0, tk1=False, HS=0, opc=True, ypc=True, np4=True, NP=4, p67=True, xr=False, qdelay=0, qlight=True, LT=24, late='', tlb=False):
    NS = 8
    E = NS - D
    NL1 = min(NL, 4)
    assert NL <= 6
    LDS_BYTES = L_SBUF + 4 * 4 * 6144
    assert LDS_BYTES <= 163840
    NB = E + NL
    R0 = D * (1 + -(-NB // (2 * D)))
    assert (S0 - NS - NL) % D == 0
    nA = (S0 - NS - NL - R0) // D - 1
    POOL = 512 - 8 * S0 + XF
    assert XF % D == 0 and XF // D < nA and NL <= E
    A = Asm()

    def srd(name, ptr_lo, size, add=None):
        r = int(name[2:name.index(":")])
        if add is None:
            A(f"s_mov_b32 s{r}, s{ptr_lo}")
            A(f"s_mov_b32 s{r+1}, s{ptr_lo+1}")
        else:
            A(f"s_add_u32 s{r}, s{ptr_lo}, {add}")
            A(f"s_addc_u32 s{r+1}, s{ptr_lo+1}, 0")
        A(f"s_mov_b32 s{r+2}, {size}")
        A(f"s_mov_b32 s{r+3}, 0x20000")

    def stamp(k, which="main"):
        if stamps and (which == stamps or (which == "main" and stamps is True) or k == 0):
            A(f"s_memrealtime s[{84+2*k}:{85+2*k}]")

    def stamp_flush(vt):
        if not stamps:
            return
        A("s_waitcnt lgkmcnt(0)")
        for k in range(16):
            A(f"v_mov_b32 v{vt+k}, s{84+k}")
        A("s_lshl_b32 s81, s2, 3")
        A("s_add_u32 s81, s81, s3")
        A("s_lshl_b32 s81, s81, 6")
        A(f"s_add_u32 s81, s81, {ST_OFF}")
        A(f"v_mov_b32 v{vt+16}, 0")
        A("s_mov_b64 exec, 1")
        for k in range(4):
            A(f"buffer_store_dwordx4 v[{vt+4*k}:{vt+4*k+3}], v{vt+16}, {S_WS}, s81 offen offset:{16*k}")
        A("s_mov_b64 exec, -1")

    def allred16_32(op, x, t):
        A(f"v_mov_b32 v{t}, v{x}")
        A(f"v_permlane16_swap_b32 v{x}, v{t}")
        A(f"{op} v{x}, v{x}, v{t}")
        A(f"v_mov_b32 v{t}, v{x}")
        A(f"v_permlane32_swap_b32 v{x}, v{t}")
        A(f"{op} v{x}, v{x}, v{t}")

    def allred64(op, x, t):
        for pat in ("quad_perm:[1,0,3,2]", "quad_perm:[2,3,0,1]", "row_ror:4", "row_ror:8"):
            A(f"{op}_dpp v{x}, v{x}, v{x} {pat} {DPP}")
        allred16_32(op, x, t)

    def rnd(dst, src):
        A(f"v_cvt_pk_bf16_f32 v{dst}, v{src}, v{src}")
        A(f"v_lshlrev_b32 v{dst}, 16, v{dst}")

    def div640(x, t0, t1):
        A(f"v_mul_f32 v{t0}, {INV640}, v{x}")
        A(f"v_fma_f32 v{t1}, -v{t0}, s80, v{x}")
        A(f"v_mul_f32 v{t1}, {INV640}, v{t1}")
        A(f"v_add_f32 v{x}, v{t0}, v{t1}")

    def layernorm(src, dst, f, t):
        A(f"s_mov_b32 s80, {F640}")
        for u in range(5):
            A(f"v_lshlrev_b32 v{f+2*u}, 16, v{src[u]}")
            A(f"v_and_b32 v{f+2*u+1}, 0xffff0000, v{src[u]}")
        A(f"v_add_f32 v{t}, v{f}, v{f+1}")
        A(f"v_add_f32 v{t+1}, v{f+2}, v{f+3}")
        A(f"v_add_f32 v{t+2}, v{f+4}, v{f+5}")
        A(f"v_add_f32 v{t+3}, v{f+6}, v{f+7}")
        A(f"v_add_f32 v{t+4}, v{f+8}, v{f+9}")
        A(f"v_add_f32 v{t}, v{t}, v{t+1}")
        A(f"v_add_f32 v{t+2}, v{t+2}, v{t+3}")
        A(f"v_add_f32 v{t}, v{t}, v{t+4}")
        A(f"v_add_f32 v{t}, v{t}, v{t+2}")
        if ln1:
            A(f"v_readfirstlane_b32 s79, v{f}")
            A(f"v_subrev_f32 v{t+2}, s79, v{f}")
            A(f"v_mul_f32 v{t+1}, v{t+2}, v{t+2}")
            for i in range(1, 10):
                A(f"v_subrev_f32 v{t+2+(i&1)}, s79, v{f+i}")
                A(f"v_fmac_f32 v{t+1}, v{t+2+(i&1)}, v{t+2+(i&1)}")
            for pat in ("quad_perm:[1,0,3,2]", "quad_perm:[2,3,0,1]", "row_ror:4", "row_ror:8"):
                for x in (t, t + 1):
                    A(f"v_add_f32_dpp v{x}, v{x}, v{x} {pat} {DPP}")
            for sw in ("v_permlane16_swap_b32", "v_permlane32_swap_b32"):
                for x in (t, t + 1):
                    A(f"v_mov_b32 v{x+2}, v{x}")
                for x in (t, t + 1):
                    A(f"{sw} v{x}, v{x+2}")
                for x in (t, t + 1):
                    A(f"v_add_f32 v{x}, v{x}, v{x+2}")
            div640(t, t + 2, t + 3)
            div640(t + 1, t + 4, t + 5)
            A(f"v_subrev_f32 v{t+2}, s79, v{t}")
            A(f"v_fma_f32 v{t+1}, -v{t+2}, v{t+2}, v{t+1}")
            A(f"v_max_f32 v{t+1}, 0, v{t+1}")
        else:
            allred64("v_add_f32", t, t + 1)
            div640(t, t + 1, t + 2)
            A(f"v_sub_f32 v{t+2}, v{f}, v{t}")
            A(f"v_mul_f32 v{t+1}, v{t+2}, v{t+2}")
            for i in range(1, 10):
                A(f"v_sub_f32 v{t+2+(i&1)}, v{f+i}, v{t}")
                A(f"v_fmac_f32 v{t+1}, v{t+2+(i&1)}, v{t+2+(i&1)}")
            allred64("v_add_f32", t + 1, t + 2)
            div640(t + 1, t + 2, t + 3)
        rnd(t, t)
        rnd(t + 1, t + 1)
        A(f"v_add_f32 v{t+1}, {EPS}, v{t+1}")
        rnd(t + 1, t + 1)
        A(f"v_sqrt_f32 v{t+1}, v{t+1}")
        rnd(t + 1, t + 1)
        A(f"v_rcp_f32 v{t+2}, v{t+1}")
        for u in range(5):
            a, b = f + 2 * u, f + 2 * u + 1
            A(f"v_sub_f32 v{a}, v{a}, v{t}")
            A(f"v_sub_f32 v{b}, v{b}, v{t}")
            A(f"v_cvt_pk_bf16_f32 v{b}, v{a}, v{b}")
            A(f"v_lshlrev_b32 v{a}, 16, v{b}")
            A(f"v_and_b32 v{b}, 0xffff0000, v{b}")
            A(f"v_mul_f32 v{t+3}, v{a}, v{t+2}")
            A(f"v_mul_f32 v{t+4}, v{b}, v{t+2}")
            A(f"v_fma_f32 v{a}, -v{t+3}, v{t+1}, v{a}")
            A(f"v_fma_f32 v{b}, -v{t+4}, v{t+1}, v{b}")
            A(f"v_fmac_f32 v{t+3}, v{a}, v{t+2}")
            A(f"v_fmac_f32 v{t+4}, v{b}, v{t+2}")
            A(f"v_cvt_pk_bf16_f32 v{dst+u}, v{t+3}, v{t+4}")

    def poll_tagged(loads, tagpairs, tag, tmp, sleep=0, mask=None):
        Lp, Ld = A.newlabel("L_poll"), A.newlabel("L_pdone")
        A(f"s_mov_b32 s81, {spin_g}")
        if mask is not None:
            A(f"s_mov_b64 exec, {mask}")
        A.label(Lp)
        for l in loads:
            A(l)
        A("s_waitcnt vmcnt(0)")
        if len(tagpairs) == 1:
            r = tagpairs[0]
            A(f"v_cmp_ne_u64 vcc, v[{r}:{r+1}], v[{tag}:{tag+1}]")
        else:
            for i, r in enumerate(tagpairs):
                if i == 0:
                    A(f"v_xor_b32 v{tmp}, v{r}, v{tag}")
                    A(f"v_xor_b32 v{tmp+1}, v{r+1}, v{tag+1}")
                else:
                    A(f"v_xor_b32 v{tmp+2}, v{r}, v{tag}")
                    A(f"v_xor_b32 v{tmp+3}, v{r+1}, v{tag+1}")
                    A(f"v_or3_b32 v{tmp+(i&1)}, v{tmp+(i&1)}, v{tmp+2}, v{tmp+3}")
            A(f"v_or_b32 v{tmp}, v{tmp}, v{tmp+1}")
            A(f"v_cmp_ne_u32 vcc, 0, v{tmp}")
        A(f"s_cbranch_vccz {Ld}")
        if sleep:
            A(f"s_sleep {sleep}")
        A("s_sub_u32 s81, s81, 1")
        A("s_cmp_lg_u32 s81, 0")
        A(f"s_cbranch_scc1 {Lp}")
        A.label(Ld)
        if mask is not None:
            A("s_mov_b64 exec, -1")

    def poll_sel(groups, tag, sleep=0):
        Lp, Ld = A.newlabel("L_poll"), A.newlabel("L_pdone")
        A.pads_pause(True)
        A(f"s_mov_b32 s81, {spin_g}")
        for loads, _ in groups:
            for l in loads:
                A(l)
        A.label(Lp)
        A("s_waitcnt vmcnt(0)")
        for i, (_, pairs) in enumerate(groups):
            m = f"s[{4+2*i}:{5+2*i}]"
            for k, r in enumerate(pairs):
                if k == 0:
                    A(f"v_cmp_ne_u64 {m}, v[{r}:{r+1}], v[{tag}:{tag+1}]")
                else:
                    A(f"v_cmp_ne_u64 vcc, v[{r}:{r+1}], v[{tag}:{tag+1}]")
                    A(f"s_or_b64 {m}, {m}, vcc")
        A("s_or_b64 s[38:39], s[4:5], s[6:7]")
        for i in range(2, len(groups)):
            A(f"s_or_b64 s[38:39], s[38:39], s[{4+2*i}:{5+2*i}]")
        A(f"s_cbranch_scc0 {Ld}")
        if sleep:
            A(f"s_sleep {sleep}")
        for i, (loads, _) in enumerate(groups):
            A(f"s_mov_b64 exec, s[{4+2*i}:{5+2*i}]")
            for l in loads:
                A(l)
        A("s_mov_b64 exec, -1")
        A("s_sub_u32 s81, s81, 1")
        A("s_cmp_lg_u32 s81, 0")
        A(f"s_cbranch_scc1 {Lp}")
        A("s_waitcnt vmcnt(0)")
        A.label(Ld)
        A.pads_pause(False)

    def lds_wait(addr_v, val_v, off, target, sleep=1):
        Lp, Ld = A.newlabel("L_lw"), A.newlabel("L_lwd")
        A(f"s_mov_b32 s81, {spin_l}")
        A.label(Lp)
        A(f"ds_read_b32 v{val_v}, v{addr_v} offset:{off}")
        A("s_waitcnt lgkmcnt(0)")
        A(f"v_readfirstlane_b32 s79, v{val_v}")
        A(f"s_cmp_ge_u32 s79, {target}")
        A(f"s_cbranch_scc1 {Ld}")
        A(f"s_sleep {sleep}")
        A("s_sub_u32 s81, s81, 1")
        A("s_cmp_lg_u32 s81, 0")
        A(f"s_cbranch_scc1 {Lp}")
        A.label(Ld)

    def lds_inc(zero_v, one_v, off):
        A("s_mov_b64 exec, 1")
        A(f"ds_add_u32 v{zero_v}, v{one_v} offset:{off}")
        A("s_mov_b64 exec, -1")

    A("s_cmp_ge_u32 s2, 256")
    A("s_cbranch_scc1 L_end")
    A("s_load_dwordx16 s[4:19], s[0:1], 0")
    A("s_load_dwordx8 s[20:27], s[0:1], 64")
    A("v_lshrrev_b32 v1, 6, v0")
    A("v_and_b32 v0, 63, v0")
    A("v_readfirstlane_b32 s3, v1")
    A(f"s_lshr_b32 {sG}, s2, 3")
    A(f"s_and_b32 {sJ}, s2, 7")
    A(f"s_and_b32 {sB}, s3, 3")
    if xr:
        A(f"s_lshl_b32 {sH}, {sJ}, 2")
        A(f"s_add_u32 {sH}, {sH}, {sB}")
        A(f"s_add_u32 {sH}, {sH}, {sG}")
        A(f"s_and_b32 {sH}, {sH}, 31")
    elif mix:
        A(f"s_mul_i32 {sH}, {sB}, {sJ}")
        A(f"s_add_u32 {sH}, {sH}, {sG}")
        A(f"s_and_b32 {sH}, {sH}, 31")
    else:
        A(f"s_mov_b32 {sH}, {sG}")
    if stamps:
        for k in range(16):
            A(f"s_mov_b32 s{84+k}, 0")
    A("s_cmp_lt_u32 s3, 4")
    A("s_cbranch_scc1 L_helper")

    vOFF, vZ = 1, 2
    T = 3
    vTAG = 8
    vM, vL = 11, 12
    vAL, vP = 14, 16
    vU = 18
    vLB = 22
    vQ = 24
    vACC = 36
    vTK = 60
    vSLOT = 64
    sOFF, sCT, sOP = "s75", "s76", "s83"
    sSL = 60

    kreg = lambda slot, i: vSLOT + slot * 24 + 4 * i
    vreg = lambda slot, i: vSLOT + slot * 24 + 12 + 4 * i
    vmq = []

    def vwait(tag, first=False):
        idx = [k for k, t in enumerate(vmq) if t == tag]
        if not idx:
            return
        i = idx[2] if first else idx[-1]
        n = len(vmq) - 1 - i
        assert n <= 63
        A(f"s_waitcnt vmcnt({n})")
        del vmq[:i + 1]

    def issueK(slot, soff):
        for i in range(3):
            r = kreg(slot, i)
            A(f"buffer_load_dwordx4 v[{r}:{r+3}], v{vOFF}, {S_K}, {soff} offen offset:{128*i} nt")
            vmq.append(("K", slot))

    def issueV(slot, soff):
        for i in range(3):
            r = vreg(slot, i)
            A(f"buffer_load_dwordx4 v[{r}:{r+3}], v{vOFF}, {S_V}, {soff} offen offset:{128*i} nt")
            vmq.append(("V", slot))

    def atomic(slot):
        A(f"v_mov_b32 v{vTK+slot}, 1")
        A("s_mov_b64 exec, 1")
        A(f"buffer_atomic_add v{vTK+slot}, v{vZ}, {S_WS}, {sCT} offen sc0")
        A("s_mov_b64 exec, -1")
        vmq.append(("T", slot))

    def consumeK(slot, mid=None):
        t0, t1, t2, t3, t4 = T, T + 1, T + 2, T + 3, T + 4
        k = kreg(slot, 0)
        if nocompute:
            for e in range(0, 12, 4):
                A(f"v_xor_b32 v{vL}, v{vL}, v{k+e}")
            if mid:
                mid()
            return
        for e in range(6):
            A(f"v_dot2_f32_bf16 v{t0}, v{k+e}, v{vQ+e}, " + ("0" if e == 0 else f"v{t0}"))
            A(f"v_dot2_f32_bf16 v{t1}, v{k+6+e}, v{vQ+6+e}, " + ("0" if e == 0 else f"v{t1}"))
        if mid:
            mid()
        A(f"v_add_f32 v{t0}, v{t0}, v{t1}")
        A(f"v_add_f32_dpp v{t0}, v{t0}, v{t0} quad_perm:[1,0,3,2] {DPP}")
        A(f"v_add_f32_dpp v{t0}, v{t0}, v{t0} quad_perm:[2,3,0,1] {DPP}")
        A(f"v_add_f32_dpp v{t0}, v{t0}, v{t0} row_half_mirror {DPP}")
        rnd(t1, t0)
        A(f"v_mul_f32 v{t1}, {SCALE}, v{t1}")
        rnd(t1, t1)
        A(f"v_max_f32 v{t2}, v{vM}, v{t1}")
        A(f"v_sub_f32 v{t3}, v{vM}, v{t2}")
        A(f"v_sub_f32 v{t4}, v{t1}, v{t2}")
        A(f"v_mul_f32 v{t3}, {LOG2E}, v{t3}")
        A(f"v_mul_f32 v{t4}, {LOG2E}, v{t4}")
        A(f"v_exp_f32 v{vAL}, v{t3}")
        A(f"v_exp_f32 v{vP}, v{t4}")
        A(f"v_mov_b32 v{vM}, v{t2}")
        A(f"v_fma_f32 v{vL}, v{vL}, v{vAL}, v{vP}")
        for a in range(12):
            r = vACC + 2 * a
            A(f"v_pk_mul_f32 v[{r}:{r+1}], v[{r}:{r+1}], v[{vAL}:{vAL+1}] op_sel_hi:[1,0]")

    def consumeV(slot):
        v = vreg(slot, 0)
        if nocompute:
            for e in range(0, 12, 4):
                A(f"v_xor_b32 v{vL}, v{vL}, v{v+e}")
            return
        for a in range(12):
            u = vU + 2 * (a & 1)
            r = vACC + 2 * a
            A(f"v_lshlrev_b32 v{u}, 16, v{v+a}")
            A(f"v_and_b32 v{u+1}, 0xffff0000, v{v+a}")
            A(f"v_pk_fma_f32 v[{r}:{r+1}], v[{u}:{u+1}], v[{vP}:{vP+1}], v[{r}:{r+1}] op_sel_hi:[1,0,1]")

    stamp(0)
    A(f"v_lshrrev_b32 v{T}, 3, v0")
    A(f"v_mul_u32_u24 v{T}, 384, v{T}")
    A(f"v_and_b32 v{T+1}, 7, v0")
    A(f"v_lshl_add_u32 v{vOFF}, v{T+1}, 4, v{T}")
    A(f"s_lshl_b32 s77, {sB}, 5")
    A(f"s_add_u32 s77, s77, {sH}")
    A(f"s_mul_i32 s78, s77, {TASKB}")
    A(f"s_mul_i32 {sOFF}, {sJ}, 3072")
    A("s_waitcnt lgkmcnt(0)")
    srd(S_K, 6, TASKB, "s78")
    srd(S_V, 8, TASKB, "s78")

    def s_setup():
        A(f"v_mov_b32 v{vZ}, 0")
        A(f"s_lshl_b32 {sCT}, s77, 8")
        A(f"s_add_u32 {sCT}, {sCT}, {CT_OFF}")
        A(f"s_lshl_b32 {sOP}, s77, 3")
        A(f"s_add_u32 {sOP}, {sOP}, {sJ}")
        A(f"s_lshl_b32 {sOP}, {sOP}, 11")
        A(f"s_add_u32 {sOP}, {sOP}, {OP_OFF}")
        A(f"s_mul_i32 s77, {sB}, {4*6144}")
        A(f"s_add_u32 s77, s77, {L_SBUF}")
        A(f"s_mul_i32 s80, {sB}, 12288")
        A(f"v_lshlrev_b32 v{vLB+1}, 4, v0")
        A(f"v_add_u32 v{vLB}, s77, v{vLB+1}")
        A(f"v_add_u32 v{vLB+1}, s80, v{vLB+1}")
        srd(S_WS, 26, WS_SIZE)
        A(f"s_add_u32 s66, s26, {sCT}")
        A("s_addc_u32 s67, s27, 0")
        A("s_barrier")
    if not early:
        s_setup()
    last = lambda n: ("V", n) if n < NS else ("L", n - NS)
    for n in range(NS + NL):
        if n >= PACE:
            vwait(last(n - PACE))
            if n - PACE + 2 < 8:
                stamp(n - PACE + 2, "start")
        if n < NS:
            issueK(n, sOFF)
            issueV(n, sOFF)
        else:
            li = n - NS
            if li == (0 if np4 else 4):
                lds_wait(vZ, T, C_SYNC1, 4)
            for kv in range(2):
                for i in range(3):
                    A(f"s_add_u32 m0, {'s77' if li < 4 else 's80'}, {(li&3)*6144 + (3*kv+i)*1024 - 128*i}")
                    A(f"buffer_load_dwordx4 v{vOFF}, {S_K if kv == 0 else S_V}, {sOFF} offen offset:{128*i} nt lds")
                    vmq.append(("L", n - NS))
        A(f"s_add_u32 {sOFF}, {sOFF}, {8*3072}")
        if n == PACE - 1 and early:
            s_setup()
        if n == PACE - 1:
            A(f"v_mov_b32 v{vM}, 0xff7fffff")
            A(f"v_mov_b32 v{vL}, 0")
            for a in range(24):
                A(f"v_mov_b32 v{vACC+a}, 0")
    stamp(1)
    lds_wait(vZ, T, C_QRDY, 4)
    A(f"v_and_b32 v{T}, 7, v0")
    A(f"v_lshlrev_b32 v{T}, 4, v{T}")
    A(f"s_mul_i32 s78, {sB}, 384")
    A(f"v_add_u32 v{T}, s78, v{T}")
    for i in range(3):
        A(f"ds_read_b128 v[{vQ+4*i}:{vQ+4*i+3}], v{T} offset:{L_QL+128*i}")
    A(f"ds_read_b64 v[{vTAG}:{vTAG+1}], v{vZ} offset:{L_TAG}")
    A("s_waitcnt lgkmcnt(0)")
    if touch_op:
        A(f"v_lshlrev_b32 v{T}, 4, v0")
        A(f"buffer_store_dwordx4 v[{vACC}:{vACC+3}], v{T}, {S_WS}, {sOP} offen sc1")
        A(f"buffer_store_dwordx4 v[{vACC}:{vACC+3}], v{T}, {S_WS}, {sOP} offen offset:1024 sc1")
    stamp(2)

    def static_step(slot, with_atomic=False, save=False):
        vwait(("K", slot))

        def mid():
            if with_atomic:
                atomic(slot)
            issueK(slot, sOFF)
        consumeK(slot, mid)
        vwait(("V", slot), first=True)
        consumeV(slot)
        issueV(slot, sOFF)
        if save:
            A(f"s_mov_b32 s{sSL+slot}, {sOFF}")
        A(f"s_add_u32 {sOFF}, {sOFF}, {8*3072}")

    for s in range(D):
        static_step(s)
    backlog = [("reg", D + e) for e in range(E)] + [("lds", i) for i in range(NL)]
    nring = R0 - D
    done = 0
    for r in range(nring + 1):
        upto = len(backlog) if r == nring else (len(backlog) * (r + 1) + nring) // (nring + 1)
        while done < upto:
            kind, x = backlog[done]
            done += 1
            if kind == "reg":
                vwait(("K", x))
                consumeK(x)
                vwait(("V", x))
                consumeV(x)
                i = x - D
                if i < NL:
                    vwait(("L", i))
                    for k in range(6):
                        rr = vSLOT + x * 24 + 4 * k
                        A(f"ds_read_b128 v[{rr}:{rr+3}], v{vLB+(i>>2)} offset:{(i&3)*6144+1024*k}")
            else:
                A("s_waitcnt lgkmcnt(0)")
                if x == 0:
                    pass
                consumeK(D + x)
                consumeV(D + x)
        if r < nring:
            static_step(r % D)
    A(f"v_mov_b32 v{T}, 1")
    lds_inc(vZ, T, C_SFREE)
    if xr:
        A(f"s_sub_u32 s68, {sH}, {sB}")
        A("s_sub_u32 s68, s68, 20")
        A("s_and_b32 s68, s68, 31")
        A("s_lshr_b32 s68, s68, 2")
        A(f"s_cmp_eq_u32 s68, {sJ}")
    else:
        A("s_mov_b32 s68, 5")
        A(f"s_cmp_eq_u32 {sJ}, 5")
    A(f"s_cselect_b32 s77, {nA - XF // D}, {nA}")
    A(f"s_add_u32 s68, s68, {8*(S0-XF)}")
    A.label("L_loopA")
    shape = list(vmq)
    for s in range(D):
        static_step(s)
    assert vmq == shape, (vmq, shape)
    A("s_sub_u32 s77, s77, 1")
    A("s_cmp_lg_u32 s77, 0")
    A("s_cbranch_scc1 L_loopA")
    def satomic():
        A(f"s_mov_b32 s65, {1 if tk1 else D}")
        A("s_atomic_add s65, s[66:67], 0 glc")

    PF = POOL - HS
    sMK = lambda s: f"s[{40+2*s}:{41+2*s}]"
    if HS:
        A("s_mov_b32 s48, -1")
        A("s_mov_b32 s49, 0")
        A("s_mov_b32 s50, 0")
        A("s_mov_b32 s51, -1")
        for s in range(D):
            A(f"s_mov_b64 {sMK(s)}, -1")
    trig = any(k in late for k in ("wo", "wd", "gu"))
    if trig:
        A(f"s_mov_b32 s69, {POOL - LT}")
        A("v_mov_b32 v10, 1")
    if not tk1:
        satomic()
    for s in range(D):
        if tk1 and s == D - 1:
            satomic()
        static_step(s, save=True)
    stamp(3)
    A.label("L_loopB")
    shape = list(vmq)
    for s in range(D):
        A(f"s_cmp_ge_u32 s{sSL+s}, {TASKB}")
        A("s_cbranch_scc1 L_s_done")
        if not tk1 and s == 0:
            A("s_waitcnt lgkmcnt(0)")
            A("s_mov_b32 s64, s65")
            satomic()
        if HS:
            A(f"s_mov_b64 exec, {sMK(s)}")
        vwait(("K", s))

        def mid(s=s):
            if tk1:
                A("s_waitcnt lgkmcnt(0)")
                A("s_mov_b32 s78, s65")
                satomic()
            else:
                A(f"s_add_u32 s78, s64, {s}")
            if trig and s == 0:
                lab = A.newlabel("L_nodry")
                A("s_cmp_lt_u32 s78, s69")
                A(f"s_cbranch_scc1 {lab}")
                lds_inc(vZ, 10, C_DRY)
                A("s_mov_b32 s69, -1")
                A.label(lab)
            if HS:
                A(f"s_sub_u32 s79, s78, {PF}")
                A("s_bitcmp1_b32 s79, 0")
                A("s_cselect_b64 s[52:53], s[50:51], s[48:49]")
                A("s_lshr_b32 s79, s79, 1")
                A(f"s_add_u32 s79, s79, {PF}")
                A(f"s_cmp_lt_u32 s78, {PF}")
                A("s_cselect_b32 s78, s78, s79")
                A("s_cselect_b64 s[52:53], -1, s[52:53]")
            A(f"s_min_u32 s78, s78, {POOL}")
            A("s_lshl_b32 s79, s78, 3")
            A("s_add_u32 s79, s79, s68")
            A(f"s_add_u32 s80, s78, {8*S0-XF}")
            A(f"s_cmp_lt_u32 s78, {XF}")
            A("s_cselect_b32 s78, s79, s80")
            A(f"s_mul_i32 s{sSL+s}, s78, 3072")
            if HS:
                A("s_mov_b64 exec, s[52:53]")
            issueK(s, f"s{sSL+s}")
            if HS:
                A(f"s_mov_b64 exec, {sMK(s)}")
        consumeK(s, mid)
        vwait(("V", s), first=True)
        consumeV(s)
        if HS:
            A("s_mov_b64 exec, s[52:53]")
            A(f"s_mov_b64 {sMK(s)}, s[52:53]")
        issueV(s, f"s{sSL+s}")
    assert vmq == shape, (vmq, shape)
    A("s_branch L_loopB")
    A.label("L_s_done")
    A("s_mov_b64 exec, -1")
    stamp(4)
    t0, t1 = T, T + 1
    A(f"v_max_f32_dpp v{t0}, v{vM}, v{vM} row_ror:8 {DPP}")
    allred16_32("v_max_f32", t0, t1)
    A(f"v_sub_f32 v{t1}, v{vM}, v{t0}")
    A(f"v_mul_f32 v{t1}, {LOG2E}, v{t1}")
    A(f"v_exp_f32 v{vAL}, v{t1}")
    A(f"v_mul_f32 v{vL}, v{vL}, v{vAL}")
    for a in range(12):
        r = vACC + 2 * a
        A(f"v_pk_mul_f32 v[{r}:{r+1}], v[{r}:{r+1}], v[{vAL}:{vAL+1}] op_sel_hi:[1,0]")
    A(f"v_add_f32_dpp v{vL}, v{vL}, v{vL} row_ror:8 {DPP}")
    allred16_32("v_add_f32", vL, t1)
    for a in range(12):
        A(f"v_permlane32_swap_b32 v{vACC+a}, v{vACC+12+a}")
    for a in range(12):
        A(f"v_add_f32 v{vACC+a}, v{vACC+a}, v{vACC+12+a}")
    for a in range(6):
        A(f"v_permlane16_swap_b32 v{vACC+a}, v{vACC+6+a}")
    for a in range(6):
        A(f"v_add_f32 v{vACC+a}, v{vACC+a}, v{vACC+6+a}")
    A(f"v_and_b32 v{t1}, 8, v0")
    A(f"v_cmp_ne_u32 vcc, 0, v{t1}")
    if opc:
        O0, O1 = vQ, vQ + 4
        for r in range(3):
            A(f"v_cndmask_b32 v{vU+r}, v{vACC+3+r}, v{vACC+r}, vcc")
            A(f"v_cndmask_b32 v{O0+r}, v{vACC+r}, v{vACC+3+r}, vcc")
        A(f"v_mov_b32 v{O0+3}, v{vTAG}")
        for r in range(3):
            A(f"v_add_f32_dpp v{O0+r}, v{vU+r}, v{O0+r} row_ror:8 {DPP}")
        A(f"v_lshlrev_b32 v{t1}, 4, v0")
        A(f"buffer_store_dwordx4 v[{O0}:{O0+3}], v{t1}, {S_WS}, {sOP} offen sc1")
        A(f"v_mov_b32 v{O1}, v{t0}")
        A(f"v_mov_b32 v{O1+1}, v{vL}")
        A(f"v_mov_b32 v{O1+2}, v{vTAG}")
        A(f"v_mov_b32 v{O1+3}, v{vTAG+1}")
        A("s_mov_b64 exec, 1")
        A(f"buffer_store_dwordx4 v[{O1}:{O1+3}], v{t1}, {S_WS}, {sOP} offen offset:1024 sc1")
        A("s_mov_b64 exec, -1")
    else:
        O0, O1 = vQ, vQ + 4
        dst = [O0, O0 + 1, O1]
        for r in range(3):
            A(f"v_cndmask_b32 v{vU+r}, v{vACC+3+r}, v{vACC+r}, vcc")
            A(f"v_cndmask_b32 v{dst[r]}, v{vACC+r}, v{vACC+3+r}, vcc")
        A(f"v_and_b32 v{t1}, 1, v0")
        A(f"v_cmp_ne_u32 vcc, 0, v{t1}")
        for r in range(3):
            A(f"v_add_f32_dpp v{dst[r]}, v{vU+r}, v{dst[r]} row_ror:8 {DPP}")
        A(f"v_cndmask_b32 v{O1+1}, v{t0}, v{vL}, vcc")
        for o in (O0, O1):
            A(f"v_mov_b32 v{o+2}, v{vTAG}")
            A(f"v_mov_b32 v{o+3}, v{vTAG+1}")
        A(f"v_lshlrev_b32 v{t1}, 4, v0")
        A(f"buffer_store_dwordx4 v[{O0}:{O0+3}], v{t1}, {S_WS}, {sOP} offen sc1")
        A(f"buffer_store_dwordx4 v[{O1}:{O1+3}], v{t1}, {S_WS}, {sOP} offen offset:1024 sc1")
    stamp(5)
    A("s_barrier")
    stamp_flush(36)
    A("s_endpgm")

    A.label("L_helper")
    stamp(0)
    if prio:
        A("s_setprio 2")
    hZ, hONE, hL4, hL16 = 1, 2, 3, 4
    hAD = 5
    hX = 8
    hNC = 14
    hF = 16
    hT = 26
    hA = 32
    hD = 80
    hB = 92
    hG = 128
    hW1 = 160
    A(f"v_mov_b32 v{hZ}, 0")
    A(f"v_mov_b32 v{hONE}, 1")
    A(f"v_lshlrev_b32 v{hL4}, 2, v0")
    A(f"v_lshlrev_b32 v{hL16}, 4, v0")
    if np4:
        def get_tag(sfx):
            A(f"s_mov_b32 s81, {spin_g}")
            A.label(f"L_gf_{sfx}")
            A(f"v_readfirstlane_b32 s79, v{hNC}")
            A(f"v_readfirstlane_b32 s80, v{hNC+1}")
            A("s_cmp_eq_u32 s79, 0")
            A("s_cselect_b32 s80, 0, s80")
            A("s_cmp_lg_u32 s80, 0")
            A(f"s_cbranch_scc1 L_gfd_{sfx}")
            A("s_sleep 8")
            A(f"buffer_load_dwordx2 v[{hNC}:{hNC+1}], v{hZ}, {S_DBG}, 0 offen sc1")
            A("s_waitcnt vmcnt(0)")
            A("s_sub_u32 s81, s81, 1")
            A("s_cmp_lg_u32 s81, 0")
            A(f"s_cbranch_scc1 L_gf_{sfx}")
            A.label(f"L_gfd_{sfx}")
        for k in range(4):
            A(f"v_mov_b32 v{hG+k}, 0")
        A(f"ds_write_b128 v{hZ}, v[{hG}:{hG+3}] offset:{L_CNT}")
        A(f"ds_write_b64 v{hZ}, v[{hG}:{hG+1}] offset:{L_CNT+16}")
        A(f"ds_write_b32 v{hZ}, v{hG} offset:{L_CNT+32}")
        if NP == 4:
            A(f"s_bitcmp1_b32 {sJ}, 0")
            A("s_cbranch_scc1 L_q_consumer")
        elif p67:
            A(f"s_cmp_lt_u32 {sJ}, 6")
            A("s_cbranch_scc1 L_q_consumer")
        else:
            A(f"s_and_b32 s77, {sJ}, 3")
            A("s_cmp_lg_u32 s77, 2")
            A("s_cbranch_scc1 L_q_consumer")
        for i in range(3):
            A(f"v_add_u32 v{hT}, {64*i}, v0")
            A(f"v_mul_u32_u24 v{hT+1}, 2731, v{hT}")
            A(f"v_lshrrev_b32 v{hT+1}, 16, v{hT+1}")
            A(f"v_mul_u32_u24 v{hT+2}, 24, v{hT+1}")
            A(f"v_sub_u32 v{hT}, v{hT}, v{hT+2}")
            A(f"v_mul_u32_u24 v{hT+1}, 12288, v{hT+1}")
            A(f"v_lshl_add_u32 v{hAD+i}, v{hT}, 4, v{hT+1}")
        A("s_mul_i32 s75, s3, 1280")
        if NP == 2 and p67:
            A(f"s_and_b32 s33, {sJ}, 1")
        else:
            A(f"s_lshr_b32 s33, {sJ}, {1 if NP == 4 else 2}")
        A(f"s_mul_i32 s76, s33, {(640//NP)*12288}")
        A(f"s_mul_i32 s77, {sG}, 384")
        A("s_add_u32 s76, s76, s77")
        A(f"s_mul_i32 s77, s3, {8*12288}")
        A("s_add_u32 s76, s76, s77")
        A("s_mul_i32 s32, s3, 3072")
        A(f"s_add_u32 s83, s32, {L_SBUF}")
        A("s_waitcnt lgkmcnt(0)")
        srd(S_X, 4, 5120)
        srd(S_WQ, 10, 640 * 6144 * 2)
        for u in range(5):
            A(f"buffer_load_dword v{hX+u}, v{hL4}, {S_X}, s75 offen offset:{256*u}")
        NBLK = 20 // NP
        for blk in range(NBLK):
            for i in range(3):
                if NP == 4:
                    A(f"s_add_u32 m0, s83, {blk*4*3072 + 1024*i}")
                elif blk < 4:
                    A(f"s_add_u32 m0, s32, {L_STAGE + blk*4*3072 + 1024*i}")
                else:
                    A(f"s_add_u32 m0, s83, {(blk-4)*4*3072 + 1024*i}")
                A(f"buffer_load_dwordx4 v{hAD+i}, {S_WQ}, s76 offen nt lds")
            A(f"s_add_u32 s76, s76, {32*12288}")
        srd(S_DBG, 24, 256)
        srd(S_WS, 26, WS_SIZE)
        A("s_lshl_b32 s76, s3, 5")
        A(f"s_add_u32 s76, s76, {sG}")
        A("s_lshl_b32 s76, s76, 8")
        A(f"s_add_u32 s76, s76, {CT_OFF}")
        A("s_cmp_eq_u32 s33, 0")
        A(f"s_cselect_b32 s76, s76, {OOB}")
        A("s_mov_b64 exec, 1")
        A(f"buffer_store_dword v{hZ}, v{hZ}, {S_WS}, s76 offen sc1")
        A("s_mov_b64 exec, -1")
        A("s_barrier")
        A(f"s_waitcnt vmcnt({3*NBLK+1})")
        stamp(1, "start")
        layernorm([hX + u for u in range(5)], hX, hF, hT)
        A(f"v_add_u32 v{hAD}, s75, v{hL4}")
        for u in range(5):
            A(f"ds_write_b32 v{hAD}, v{hX+u} offset:{L_XN+256*u}")
        A(f"buffer_load_dwordx2 v[{hNC}:{hNC+1}], v{hZ}, {S_DBG}, 0 offen sc1")
        A(f"v_lshrrev_b32 v{hT}, 4, v0")
        A(f"v_and_b32 v{hT+1}, 3, v0")
        A(f"v_mul_u32_u24 v{hAD}, 1280, v{hT+1}")
        A(f"v_lshl_add_u32 v{hAD}, v{hT}, 4, v{hAD}")
        A(f"s_mul_i32 s77, s33, {1280//NP}")
        A(f"v_add_u32 v{hAD}, s77, v{hAD}")
        A(f"v_lshlrev_b32 v{hT}, 3, v{hT}")
        A(f"v_bfe_u32 v{hT+2}, v0, 2, 2")
        A(f"v_add_u32 v{hT}, v{hT}, v{hT+2}")
        A(f"v_mul_u32_u24 v{hAD+1}, 384, v{hT}")
        A(f"v_lshl_add_u32 v{hAD+1}, v{hT+1}, 3, v{hAD+1}")
        A("s_mul_i32 s77, s3, 96")
        if NP == 2:
            A(f"v_add_u32 v{hT+4}, s77, v{hAD+1}")
        A(f"s_add_u32 s77, s77, {L_SBUF}")
        A(f"v_add_u32 v{hAD+1}, s77, v{hAD+1}")
        if NP == 2:
            A(f"v_add_u32 v{hT+5}, {96*384}, v{hAD+1}")
        A("s_mul_i32 s77, s3, 192")
        A(f"v_add_u32 v{hAD+2}, s77, v{hL4}")
        A("s_waitcnt vmcnt(2) lgkmcnt(0)")
        stamp(2, "start")
        lds_inc(hZ, hONE, C_SYNC0)
        lds_wait(hZ, hT, C_SYNC0, 4)
        stamp(3, "start")
        NT = 20 // NP
        breg = lambda t, tt: (hW1 + 12 * t + 4 * tt) if t < 8 else (hG + 12 * (t - 8) + 4 * tt)
        for t in range(NT):
            A(f"ds_read_b128 v[{hA+4*t}:{hA+4*t+3}], v{hAD} offset:{L_XN+64*t}")
        for t in range(NT):
            if NP == 4:
                ad, tl = hAD + 1, t
            else:
                ad, tl = (hT + 4, t) if t < 4 else ((hAD + 1, t - 4) if t < 7 else (hT + 5, t - 7))
            for tt in range(3):
                for hf in range(2):
                    r = breg(t, tt) + 2 * hf
                    A(f"ds_read_b64_tr_b16 v[{r}:{r+1}], v{ad} offset:{(32*tl+4*hf)*384+32*tt}")
        for t in range(NT):
            A(f"s_waitcnt lgkmcnt({min(15, 6*(NT-1-t))})")
            for tt in range(3):
                r = breg(t, tt)
                c = "0" if t == 0 else f"v[{hD+4*tt}:{hD+4*tt+3}]"
                A(f"v_mfma_f32_16x16x32_bf16 v[{hD+4*tt}:{hD+4*tt+3}], v[{hA+4*t}:{hA+4*t+3}], v[{r}:{r+3}], {c}")
        A("s_mov_b64 exec, 0xffff")
        for tt in range(3):
            for b in range(4):
                A(f"ds_write_b32 v{hAD+2}, v{hD+4*tt+b} offset:{L_RED+768*b+64*tt}")
        A("s_mov_b64 exec, -1")
        A(f"s_lshl_b32 s76, {sG}, 2")
        A("s_add_u32 s76, s76, s33")
        A("s_lshl_b32 s76, s76, 12")
        A("s_lshl_b32 s77, s3, 10")
        A("s_add_u32 s76, s76, s77")
        A("s_mul_i32 s78, s3, 768")
        A(f"v_mul_u32_u24 v{hAD}, 12, v0")
        A(f"v_add_u32 v{hAD}, s78, v{hAD}")
        A("s_waitcnt lgkmcnt(0)")
        lds_inc(hZ, hONE, C_SYNC1)
        lds_wait(hZ, hT, C_SYNC1, 4)
        for e in range(3):
            A(f"ds_read_b32 v{hD+e}, v{hAD} offset:{L_RED+4*e}")
        A("s_waitcnt vmcnt(0)")
        get_tag("p")
        A(f"v_mov_b32 v{hD+3}, v{hNC}")
        A("s_waitcnt lgkmcnt(0)")
        if not noqx:
            A(f"buffer_store_dwordx4 v[{hD}:{hD+3}], v{hL16}, {S_WS}, s76 offen sc1")
        stamp(4, "start")
        A("s_branch L_q_gather")
        A.label("L_q_consumer")
        A("s_waitcnt lgkmcnt(0)")
        srd(S_WS, 26, WS_SIZE)
        srd(S_DBG, 24, 256)
        srd(S_X, 4, 5120)
        srd(S_WQ, 10, 640 * 6144 * 2)
        A("s_lshl_b32 s77, s2, 2")
        A("s_add_u32 s77, s77, s3")
        A("s_cmp_lg_u32 s77, 4")
        A("s_cbranch_scc1 L_notag")
        A("s_memrealtime s[78:79]")
        A("s_waitcnt lgkmcnt(0)")
        A("s_or_b32 s78, s78, 1")
        A("s_or_b32 s79, s79, 0x80000000")
        A(f"v_mov_b32 v{hD}, s78")
        A(f"v_mov_b32 v{hD+1}, s79")
        A(f"v_mov_b32 v{hD+2}, 0")
        A(f"v_mov_b32 v{hD+3}, 0")
        A("s_mov_b64 exec, 1")
        A(f"buffer_atomic_cmpswap_x2 v[{hD}:{hD+3}], v{hZ}, {S_DBG}, 0 offen")
        A("s_mov_b64 exec, -1")
        A.label("L_notag")
        A("s_barrier")
        lds_inc(hZ, hONE, C_SYNC1)
        for k in range(qdelay):
            A("s_sleep 64")
        A(f"buffer_load_dwordx2 v[{hNC}:{hNC+1}], v{hZ}, {S_DBG}, 0 offen sc1")
        A("s_waitcnt vmcnt(0)")
        get_tag("c")
        A.label("L_q_gather")
        srd(S_WO, 12, 6144 * 640 * 2)
        srd(S_WG, 16, 640 * 1536 * 2)
        srd(S_WU, 18, 640 * 1536 * 2)
        srd(S_WD, 20, 1536 * 640 * 2)
        srd(S_OUT, 22, 5120)
        A("s_mov_b64 exec, 1")
        A(f"ds_write_b64 v{hZ}, v[{hNC}:{hNC+1}] offset:{L_TAG}")
        A("s_mov_b64 exec, -1")
        A(f"s_lshl_b32 s76, {sH}, 14")
        A("s_lshl_b32 s77, s3, 10")
        A("s_add_u32 s76, s76, s77")
        for k in range(1, 4):
            A(f"s_add_u32 s{76+k}, s76, {4096*k}")
        A("s_mul_i32 s80, s3, 384")
        A(f"v_mul_u32_u24 v{hAD}, 6, v0")
        A(f"v_add_u32 v{hAD}, s80, v{hAD}")
        stamp(1)
        if not noqx and qlight:
            A(f"v_lshlrev_b32 v{hAD+1}, 12, v0")
            A(f"s_mov_b32 s81, {spin_g}")
            A(f"s_mov_b64 exec, {(1 << NP) - 1}")
            A.label("L_qlight")
            A(f"buffer_load_dword v{hT}, v{hAD+1}, {S_WS}, s76 offen offset:1020 sc1")
            A("s_waitcnt vmcnt(0)")
            A(f"v_cmp_ne_u32 vcc, v{hT}, v{hNC}")
            A("s_cbranch_vccz L_qlightd")
            A(f"s_sleep {qsleep}")
            A("s_sub_u32 s81, s81, 1")
            A("s_cmp_lg_u32 s81, 0")
            A("s_cbranch_scc1 L_qlight")
            A.label("L_qlightd")
            A("s_mov_b64 exec, -1")
        if not noqx:
            Lp, Ld = A.newlabel("L_poll"), A.newlabel("L_pdone")
            dl = [f"buffer_load_dwordx4 v[{hG+4*u}:{hG+4*u+3}], v{hL16}, {S_WS}, s{76+u} offen sc1" for u in range(NP)]
            A(f"s_mov_b32 s81, {spin_g}")
            for l in dl:
                A(l)
            A.label(Lp)
            A("s_waitcnt vmcnt(0)")
            for u in range(NP):
                A(f"v_cmp_ne_u32 s[{4+2*u}:{5+2*u}], v{hG+4*u+3}, v{hNC}")
            A("s_or_b64 s[38:39], s[4:5], s[6:7]")
            if NP == 4:
                A("s_or_b64 s[38:39], s[38:39], s[8:9]")
                A("s_or_b64 s[38:39], s[38:39], s[10:11]")
            A(f"s_cbranch_scc0 {Ld}")
            A(f"s_sleep {qsleep}")
            for u, l in enumerate(dl):
                A(f"s_mov_b64 exec, s[{4+2*u}:{5+2*u}]")
                A(l)
            A("s_mov_b64 exec, -1")
            A("s_sub_u32 s81, s81, 1")
            A("s_cmp_lg_u32 s81, 0")
            A(f"s_cbranch_scc1 {Lp}")
            A("s_waitcnt vmcnt(0)")
            A.label(Ld)
            stamp(6, "start")
            for e in range(3):
                A(f"v_add_f32 v{hG+e}, v{hG+e}, v{hG+4+e}")
                if NP == 4:
                    A(f"v_add_f32 v{hG+8+e}, v{hG+8+e}, v{hG+12+e}")
            for e in range(3):
                if NP == 4:
                    A(f"v_add_f32 v{hG+e}, v{hG+e}, v{hG+8+e}")
        A(f"v_cvt_pk_bf16_f32 v{hG+4}, v{hG}, v{hG+1}")
        A(f"v_cvt_pk_bf16_f32 v{hG+5}, v{hG+2}, v{hG+2}")
        A(f"ds_write_b16 v{hAD}, v{hG+4} offset:{L_QL}")
        A(f"ds_write_b16_d16_hi v{hAD}, v{hG+4} offset:{L_QL+2}")
        A(f"ds_write_b16 v{hAD}, v{hG+5} offset:{L_QL+4}")
        A("s_waitcnt lgkmcnt(0)")
        lds_inc(hZ, hONE, C_QRDY)
    else:
        for i in range(3):
            A(f"v_add_u32 v{hT}, {64*i}, v0")
            A(f"v_mul_u32_u24 v{hT+1}, 2731, v{hT}")
            A(f"v_lshrrev_b32 v{hT+1}, 16, v{hT+1}")
            A(f"v_mul_u32_u24 v{hT+2}, 24, v{hT+1}")
            A(f"v_sub_u32 v{hT}, v{hT}, v{hT+2}")
            A(f"v_mul_u32_u24 v{hT+1}, 12288, v{hT+1}")
            A(f"v_lshl_add_u32 v{hAD+i}, v{hT}, 4, v{hT+1}")
        A("s_mul_i32 s75, s3, 1280")
        A(f"s_mul_i32 s76, {sJ}, {80*12288}")
        A(f"s_mul_i32 s77, {sG}, 384")
        A("s_add_u32 s76, s76, s77")
        A(f"s_mul_i32 s77, s3, {8*12288}")
        A("s_add_u32 s76, s76, s77")
        A("s_mul_i32 s83, s3, 3072")
        A("s_waitcnt lgkmcnt(0)")
        srd(S_X, 4, 5120)
        srd(S_WQ, 10, 640 * 6144 * 2)
        for u in range(5):
            A(f"buffer_load_dword v{hX+u}, v{hL4}, {S_X}, s75 offen offset:{256*u}")
        for blk in range(3):
            if blk == 2:
                A("s_cmp_lt_u32 s3, 2")
                A(f"s_cselect_b32 s76, s76, {OOB}")
            for i in range(3):
                A(f"s_add_u32 m0, s83, {blk*4*3072 + 1024*i}")
                A(f"buffer_load_dwordx4 v{hAD+i}, {S_WQ}, s76 offen nt lds")
            A(f"s_add_u32 s76, s76, {32*12288}")
        srd(S_DBG, 24, 256)
        srd(S_WS, 26, WS_SIZE)
        A("s_add_u32 s77, s2, s3")
        A("s_cmp_lg_u32 s77, 0")
        A("s_cbranch_scc1 L_notag")
        A("s_memrealtime s[78:79]")
        A("s_waitcnt lgkmcnt(0)")
        A("s_or_b32 s78, s78, 1")
        A("s_or_b32 s79, s79, 0x80000000")
        A(f"v_mov_b32 v{hD}, s78")
        A(f"v_mov_b32 v{hD+1}, s79")
        A(f"v_mov_b32 v{hD+2}, 0")
        A(f"v_mov_b32 v{hD+3}, 0")
        A("s_mov_b64 exec, 1")
        A(f"buffer_atomic_cmpswap_x2 v[{hD}:{hD+3}], v{hZ}, {S_DBG}, 0 offen")
        A("s_mov_b64 exec, -1")
        A.label("L_notag")
        A("s_lshl_b32 s76, s3, 5")
        A(f"s_add_u32 s76, s76, {sG}")
        A("s_lshl_b32 s76, s76, 8")
        A(f"s_add_u32 s76, s76, {CT_OFF}")
        A(f"s_cmp_eq_u32 {sJ}, 0")
        A(f"s_cselect_b32 s76, s76, {OOB}")
        A("s_mov_b64 exec, 1")
        A(f"buffer_store_dword v{hZ}, v{hZ}, {S_WS}, s76 offen sc1")
        A("s_mov_b64 exec, -1")
        for k in range(4):
            A(f"v_mov_b32 v{hG+k}, 0")
        A(f"ds_write_b128 v{hZ}, v[{hG}:{hG+3}] offset:{L_CNT}")
        A(f"ds_write_b64 v{hZ}, v[{hG}:{hG+1}] offset:{L_CNT+16}")
        A(f"ds_write_b32 v{hZ}, v{hG} offset:{L_CNT+32}")
        A("s_waitcnt lgkmcnt(0)")
        A("s_barrier")
        srd(S_WO, 12, 6144 * 640 * 2)
        srd(S_WG, 16, 640 * 1536 * 2)
        srd(S_WU, 18, 640 * 1536 * 2)
        srd(S_WD, 20, 1536 * 640 * 2)
        srd(S_OUT, 22, 5120)
        A("s_waitcnt vmcnt(10)")
        stamp(1, "start")
        layernorm([hX + u for u in range(5)], hX, hF, hT)
        A(f"v_add_u32 v{hAD}, s75, v{hL4}")
        for u in range(5):
            A(f"ds_write_b32 v{hAD}, v{hX+u} offset:{L_XN+256*u}")
        A(f"buffer_load_dwordx2 v[{hNC}:{hNC+1}], v{hZ}, {S_DBG}, 0 offen sc1")
        A(f"v_lshrrev_b32 v{hT}, 4, v0")
        A(f"v_and_b32 v{hT+1}, 3, v0")
        A(f"v_mul_u32_u24 v{hAD}, 1280, v{hT+1}")
        A(f"v_lshl_add_u32 v{hAD}, v{hT}, 3, v{hAD}")
        A(f"s_mul_i32 s77, {sJ}, 160")
        A(f"v_add_u32 v{hAD}, s77, v{hAD}")
        A(f"v_bfe_u32 v{hT+2}, v0, 2, 2")
        A(f"v_lshl_add_u32 v{hT+3}, v{hT}, 2, v{hT+2}")
        A(f"v_mul_u32_u24 v{hAD+1}, 384, v{hT+3}")
        A(f"v_lshl_add_u32 v{hAD+1}, v{hT+1}, 3, v{hAD+1}")
        A("s_mul_i32 s77, s3, 96")
        A(f"v_add_u32 v{hAD+1}, s77, v{hAD+1}")
        A("s_mul_i32 s77, s3, 192")
        A(f"v_add_u32 v{hAD+2}, s77, v{hL4}")
        A("s_waitcnt vmcnt(2) lgkmcnt(0)")
        stamp(2, "start")
        lds_inc(hZ, hONE, C_SYNC0)
        lds_wait(hZ, hT, C_SYNC0, 4)
        stamp(3, "start")
        for t in range(5):
            A(f"ds_read_b64 v[{hA+2*t}:{hA+2*t+1}], v{hAD} offset:{L_XN+32*t}")
        for tt in range(3):
            for t in range(5):
                r = hB + 2 * (tt * 5 + t)
                A(f"ds_read_b64_tr_b16 v[{r}:{r+1}], v{hAD+1} offset:{16*384*t+32*tt}")
        for tt in range(3):
            A(f"s_waitcnt lgkmcnt({10-5*tt})")
            for t in range(5):
                r = hB + 2 * (tt * 5 + t)
                c = "0" if t == 0 else f"v[{hD+4*tt}:{hD+4*tt+3}]"
                A(f"v_mfma_f32_16x16x16_bf16 v[{hD+4*tt}:{hD+4*tt+3}], v[{hA+2*t}:{hA+2*t+1}], v[{r}:{r+1}], {c}")
        A("s_mov_b64 exec, 0xffff")
        for tt in range(3):
            for b in range(4):
                A(f"ds_write_b32 v{hAD+2}, v{hD+4*tt+b} offset:{L_RED+768*b+64*tt}")
        A("s_mov_b64 exec, -1")
        A("s_lshl_b32 s76, s2, 12")
        A("s_lshl_b32 s77, s3, 10")
        A("s_add_u32 s76, s76, s77")
        A("s_mul_i32 s78, s3, 768")
        A(f"v_add_u32 v{hAD}, s78, v{hL16}")
        A("s_waitcnt lgkmcnt(0)")
        lds_inc(hZ, hONE, C_SYNC1)
        lds_wait(hZ, hT, C_SYNC1, 4)
        A(f"ds_read_b128 v[{hD}:{hD+3}], v{hAD} offset:{L_RED}")
        A("s_waitcnt lgkmcnt(0)")
        A("s_mov_b32 exec_hi, 0xffff")
        if not noqx:
            A(f"buffer_store_dwordx4 v[{hD}:{hD+3}], v{hL16}, {S_WS}, s76 offen sc1")
        A("s_mov_b32 exec_hi, -1")
        stamp(4, "start")
        A(f"s_lshl_b32 s78, {sH}, 15")
        A("s_add_u32 s78, s78, s77")
        A(f"v_lshlrev_b32 v{hAD+1}, 12, v0")
        A("s_mul_i32 s77, s3, 384")
        A(f"v_lshl_add_u32 v{hAD}, v0, 3, s77")
        A("s_waitcnt vmcnt(0)")
        stamp(5, "start")
        A(f"s_mov_b32 s81, {spin_g}")
        A.label("L_gf")
        A(f"v_readfirstlane_b32 s79, v{hNC}")
        A(f"v_readfirstlane_b32 s80, v{hNC+1}")
        A("s_cmp_eq_u32 s79, 0")
        A("s_cselect_b32 s80, 0, s80")
        A("s_cmp_lg_u32 s80, 0")
        A("s_cbranch_scc1 L_gfd")
        A("s_sleep 2")
        A(f"buffer_load_dwordx2 v[{hNC}:{hNC+1}], v{hZ}, {S_DBG}, 0 offen sc1")
        A("s_waitcnt vmcnt(0)")
        A("s_sub_u32 s81, s81, 1")
        A("s_cmp_lg_u32 s81, 0")
        A("s_cbranch_scc1 L_gf")
        A.label("L_gfd")
        A("s_mov_b64 exec, 1")
        if not noqx:
            A(f"buffer_store_dwordx2 v[{hNC}:{hNC+1}], v{hZ}, {S_WS}, s76 offen offset:768 sc1")
        A(f"ds_write_b64 v{hZ}, v[{hNC}:{hNC+1}] offset:{L_TAG}")
        A("s_mov_b64 exec, -1")
        stamp(1)
        if not noqx:
            poll_tagged([f"buffer_load_dwordx2 v[{hT}:{hT+1}], v{hAD+1}, {S_WS}, s78 offen offset:768 sc1"], [hT], hNC, hT + 2,
                        sleep=qsleep, mask="0xff")
            stamp(6, "start")
            A("s_mov_b32 exec_hi, 0xffff")
            for jj in range(8):
                A(f"buffer_load_dwordx4 v[{hG+4*jj}:{hG+4*jj+3}], v{hL16}, {S_WS}, s78 offen sc1")
                A("s_add_u32 s78, s78, 4096")
            for jj in range(1, 8):
                A(f"s_waitcnt vmcnt({7-jj})")
                for e in range(4):
                    A(f"v_add_f32 v{hG+e}, v{hG+e}, v{hG+4*jj+e}")
        A("s_mov_b32 exec_hi, 0xffff")
        A(f"v_cvt_pk_bf16_f32 v{hG+4}, v{hG}, v{hG+1}")
        A(f"v_cvt_pk_bf16_f32 v{hG+5}, v{hG+2}, v{hG+3}")
        A(f"ds_write_b64 v{hAD}, v[{hG+4}:{hG+5}] offset:{L_QL}")
        A("s_mov_b32 exec_hi, -1")
        A("s_waitcnt lgkmcnt(0)")
        lds_inc(hZ, hONE, C_QRDY)
    stamp(2)
    stamp(7, "start")
    if prio:
        A("s_setprio 0")

    def tr_addr(dst, rowbytes, base, k16=False):
        A(f"v_lshrrev_b32 v{hT}, 4, v0")
        A(f"v_lshlrev_b32 v{hT}, {2 if k16 else 3}, v{hT}")
        A(f"v_bfe_u32 v{hT+1}, v0, 2, 2")
        A(f"v_add_u32 v{hT}, v{hT}, v{hT+1}")
        A(f"v_mul_u32_u24 v{dst}, {rowbytes}, v{hT}")
        A(f"v_and_b32 v{hT+1}, 3, v0")
        A(f"v_lshl_add_u32 v{dst}, v{hT+1}, 3, v{dst}")
        A(f"v_add_u32 v{dst}, {base}, v{dst}")

    def warm_code(l0, l1, tmp):
        if not warm:
            return
        lab = A.newlabel("L_pc")
        A("s_getpc_b64 s[20:21]")
        A.label(lab)
        A(f"s_add_u32 s20, s20, {l0}-{lab}")
        A("s_addc_u32 s21, s21, 0")
        A(f"v_lshlrev_b32 v{tmp}, 7, v0")
        A(f"v_min_u32 v{tmp}, ({l1}-{l0}-4)&~3, v{tmp}")
        A(f"global_load_dword v{tmp}, v{tmp}, s[20:21]")

    def warm_icache(tag):
        if not pads:
            return
        A("s_mov_b64 exec, 0")
        A(f"s_cbranch_execz L_pad0_{tag}")
        A.label(f"L_padret_{tag}")
        A("s_mov_b64 exec, -1")

    def pack24(o, src):
        for i in range(3):
            A(f"v_perm_b32 v{o+i}, v{src+i}, v{src+3}, s{44+i}")

    def set_sel():
        for i in range(3):
            A(f"s_mov_b32 s{44+i}, 0x0706050{3-i}")

    def split_halves(d):
        A(f"v_cndmask_b32 v{d}, v{d}, v{d+2}, s[34:35]")
        A(f"v_cndmask_b32 v{d+1}, v{d+1}, v{d+3}, s[34:35]")
        A(f"v_mov_b32 v{d+2}, v{hNC}")
        A(f"v_mov_b32 v{d+3}, v{hNC+1}")

    hGO = 13
    A(f"v_and_b32 v{hT}, 15, v0")
    A(f"v_lshlrev_b32 v{hGO}, 5, v{hT}")
    A(f"v_and_b32 v{hT}, 16, v0")
    A(f"v_add_u32 v{hGO}, v{hGO}, v{hT}")
    A("v_cmp_lt_u32 s[34:35], 15, v0")
    A("s_mul_i32 s83, s3, 12288")
    rH, rC = "s100", "s101"
    if xr:
        A(f"s_sub_u32 {rH}, {sG}, 24")
        A(f"s_lshl_b32 {rH}, {rH}, 3")
        A(f"s_add_u32 {rH}, {rH}, {sJ}")
        A(f"s_cmp_ge_u32 {sG}, 24")
        A("s_cbranch_scc1 L_role_red")
        A(f"s_lshl_b32 {rH}, {sJ}, 2")
        A(f"s_add_u32 {rH}, {rH}, {sG}")
        A(f"s_sub_u32 {rH}, {rH}, 20")
        A(f"s_cmp_ge_u32 {sG}, 20")
        A("s_cbranch_scc1 L_role_ffn")
        A(f"s_mul_i32 {rH}, {sG}, 13")
        A(f"s_lshr_b32 {rH}, {rH}, 6")
        A(f"s_mul_i32 {rC}, {rH}, 5")
        A(f"s_sub_u32 {rC}, {sG}, {rC}")
        A(f"s_lshl_b32 {rH}, {rH}, 3")
        A(f"s_add_u32 {rH}, {rH}, {sJ}")
    else:
        A(f"s_lshl_b32 {rH}, {sG}, 1")
        A(f"s_add_u32 {rH}, {rH}, {sJ}")
        A(f"s_sub_u32 {rH}, {rH}, 6")
        A(f"s_cmp_gt_u32 {sJ}, 5")
        A("s_cbranch_scc1 L_role_red")
        A(f"s_mov_b32 {rH}, {sG}")
        A(f"s_mov_b32 {rC}, {sJ}")
        A(f"s_cmp_eq_u32 {sJ}, 5")
        A("s_cbranch_scc1 L_role_ffn")

    A(f"s_mul_i32 s32, {rH}, {10240 if ypc else 20480}")
    A(f"s_lshl_b32 s77, {rC}, {11 if ypc else 12}")
    A("s_add_u32 s32, s32, s77")
    A(f"s_lshl_b32 s77, s3, {9 if ypc else 10}")
    set_sel()
    A("s_add_u32 s32, s32, s77")
    A(f"s_add_u32 s32, s32, {YP_OFF}")
    if touch_y:
        for k in range(4):
            A(f"v_mov_b32 v{hG+k}, 0")
        A(f"buffer_store_dwordx4 v[{hG}:{hG+3}], v{hL16}, {S_WS}, s32 offen sc1")
    if not noweights:
        A(f"v_lshrrev_b32 v{hAD}, 4, v0")
        A(f"v_mul_u32_u24 v{hAD}, 1280, v{hAD}")
        A(f"v_and_b32 v{hT}, 15, v0")
        A(f"v_lshl_add_u32 v{hAD}, v{hT}, 4, v{hAD}")
        A(f"s_mul_i32 s76, {rH}, {192*1280}")
        A(f"s_lshl_b32 s77, {rC}, 8")
        A("s_add_u32 s76, s76, s77")
        A(f"s_mul_i32 s77, s3, {48*1280}")
        A("s_add_u32 s76, s76, s77")
        if NL > 4:
            lds_wait(hZ, hT, C_SFREE, 4, sleep=16)
        if "wo" in late:
            lds_wait(hZ, hT, C_DRY, 1, sleep=8)
        for u in range(12):
            A(f"s_add_u32 m0, s83, {1024*u}")
            A(f"buffer_load_dwordx4 v{hAD}, {S_WO}, s76 offen nt lds")
            A(f"s_add_u32 s76, s76, {4*1280}")
        A("s_lshl_b32 s77, s3, 6")
        tr_addr(hAD + 1, 256, "s77")
        A("s_waitcnt vmcnt(0)")
        lds_inc(hZ, hONE, C_WSYNC)
        lds_wait(hZ, hT, C_WSYNC, 4, sleep=4)
        for tt in range(2):
            for t in range(6):
                for hf in range(2):
                    r = hW1 + 4 * (tt * 6 + t) + 2 * hf
                    A(f"ds_read_b64_tr_b16 v[{r}:{r+1}], v{hAD+1} offset:{(32*t+4*hf)*256+32*tt}")
    hAF, hOD = 122, 124
    A(f"v_and_b32 v{hT}, 3, v0")
    A(f"v_lshrrev_b32 v{hT+1}, 4, v0")
    A(f"v_mul_u32_u24 v{hAF}, 384, v{hT}")
    A(f"v_lshl_add_u32 v{hAF}, v{hT+1}, 4, v{hAF}")
    A(f"v_lshrrev_b32 v{hT}, 3, v0")
    A(f"v_mul_u32_u24 v{hT}, 3, v{hT}")
    A(f"v_and_b32 v{hT+1}, 7, v0")
    A(f"v_lshlrev_b32 v{hT+1}, 4, v{hT+1}")
    A("s_mul_i32 s76, s3, 384")
    A(f"v_add_u32 v{hT+1}, s76, v{hT+1}")
    for r in range(3):
        A(f"v_add_u32 v{hT+2}, {r}, v{hT}")
        A(f"v_lshrrev_b32 v{hT+3}, 3, v{hT+2}")
        A(f"v_lshlrev_b32 v{hT+3}, 7, v{hT+3}")
        A(f"v_and_b32 v{hT+2}, 7, v{hT+2}")
        A(f"v_lshlrev_b32 v{hT+2}, 1, v{hT+2}")
        A(f"v_add3_u32 v{hOD+r}, v{hT+1}, v{hT+2}, v{hT+3}")
    A("s_lshl_b32 s76, s3, 5")
    A(f"s_add_u32 s76, s76, {rH}")
    A("s_lshl_b32 s76, s76, 14")
    A(f"s_add_u32 s76, s76, {OP_OFF}")
    for k in range(1, 4):
        A(f"s_add_u32 s{76+k}, s76, {4096*k}")
    A(f"v_and_b32 v{hT}, 1, v0")
    A(f"v_cmp_ne_u32 s[36:37], 0, v{hT}")
    if opc:
        A(f"v_mov_b32 v{hA+4}, v{hNC}")
        A(f"v_and_b32 v{hA+5}, 7, v0")
        A(f"v_lshlrev_b32 v{hA+5}, 11, v{hA+5}")
    warm_code("L_tail_wo", "L_role_red", hT + 5)
    A("s_waitcnt lgkmcnt(0)")
    warm_icache("wo")
    A("s_barrier")
    A.label("L_tail_wo")
    if pads:
        A.pads_begin("L_pad0_wo", pads)
    stamp(3)
    if opc:
        hML, hTW = hA, hA + 4
        Lp, Ld = A.newlabel("L_poll"), A.newlabel("L_pdone")
        A.pads_pause(True)
        dl = [f"buffer_load_dwordx4 v[{hG+4*jj}:{hG+4*jj+3}], v{hL16}, {S_WS}, s{76+(jj>>1)} offen offset:{2048*(jj&1)} sc1" for jj in range(8)]
        ml = f"buffer_load_dwordx4 v[{hML}:{hML+3}], v{hTW+1}, {S_WS}, s76 offen offset:1024 sc1"
        A(f"s_mov_b32 s81, {spin_g}")
        for l in dl:
            A(l)
        A(ml)
        A.label(Lp)
        A("s_waitcnt vmcnt(0)")
        for jj in range(8):
            A(f"v_cmp_ne_u32 s[{4+2*jj}:{5+2*jj}], v{hG+4*jj+3}, v{hTW}")
        A(f"v_cmp_ne_u64 s[20:21], v[{hML+2}:{hML+3}], v[{hNC}:{hNC+1}]")
        A("s_or_b64 s[38:39], s[4:5], s[6:7]")
        for i in range(2, 9):
            A(f"s_or_b64 s[38:39], s[38:39], s[{4+2*i}:{5+2*i}]")
        A(f"s_cbranch_scc0 {Ld}")
        if psleep:
            A(f"s_sleep {psleep}")
        for i, l in enumerate(dl + [ml]):
            A(f"s_mov_b64 exec, s[{4+2*i}:{5+2*i}]")
            A(l)
        A("s_mov_b64 exec, -1")
        A("s_sub_u32 s81, s81, 1")
        A("s_cmp_lg_u32 s81, 0")
        A(f"s_cbranch_scc1 {Lp}")
        A("s_waitcnt vmcnt(0)")
        A.label(Ld)
        A.pads_pause(False)
        stamp(4)
        A(f"v_max_f32_dpp v{hT}, v{hML}, v{hML} quad_perm:[1,0,3,2] {DPP}")
        A(f"v_max_f32_dpp v{hT}, v{hT}, v{hT} quad_perm:[2,3,0,1] {DPP}")
        A(f"v_max_f32_dpp v{hT}, v{hT}, v{hT} row_half_mirror {DPP}")
        A(f"v_sub_f32 v{hT}, v{hML}, v{hT}")
        A(f"v_mul_f32 v{hT}, {LOG2E}, v{hT}")
        A(f"v_exp_f32 v{hT}, v{hT}")
        A(f"v_mul_f32 v{hT+1}, v{hT}, v{hML+1}")
        A(f"v_add_f32_dpp v{hT+1}, v{hT+1}, v{hT+1} quad_perm:[1,0,3,2] {DPP}")
        A(f"v_add_f32_dpp v{hT+1}, v{hT+1}, v{hT+1} quad_perm:[2,3,0,1] {DPP}")
        A(f"v_add_f32_dpp v{hT+1}, v{hT+1}, v{hT+1} row_half_mirror {DPP}")
        A(f"v_rcp_f32 v{hT+1}, v{hT+1}")
        A(f"v_mul_f32 v{hT}, v{hT}, v{hT+1}")
        for jj in range(8):
            A(f"v_readlane_b32 s{4+jj}, v{hT}, {jj}")
        for r in range(3):
            A(f"v_mul_f32 v{hT+2+r}, s4, v{hG+r}")
        for jj in range(1, 8):
            for r in range(3):
                A(f"v_fmac_f32 v{hT+2+r}, s{4+jj}, v{hG+4*jj+r}")
    else:
        g0 = lambda jj: hG + 4 * jj
        g1 = lambda jj: hA + 4 * jj
        lt = []
        for jj in range(8):
            for k, g in enumerate((g0(jj), g1(jj))):
                lt.append(f"buffer_load_dwordx4 v[{g}:{g+3}], v{hL16}, {S_WS}, s{76+(jj>>1)} offen offset:{2048*(jj&1)+1024*k} sc1")
        if selpoll:
            poll_sel([(lt[2*jj:2*jj+2], [g0(jj) + 2, g1(jj) + 2]) for jj in range(8)], hNC, sleep=psleep)
        else:
            poll_tagged(lt, [g0(jj) + 2 for jj in range(8)] + [g1(jj) + 2 for jj in range(8)], hNC, hT, sleep=psleep)
        stamp(4)
        hMx, hWt = hB, hB + 8
        for jj in range(8):
            A(f"v_mov_b32_dpp v{hMx+jj}, v{g1(jj)+1} quad_perm:[1,0,3,2] {DPP}")
        for jj in range(8):
            A(f"v_cndmask_b32 v{hWt+jj}, v{g1(jj)+1}, v{hMx+jj}, s[36:37]")
            A(f"v_cndmask_b32 v{hMx+jj}, v{hMx+jj}, v{g1(jj)+1}, s[36:37]")
        A(f"v_max3_f32 v{hT}, v{hWt}, v{hWt+1}, v{hWt+2}")
        A(f"v_max3_f32 v{hT+1}, v{hWt+3}, v{hWt+4}, v{hWt+5}")
        A(f"v_max3_f32 v{hT}, v{hT}, v{hWt+6}, v{hWt+7}")
        A(f"v_max_f32 v{hT}, v{hT}, v{hT+1}")
        for jj in range(8):
            A(f"v_sub_f32 v{hWt+jj}, v{hWt+jj}, v{hT}")
        for jj in range(8):
            A(f"v_mul_f32 v{hWt+jj}, {LOG2E}, v{hWt+jj}")
        for jj in range(8):
            A(f"v_exp_f32 v{hWt+jj}, v{hWt+jj}")
        oreg = lambda jj, r: (g0(jj), g0(jj) + 1, g1(jj))[r]
        A(f"v_mul_f32 v{hT+1}, v{hWt}, v{hMx}")
        for r in range(3):
            A(f"v_mul_f32 v{hT+2+r}, v{hWt}, v{oreg(0, r)}")
        for jj in range(1, 8):
            A(f"v_fmac_f32 v{hT+1}, v{hWt+jj}, v{hMx+jj}")
            for r in range(3):
                A(f"v_fmac_f32 v{hT+2+r}, v{hWt+jj}, v{oreg(jj, r)}")
        A(f"v_rcp_f32 v{hT}, v{hT+1}")
        for r in range(3):
            A(f"v_mul_f32 v{hT+2+r}, v{hT+2+r}, v{hT}")
    A(f"v_cvt_pk_bf16_f32 v{hT}, v{hT+2}, v{hT+3}")
    A(f"v_cvt_pk_bf16_f32 v{hT+1}, v{hT+4}, v{hT+4}")
    A(f"ds_write_b16 v{hOD}, v{hT} offset:{L_OL}")
    A(f"ds_write_b16_d16_hi v{hOD+1}, v{hT} offset:{L_OL}")
    A(f"ds_write_b16 v{hOD+2}, v{hT+1} offset:{L_OL}")
    A("s_waitcnt lgkmcnt(0)")
    A("s_barrier")
    for t in range(6):
        A(f"ds_read_b128 v[{hA+4*t}:{hA+4*t+3}], v{hAF} offset:{L_OL+64*t}")
    for t in range(6):
        A(f"s_waitcnt lgkmcnt({5-t})")
        for tt in range(2):
            r = hW1 + 4 * (tt * 6 + t)
            c = "0" if t == 0 else f"v[{hD+4*tt}:{hD+4*tt+3}]"
            A(f"v_mfma_f32_16x16x32_bf16 v[{hD+4*tt}:{hD+4*tt+3}], v[{hA+4*t}:{hA+4*t+3}], v[{r}:{r+3}], {c}")
    A("s_mov_b32 exec_hi, 0")
    if ypc:
        A(f"v_mov_b32 v{hD+11}, v{hNC}")
        for e in range(4):
            A(f"v_cndmask_b32 v{hD+e}, v{hD+e}, v{hD+4+e}, s[34:35]")
        pack24(hD + 8, hD)
        A(f"buffer_store_dwordx4 v[{hD+8}:{hD+11}], v{hL16}, {S_WS}, s32 offen sc1")
    else:
        for tt in range(2):
            split_halves(hD + 4 * tt)
            A(f"buffer_store_dwordx4 v[{hD+4*tt}:{hD+4*tt+3}], v{hGO}, {S_WS}, s32 offen offset:{512*tt} sc1")
    A("s_mov_b32 exec_hi, -1")
    if pads:
        A.pads_end("L_padret_wo")
    stamp(5)
    A("s_branch L_h_end")

    A.label("L_role_red")
    A("s_lshl_b32 s77, s3, 6")
    A(f"s_add_u32 s33, {rH}, s77")
    A("s_cmp_ge_u32 s33, 80")
    A("s_cbranch_scc1 L_h_end")
    A("s_lshl_b32 s36, s33, 7")
    A(f"s_add_u32 s36, s36, {HB_OFF}")
    A("s_lshl_b32 s37, s33, 4")
    if touch_y:
        for k in range(4):
            A(f"v_mov_b32 v{hG+k}, 0")
        A("s_mov_b64 exec, 0xff")
        A(f"buffer_store_dwordx4 v[{hG}:{hG+3}], v{hL16}, {S_WS}, s36 offen sc1")
        A("s_mov_b64 exec, -1")
    if ypc:
        hRS = hB
        A(f"v_and_b32 v{hT+2}, 7, v0")
        A(f"v_lshlrev_b32 v{hT+3}, 1, v{hT+2}")
        for bb in range(4):
            A(f"buffer_load_ushort v{hX+bb}, v{hT+3}, {S_X}, s37 offen offset:{1280*bb}")
        A(f"v_and_b32 v{hT+4}, 1, v0")
        A(f"v_cmp_ne_u32 s[34:35], 0, v{hT+4}")
        A(f"v_mul_u32_u24 v{hAD}, 2558, v{hT+4}")
        A(f"v_add_u32 v{hAD}, v{hAD}, v{hT+3}")
        A(f"v_lshlrev_b32 v{hAD+2}, 4, v{hT+2}")
        A(f"v_lshrrev_b32 v{hT+4}, 3, v0")
        A(f"v_mul_u32_u24 v{hAD+1}, 10240, v{hT+4}")
        A(f"v_lshl_add_u32 v{hAD+1}, v{hT+2}, 4, v{hAD+1}")
        A("s_mov_b32 s44, 0x0c040000")
        A("s_mov_b32 s45, 0x07060000")
        if tlb:
            A(f"buffer_load_dword v{hG}, v{hAD}, {S_OUT}, s37 offen")
        A("s_waitcnt vmcnt(0)")
        for bb in range(4):
            A(f"v_lshlrev_b32 v{hRS+bb}, 16, v{hX+bb}")
        warm_code("L_tail_red", "L_role_ffn", hT + 5)
        warm_icache("red")
        A("s_barrier")
        A.label("L_tail_red")
        if pads:
            A.pads_begin("L_pad0_red", pads)
        stamp(3)

        def reduce32c(base_off, st):
            A("s_lshl_b32 s76, s33, 7")
            A(f"s_add_u32 s76, s76, {base_off}")
            for u in range(1, 4):
                A(f"s_add_u32 s{76+u}, s76, {81920*u}")
            Lp, Ld = A.newlabel("L_poll"), A.newlabel("L_pdone")
            A.pads_pause(True)
            dl = [f"buffer_load_dwordx4 v[{hG+4*u}:{hG+4*u+3}], v{hAD+1}, {S_WS}, s{76+u} offen sc1" for u in range(4)]
            A(f"s_mov_b32 s81, {spin_g}")
            for l in dl:
                A(l)
            A.label(Lp)
            A("s_waitcnt vmcnt(0)")
            for u in range(4):
                A(f"v_cmp_ne_u32 s[{4+2*u}:{5+2*u}], v{hG+4*u+3}, v{hNC}")
            A("s_or_b64 s[38:39], s[4:5], s[6:7]")
            A("s_or_b64 s[38:39], s[38:39], s[8:9]")
            A("s_or_b64 s[38:39], s[38:39], s[10:11]")
            A(f"s_cbranch_scc0 {Ld}")
            if psleep:
                A(f"s_sleep {psleep}")
            for u, l in enumerate(dl):
                A(f"s_mov_b64 exec, s[{4+2*u}:{5+2*u}]")
                A(l)
            A("s_mov_b64 exec, -1")
            A("s_sub_u32 s81, s81, 1")
            A("s_cmp_lg_u32 s81, 0")
            A(f"s_cbranch_scc1 {Lp}")
            A("s_waitcnt vmcnt(0)")
            A.label(Ld)
            A.pads_pause(False)
            stamp(st)
            for u in range(4):
                g = hG + 4 * u
                A(f"v_lshlrev_b32 v{hT}, 24, v{g}")
                A(f"v_and_b32 v{hT+1}, 0xff, v{g+1}")
                A(f"v_lshl_or_b32 v{hT}, v{hT+1}, 16, v{hT}")
                A(f"v_and_b32 v{hT+1}, 0xff, v{g+2}")
                A(f"v_lshl_or_b32 v{g+3}, v{hT+1}, 8, v{hT}")
                for e in range(3):
                    A(f"v_and_b32 v{g+e}, 0xffffff00, v{g+e}")
            for e in range(4):
                A(f"v_add_f32 v{hG+e}, v{hG+e}, v{hG+4+e}")
                A(f"v_add_f32 v{hG+8+e}, v{hG+8+e}, v{hG+12+e}")
            for e in range(4):
                A(f"v_add_f32 v{hG+e}, v{hG+e}, v{hG+8+e}")
            for e in range(4):
                A(f"v_add_f32_dpp v{hG+e}, v{hG+e}, v{hG+e} row_ror:8 {DPP}")
            for sw in ("v_permlane16_swap_b32", "v_permlane32_swap_b32"):
                for e in range(4):
                    A(f"v_mov_b32 v{hG+4+e}, v{hG+e}")
                for e in range(4):
                    A(f"{sw} v{hG+e}, v{hG+4+e}")
                for e in range(4):
                    A(f"v_add_f32 v{hG+e}, v{hG+e}, v{hG+4+e}")
            for p_ in range(2):
                A(f"v_cvt_pk_bf16_f32 v{hG+4+p_}, v{hG+2*p_}, v{hG+2*p_+1}")
            for p_ in range(2):
                A(f"v_lshlrev_b32 v{hG+2*p_}, 16, v{hG+4+p_}")
                A(f"v_and_b32 v{hG+2*p_+1}, 0xffff0000, v{hG+4+p_}")
            for e in range(4):
                A(f"v_add_f32 v{hG+e}, v{hG+e}, v{hRS+e}")
            for p_ in range(2):
                A(f"v_cvt_pk_bf16_f32 v{hG+4+p_}, v{hG+2*p_}, v{hG+2*p_+1}")
            for p_ in range(2):
                A(f"v_lshlrev_b32 v{hRS+2*p_}, 16, v{hG+4+p_}")
                A(f"v_and_b32 v{hRS+2*p_+1}, 0xffff0000, v{hG+4+p_}")
            A(f"v_cndmask_b32 v{hG+6}, v{hG+5}, v{hG+4}, s[34:35]")
            A(f"v_cndmask_b32 v{hG+7}, v{hG+4}, v{hG+5}, s[34:35]")
            A(f"v_mov_b32_dpp v{hG+6}, v{hG+6} quad_perm:[1,0,3,2] {DPP}")
            A(f"v_cndmask_b32 v{hG+4}, v{hG+7}, v{hG+6}, s[34:35]")
            A(f"v_cndmask_b32 v{hG+5}, v{hG+6}, v{hG+7}, s[34:35]")
            A(f"v_and_b32 v{hD}, 0xffff, v{hG+4}")
            A(f"v_lshl_or_b32 v{hD}, v{hG+5}, 16, v{hD}")
            A(f"v_and_b32 v{hG+5}, 0xffff0000, v{hG+5}")
            A(f"v_lshrrev_b32 v{hD+1}, 16, v{hG+4}")
            A(f"v_or_b32 v{hD+1}, v{hD+1}, v{hG+5}")

        reduce32c(YP_OFF, 4)
        A(f"v_mov_b32 v{hD+2}, v{hNC}")
        A(f"v_mov_b32 v{hD+3}, v{hNC+1}")
        A("s_mov_b64 exec, 0xff")
        A(f"buffer_store_dwordx4 v[{hD}:{hD+3}], v{hAD+2}, {S_WS}, s36 offen sc1")
        A("s_mov_b64 exec, -1")
        stamp(5)
        reduce32c(ZP_OFF, 6)
        A("s_mov_b64 exec, 0xff")
        A(f"buffer_store_dword v{hD}, v{hAD}, {S_OUT}, s37 offen")
        A(f"buffer_store_dword v{hD+1}, v{hAD}, {S_OUT}, s37 offen offset:1280")
        A("s_mov_b64 exec, -1")
        if pads:
            A.pads_end("L_padret_red")
        A("s_branch L_h_end")
    else:
        A(f"v_and_b32 v{hT+2}, 1, v0")
        A(f"v_mul_u32_u24 v{hAD}, 2560, v{hT+2}")
        A(f"v_and_b32 v{hT+3}, 14, v0")
        A(f"v_add_u32 v{hAD}, v{hAD}, v{hT+3}")
        A(f"buffer_load_ushort v{hX}, v{hAD}, {S_X}, s37 offen")
        A(f"buffer_load_ushort v{hX+1}, v{hAD}, {S_X}, s37 offen offset:1280")
        A(f"v_bfe_u32 v{hT+3}, v0, 2, 2")
        A(f"v_lshlrev_b32 v{hAD+2}, 5, v{hT+3}")
        A(f"v_lshl_add_u32 v{hAD+2}, v{hT+2}, 4, v{hAD+2}")
        A(f"v_lshrrev_b32 v{hT+2}, 4, v0")
        A(f"v_mul_u32_u24 v{hAD+1}, 20480, v{hT+2}")
        A(f"v_and_b32 v{hT+2}, 15, v0")
        A(f"v_lshl_add_u32 v{hAD+1}, v{hT+2}, 4, v{hAD+1}")
        hRS = hB
        A("s_waitcnt vmcnt(0)")
        A(f"v_lshlrev_b32 v{hRS}, 16, v{hX}")
        A(f"v_lshlrev_b32 v{hRS+1}, 16, v{hX+1}")
        warm_code("L_tail_red", "L_role_ffn", hT + 5)
        warm_icache("red")
        A("s_barrier")
        A.label("L_tail_red")
        if pads:
            A.pads_begin("L_pad0_red", pads)
        stamp(3)

        def reduce32(base_off, st):
            A("s_lshl_b32 s76, s33, 8")
            A(f"s_add_u32 s76, s76, {base_off}")
            lt = []
            for u in range(8):
                lt.append(f"buffer_load_dwordx4 v[{hG+4*u}:{hG+4*u+3}], v{hAD+1}, {S_WS}, s76 offen sc1")
                lt.append(f"s_add_u32 s76, s76, {4*20480}" if u < 7 else f"s_sub_u32 s76, s76, {7*4*20480}")
            if selpoll:
                for u in range(8):
                    A(f"s_add_u32 s{20+u}, s76, {4*20480*u}")
                poll_sel([([f"buffer_load_dwordx4 v[{hG+4*u}:{hG+4*u+3}], v{hAD+1}, {S_WS}, s{20+u} offen sc1"], [hG + 4 * u + 2]) for u in range(8)],
                         hNC, sleep=psleep)
            else:
                poll_tagged(lt, [hG + 4 * u + 2 for u in range(8)], hNC, hT, sleep=psleep)
            stamp(st)
            for st2 in (4, 2, 1):
                for u in range(st2):
                    for e in range(2):
                        A(f"v_add_f32 v{hG+4*u+e}, v{hG+4*u+e}, v{hG+4*(u+st2)+e}")
            for sw in ("v_permlane16_swap_b32", "v_permlane32_swap_b32"):
                for e in range(2):
                    A(f"v_mov_b32 v{hG+4+e}, v{hG+e}")
                for e in range(2):
                    A(f"{sw} v{hG+e}, v{hG+4+e}")
                for e in range(2):
                    A(f"v_add_f32 v{hG+e}, v{hG+e}, v{hG+4+e}")
            A(f"v_cvt_pk_bf16_f32 v{hG}, v{hG}, v{hG+1}")
            A(f"v_lshlrev_b32 v{hG+2}, 16, v{hG}")
            A(f"v_and_b32 v{hG+3}, 0xffff0000, v{hG}")
            A(f"v_add_f32 v{hG+2}, v{hG+2}, v{hRS}")
            A(f"v_add_f32 v{hG+3}, v{hG+3}, v{hRS+1}")
            A(f"v_cvt_pk_bf16_f32 v{hG}, v{hG+2}, v{hG+3}")
            A(f"v_lshlrev_b32 v{hRS}, 16, v{hG}")
            A(f"v_and_b32 v{hRS+1}, 0xffff0000, v{hG}")
            A(f"v_mov_b32_dpp v{hG+1}, v{hG} quad_perm:[2,3,0,1] {DPP}")
            A(f"v_and_b32 v{hD}, 0xffff, v{hG}")
            A(f"v_lshl_or_b32 v{hD}, v{hG+1}, 16, v{hD}")
            A(f"v_and_b32 v{hG+1}, 0xffff0000, v{hG+1}")
            A(f"v_lshrrev_b32 v{hD+1}, 16, v{hG}")
            A(f"v_or_b32 v{hD+1}, v{hD+1}, v{hG+1}")

        reduce32(YP_OFF, 4)
        A(f"v_mov_b32 v{hD+2}, v{hNC}")
        A(f"v_mov_b32 v{hD+3}, v{hNC+1}")
        A("s_mov_b64 exec, 0x3333")
        A(f"buffer_store_dwordx4 v[{hD}:{hD+3}], v{hAD+2}, {S_WS}, s36 offen sc1")
        A("s_mov_b64 exec, -1")
        stamp(5)
        reduce32(ZP_OFF, 6)
        A("s_mov_b64 exec, 0x3333")
        A(f"buffer_store_dword v{hD}, v{hAD}, {S_OUT}, s37 offen")
        A(f"buffer_store_dword v{hD+1}, v{hAD}, {S_OUT}, s37 offen offset:1280")
        A("s_mov_b64 exec, -1")
        if pads:
            A.pads_end("L_padret_red")
        A("s_branch L_h_end")

    A.label("L_role_ffn")
    fA, fD, fWD, fWG = 32, 52, 76, 136
    fD2 = fWG

    def load_wd(z, o, l16, ad):
        A(f"s_mul_i32 s22, {rH}, {48*1280}")
        A("s_mul_i32 s23, s3, 15360")
        A("s_add_u32 s22, s22, s23")
        A(f"s_add_u32 s23, s23, {L_SBUF}")
        lds_wait(z, hT, C_SFREE, 4, sleep=16)
        if "wd" in late:
            lds_wait(z, hT, C_DRY, 1, sleep=8)
        for u in range(15):
            A(f"s_add_u32 m0, s23, {1024*u}")
            A(f"buffer_load_dwordx4 v{l16}, {S_WD}, s22 offen nt lds")
            A("s_add_u32 s22, s22, 1024")
        A("s_mul_i32 s23, s3, 320")
        A(f"s_add_u32 s23, s23, {L_SBUF}")
        tr_addr(ad, 1280, "s23", k16=True)
        A("s_waitcnt vmcnt(0)")
        lds_inc(z, o, C_WSYNC)
        lds_wait(z, hT, C_WSYNC, 4, sleep=4)
        for nt in range(10):
            for t in range(3):
                r = fWD + 2 * (nt * 3 + t)
                A(f"ds_read_b64_tr_b16 v[{r}:{r+1}], v{ad} offset:{16*t*1280+32*nt}")
        A("s_waitcnt lgkmcnt(0)")

    A(f"s_mul_i32 s32, {rH}, {10240 if ypc else 20480}")
    A(f"s_mul_i32 s77, s3, {2560 if ypc else 5120}")
    set_sel()
    A("s_add_u32 s32, s32, s77")
    A(f"s_add_u32 s32, s32, {ZP_OFF}")
    A("s_add_u32 s33, s32, 4096")
    if touch_y:
        for k in range(4):
            A(f"v_mov_b32 v{hG+k}, 0")
        for k in range(5):
            A(f"buffer_store_dwordx4 v[{hG}:{hG+3}], v{hL16}, {S_WS}, {'s32' if k < 4 else 's33'} offen offset:{1024*(k&3)} sc1")
    if not noweights:
        A(f"v_mul_u32_u24 v{hT}, 43, v0")
        A(f"v_lshrrev_b32 v{hT}, 8, v{hT}")
        A(f"v_mul_u32_u24 v{hT+1}, 6, v{hT}")
        A(f"v_sub_u32 v{hT+1}, v0, v{hT+1}")
        A(f"v_mul_u32_u24 v{hAD}, 3072, v{hT}")
        A(f"v_lshl_add_u32 v{hAD}, v{hT+1}, 4, v{hAD}")
        if "gu" in late:
            A("s_mul_i32 s78, s3, 24576")
            A(f"s_add_u32 s78, s78, {L_SBUF}")
            tr_addr(hAD + 1, 96, "s78")
            tr_addr(hAD + 2, 96, "s83")
            lds_wait(hZ, hT, C_SFREE, 4, sleep=16)
            lds_wait(hZ, hT, C_DRY, 1, sleep=8)
            A("s_mov_b32 exec_hi, 0xffff")
            for mi, srdn in enumerate((S_WG, S_WU)):
                A(f"s_mul_i32 s76, {rH}, 96")
                A(f"s_mul_i32 s77, s3, {160*3072}")
                A("s_add_u32 s76, s76, s77")
                for u in range(20):
                    if mi == 1 and u >= 12:
                        A(f"s_add_u32 m0, s83, {768*(u-12)}")
                    else:
                        A(f"s_add_u32 m0, s78, {15360*mi+768*u}")
                    A(f"buffer_load_dwordx4 v{hAD}, {srdn}, s76 offen nt lds")
                    A(f"s_add_u32 s76, s76, {8*3072}")
            A("s_mov_b32 exec_hi, -1")
            for mi in range(2):
                A(f"s_waitcnt vmcnt({20*(1-mi)})")
                for tile in range(3):
                    for t in range(5):
                        for hf in range(2):
                            r = fWG + 4 * ((mi * 3 + tile) * 5 + t) + 2 * hf
                            if mi == 1 and t >= 3:
                                A(f"ds_read_b64_tr_b16 v[{r}:{r+1}], v{hAD+2} offset:{(32*(t-3)+4*hf)*96+32*tile}")
                            else:
                                A(f"ds_read_b64_tr_b16 v[{r}:{r+1}], v{hAD+1} offset:{15360*mi+(32*t+4*hf)*96+32*tile}")
            A("s_waitcnt lgkmcnt(0)")
            lds_inc(hZ, hONE, C_WSYNC2)
            lds_wait(hZ, hT, C_WSYNC2, 4, sleep=2)
        else:
            tr_addr(hAD + 1, 96, "s83")
            if NL > 4:
                lds_wait(hZ, hT, C_SFREE, 4, sleep=16)
            for mi, srdn in enumerate((S_WG, S_WU)):
                A(f"s_mul_i32 s76, {rH}, 96")
                A(f"s_mul_i32 s77, s3, {160*3072}")
                A("s_add_u32 s76, s76, s77")
                for (t0_, nt) in ((0, 3), (3, 2)):
                    A("s_mov_b32 exec_hi, 0xffff")
                    for u in range(4 * nt):
                        A(f"s_add_u32 m0, s83, {768*u}")
                        A(f"buffer_load_dwordx4 v{hAD}, {srdn}, s76 offen nt lds")
                        A(f"s_add_u32 s76, s76, {8*3072}")
                    A("s_mov_b32 exec_hi, -1")
                    A("s_waitcnt vmcnt(0)")
                    for tile in range(3):
                        for t in range(nt):
                            for hf in range(2):
                                r = fWG + 4 * ((mi * 3 + tile) * 5 + t0_ + t) + 2 * hf
                                A(f"ds_read_b64_tr_b16 v[{r}:{r+1}], v{hAD+1} offset:{(32*t+4*hf)*96+32*tile}")
                    A("s_waitcnt lgkmcnt(0)")
        if "b4" not in late:
            load_wd(hZ, hONE, hL16, hAD + 1)
    fXW, fAF, fRW, fRR, fAW, fA2, fHL = 5, 6, 7, 72, 73, 74, 75
    fD = 52
    fRR, fAW, fA2, fHL = 1, 2, 3, 4
    A("s_mul_i32 s75, s3, 1280")
    A("s_lshr_b32 s79, s3, 1")
    A("s_lshl_b32 s79, s79, 4")
    A(f"s_add_u32 s76, s79, {HB_OFF}")
    A("s_add_u32 s77, s76, 4096")
    A("s_add_u32 s78, s76, 8192")
    A(f"v_add_u32 v{fXW}, s75, v{hL4}")
    A(f"v_and_b32 v{hT}, 3, v0")
    A(f"v_lshrrev_b32 v{hT+1}, 4, v0")
    A(f"v_mul_u32_u24 v{fAF}, 1280, v{hT}")
    A(f"v_lshl_add_u32 v{fAF}, v{hT+1}, 4, v{fAF}")
    A("s_mul_i32 s79, s3, 320")
    A(f"v_add_u32 v{fAF}, s79, v{fAF}")
    A("s_mul_i32 s79, s3, 1536")
    A(f"v_add_u32 v{fRW}, s79, v{hL16}")
    A(f"v_and_b32 v{hT+2}, 15, v0")
    A(f"v_lshlrev_b32 v{fRR}, 4, v{hT+2}")
    A(f"v_lshl_add_u32 v{fRR}, v{hT+1}, 2, v{fRR}")
    A("s_lshl_b32 s79, s3, 8")
    A(f"v_add_u32 v{fRR}, s79, v{fRR}")
    A(f"v_mul_u32_u24 v{fAW}, 96, v{hT+1}")
    A(f"v_lshl_add_u32 v{fAW}, v{hT+2}, 1, v{fAW}")
    A("s_lshl_b32 s79, s3, 5")
    A(f"v_add_u32 v{fAW}, s79, v{fAW}")
    A(f"v_mul_u32_u24 v{fA2}, 96, v{hT}")
    A(f"v_lshl_add_u32 v{fA2}, v{hT+1}, 3, v{fA2}")
    A(f"v_lshlrev_b32 v{fHL}, 5, v0")
    A("s_bitcmp1_b32 s3, 0")
    A("s_cselect_b64 s[36:37], -1, 0")
    warm_code("L_tail_ffn", "L_end", hT + 5)
    warm_icache("ffn")
    A("s_barrier")
    if "b4" in late and not noweights:
        A(f"v_mov_b32 v{hX}, 0")
        A(f"v_mov_b32 v{hX+1}, 1")
        A(f"v_lshlrev_b32 v{hX+2}, 4, v0")
        load_wd(hX, hX + 1, hX + 2, hX + 3)
    A.label("L_tail_ffn")
    if pads:
        A.pads_begin("L_pad0_ffn", pads)
    stamp(3)
    lt = [f"buffer_load_dwordx4 v[{fA+4*u}:{fA+4*u+3}], v{fHL}, {S_WS}, s{76+(u>>1)} offen offset:{2048*(u&1)} sc1" for u in range(5)]
    if selpoll:
        poll_sel([([lt[u]], [fA + 4 * u + 2]) for u in range(5)], hNC, sleep=psleep)
    else:
        poll_tagged(lt, [fA + 4 * u + 2 for u in range(5)], hNC, hT, sleep=psleep)
    stamp(4)
    for u in range(5):
        A(f"v_cndmask_b32 v{hX+u}, v{fA+4*u}, v{fA+4*u+1}, s[36:37]")
    layernorm([hX + u for u in range(5)], hX, hF, hT)
    for u in range(5):
        A(f"ds_write_b32 v{fXW}, v{hX+u} offset:{L_XN+256*u}")
    A("s_waitcnt lgkmcnt(0)")
    A("s_barrier")
    for t in range(5):
        A(f"ds_read_b128 v[{fA+4*t}:{fA+4*t+3}], v{fAF} offset:{L_XN+64*t}")
    for t in range(5):
        A(f"s_waitcnt lgkmcnt({4-t})")
        for tile in range(6):
            r = fWG + 4 * (tile * 5 + t)
            c = "0" if t == 0 else f"v[{fD+4*tile}:{fD+4*tile+3}]"
            A(f"v_mfma_f32_16x16x32_bf16 v[{fD+4*tile}:{fD+4*tile+3}], v[{fA+4*t}:{fA+4*t+3}], v[{r}:{r+3}], {c}")
    A("s_mov_b64 exec, 0xffff")
    for tile in range(6):
        A(f"ds_write_b128 v{fRW}, v[{fD+4*tile}:{fD+4*tile+3}] offset:{L_RED+256*tile}")
    A("s_mov_b64 exec, -1")
    A("s_waitcnt lgkmcnt(0)")
    A("s_barrier")
    A("s_cmp_eq_u32 s3, 3")
    A("s_cbranch_scc1 L_noact")
    for ww in range(4):
        for gu in range(2):
            A(f"ds_read_b32 v{hF+4*gu+ww}, v{fRR} offset:{L_RED+1536*ww+768*gu}")
    A("s_waitcnt lgkmcnt(0)")
    for gu in range(2):
        f = hF + 4 * gu
        A(f"v_add_f32 v{f}, v{f}, v{f+1}")
        A(f"v_add_f32 v{f+2}, v{f+2}, v{f+3}")
        A(f"v_add_f32 v{f}, v{f}, v{f+2}")
    rnd(hF, hF)
    rnd(hF + 4, hF + 4)
    A(f"v_mul_f32 v{hF+1}, 0xbfb8aa3b, v{hF}")
    A(f"v_exp_f32 v{hF+1}, v{hF+1}")
    A(f"v_add_f32 v{hF+1}, 1.0, v{hF+1}")
    A(f"v_rcp_f32 v{hF+1}, v{hF+1}")
    A(f"v_mul_f32 v{hF}, v{hF}, v{hF+1}")
    rnd(hF, hF)
    A(f"v_mul_f32 v{hF}, v{hF}, v{hF+4}")
    A(f"v_cvt_pk_bf16_f32 v{hF}, v{hF}, v{hF}")
    A(f"ds_write_b16 v{fAW}, v{hF} offset:{L_OL}")
    A("s_waitcnt lgkmcnt(0)")
    A.label("L_noact")
    if ypc:
        A(f"v_and_b32 v{hT}, 16, v0")
        A(f"v_cmp_ne_u32 s[34:35], 0, v{hT}")
        A("v_cmp_lt_u32 s[38:39], 31, v0")
        A(f"v_lshlrev_b32 v{hGO}, 4, v0")
        for p in range(3):
            A(f"v_mov_b32 v{fD+4*p+3}, v{hNC}")
    elif fast2:
        A(f"v_and_b32 v{hT}, 16, v0")
        A(f"v_cmp_ne_u32 s[34:35], 0, v{hT}")
        A("v_cmp_lt_u32 s[38:39], 31, v0")
        A(f"v_lshrrev_b32 v{hT}, 5, v0")
        A(f"v_lshl_add_u32 v{hGO}, v{hT}, 9, v{hGO}")
        for p in range(5):
            A(f"v_mov_b32 v{fD+4*p+2}, v{hNC}")
            A(f"v_mov_b32 v{fD+4*p+3}, v{hNC+1}")
    A("s_barrier")
    for t in range(3):
        A(f"ds_read_b64 v[{fA+2*t}:{fA+2*t+1}], v{fA2} offset:{L_OL+32*t}")
    if ypc:
        fO = fD
        A("s_waitcnt lgkmcnt(0)")

        def quad_store(p):
            n = 4 if p < 2 else 2
            t_ = [fD2 + 16 * p + 4 * i for i in range(n)]
            for e in range(4):
                A(f"v_cndmask_b32 v{t_[0]+e}, v{t_[0]+e}, v{t_[1]+e}, s[34:35]")
                if n == 4:
                    A(f"v_cndmask_b32 v{t_[2]+e}, v{t_[2]+e}, v{t_[3]+e}, s[34:35]")
                    A(f"v_cndmask_b32 v{t_[0]+e}, v{t_[0]+e}, v{t_[2]+e}, s[38:39]")
            pack24(fO + 4 * p, t_[0])
            if n == 2:
                A("s_mov_b32 exec_hi, 0")
            A(f"buffer_store_dwordx4 v[{fO+4*p}:{fO+4*p+3}], v{hGO}, {S_WS}, s32 offen offset:{1024*p} sc1")
            if n == 2:
                A("s_mov_b32 exec_hi, -1")
        for nt in range(10):
            for t in range(3):
                r = fWD + 2 * (nt * 3 + t)
                c = "0" if t == 0 else f"v[{fD2+4*nt}:{fD2+4*nt+3}]"
                A(f"v_mfma_f32_16x16x16_bf16 v[{fD2+4*nt}:{fD2+4*nt+3}], v[{fA+2*t}:{fA+2*t+1}], v[{r}:{r+1}], {c}")
            if nt == 5:
                quad_store(0)
            if nt == 9:
                quad_store(1)
        quad_store(2)
    elif fast2:
        fO = fD
        A("s_waitcnt lgkmcnt(0)")

        def pair_store(p):
            ta, tb, o = fD2 + 8 * p, fD2 + 8 * p + 4, fO + 4 * p
            for e in range(2):
                A(f"v_cndmask_b32 v{ta+e}, v{ta+e}, v{ta+2+e}, s[34:35]")
                A(f"v_cndmask_b32 v{tb+e}, v{tb+e}, v{tb+2+e}, s[34:35]")
                A(f"v_cndmask_b32 v{o+e}, v{ta+e}, v{tb+e}, s[38:39]")
            A(f"buffer_store_dwordx4 v[{o}:{o+3}], v{hGO}, {S_WS}, {'s32' if p < 4 else 's33'} offen offset:{1024*(p&3)} sc1")
        for nt in range(10):
            for t in range(3):
                r = fWD + 2 * (nt * 3 + t)
                c = "0" if t == 0 else f"v[{fD2+4*nt}:{fD2+4*nt+3}]"
                A(f"v_mfma_f32_16x16x16_bf16 v[{fD2+4*nt}:{fD2+4*nt+3}], v[{fA+2*t}:{fA+2*t+1}], v[{r}:{r+1}], {c}")
            if nt >= 3 and nt % 2 == 1:
                pair_store((nt - 3) // 2)
        pair_store(4)
    else:
        for t in range(3):
            A(f"s_waitcnt lgkmcnt({2-t})")
            for nt in range(10):
                r = fWD + 2 * (nt * 3 + t)
                c = "0" if t == 0 else f"v[{fD2+4*nt}:{fD2+4*nt+3}]"
                A(f"v_mfma_f32_16x16x16_bf16 v[{fD2+4*nt}:{fD2+4*nt+3}], v[{fA+2*t}:{fA+2*t+1}], v[{r}:{r+1}], {c}")
        A("s_mov_b32 exec_hi, 0")
        for nt in range(10):
            split_halves(fD2 + 4 * nt)
            A(f"buffer_store_dwordx4 v[{fD2+4*nt}:{fD2+4*nt+3}], v{hGO}, {S_WS}, {'s32' if nt < 8 else 's33'} offen offset:{512*(nt&7)} sc1")
        A("s_mov_b32 exec_hi, -1")
    if pads:
        A.pads_end("L_padret_ffn")
    stamp(5)
    A.label("L_h_end")
    stamp(7)
    stamp_flush(32)
    A.label("L_end")
    A("s_endpgm")
    s = wrap(A.text(), HEADER + DOC, 256, 512, LDS_BYTES, 256, 102)
    s = s.replace("  .amdhsa_group_segment_fixed_size 0\n", "  .amdhsa_group_segment_fixed_size 0\n  .amdhsa_float_denorm_mode_32 3\n")
    return s


if __name__ == "__main__":
    kw = eval("dict(%s)" % (sys.argv[2] if len(sys.argv) > 2 else ""))
    open(sys.argv[1], "w").write(gen(**kw))
```

```python
import sys
sys.path.insert(0, "work")
from asmlib import *

HEADER = open("sequential_preLN__gqa_block_cached__swiglu_ffn__decode.s.ref").read().split("; Override launch")[0]
DOC = """; One persistent launch: 256 workgroups x 8 waves, one workgroup per CU (G = wg>>3, j = wg&7).  Generated by a script.
;  waves 0..3: q projection (rows split over the j = 6, 7 workgroups of a head), then stage the later weights as MFMA
;              fragments in registers and run the tail: j<5 wo block, j>=6 reducers (+ residual), j==5 SwiGLU FFN slice.
; Hand-offs between workgroups go through d_ws with write-through (sc1) stores and sc1 loads; every 16-byte granule
"""

QP_OFF = 0x000000
OP_OFF = 0x200000
YP_OFF = 0x400000
ZP_OFF = 0x500000
HB_OFF = 0x600000
CT_OFF = 0x610000
ST_OFF = 0x800000
WS_SIZE = 0x1000000
OOB = 0x80000000
TASKB = 4096 * 384

L_STAGE = 0
L_XN = 49152
L_QL = L_XN + 5120
L_OL = L_QL + 1536
L_RED = L_OL + 1536
L_CNT = L_RED + 6144
L_SBUF = L_CNT + 64
C_SYNC0, C_SYNC1, C_QRDY, C_SFREE, C_WSYNC, C_DRY, L_TAG, C_WSYNC2 = [L_CNT + x for x in (0, 4, 8, 12, 16, 20, 24, 32)]

LOG2E = "0x3fb8aa3b"
SCALE = "0x3d93cd3a"
EPS = "0x3727c5ac"
INV640 = "0x3acccccd"
F640 = "0x44200000"

S_WS, S_K, S_V, S_X, S_WQ, S_DBG, S_WO, S_WG, S_WU, S_WD, S_OUT = [f"s[{28+4*i}:{31+4*i}]" for i in range(11)]
sG, sJ, sB, sH = "s72", "s73", "s74", "s82"
DPP = "row_mask:0xf bank_mask:0xf"


def gen(D=2, S0=54, XF=16, PACE=3, NL=6, stamps=False, spin_g=2000000, spin_l=8000000, prio=True, psleep=1, qsleep=8,
        mix=True, nocompute=False, noweights=False, noqx=False, touch_op=False, touch_y=False, selpoll=True, ln1=True, satom=True, early=True, warm=True, fast2=True, pads=0, tk1=False, HS=0, opc=True, ypc=True, np4=True, NP=2, p67=True, wo2=False, xr=False, qdelay=0, qlight=True, LT=24, late='', tlb=False):
    NS = 8
    E = NS - D
    NL1 = min(NL, 4)
    assert NL <= 6
    LDS_BYTES = L_SBUF + 4 * 4 * 6144
    assert LDS_BYTES <= 163840
    NB = E + NL
    R0 = D * (1 + -(-NB // (2 * D)))
    assert (S0 - NS - NL) % D == 0
    nA = (S0 - NS - NL - R0) // D - 1
    POOL = 512 - 8 * S0 + XF
    assert XF % D == 0 and XF // D < nA and NL <= E
    A = Asm()

    def srd(name, ptr_lo, size, add=None):
        r = int(name[2:name.index(":")])
        if add is None:
            A(f"s_mov_b32 s{r}, s{ptr_lo}")
            A(f"s_mov_b32 s{r+1}, s{ptr_lo+1}")
        else:
            A(f"s_add_u32 s{r}, s{ptr_lo}, {add}")
            A(f"s_addc_u32 s{r+1}, s{ptr_lo+1}, 0")
        A(f"s_mov_b32 s{r+2}, {size}")
        A(f"s_mov_b32 s{r+3}, 0x20000")

    def stamp(k, which="main"):
        if stamps and (which == stamps or (which == "main" and stamps is True) or k == 0):
            A(f"s_memrealtime s[{84+2*k}:{85+2*k}]")

    def stamp_flush(vt):
        if not stamps:
            return
        A("s_waitcnt lgkmcnt(0)")
        for k in range(16):
            A(f"v_mov_b32 v{vt+k}, s{84+k}")
        A("s_lshl_b32 s81, s2, 3")
        A("s_add_u32 s81, s81, s3")
        A("s_lshl_b32 s81, s81, 6")
        A(f"s_add_u32 s81, s81, {ST_OFF}")
        A(f"v_mov_b32 v{vt+16}, 0")
        A("s_mov_b64 exec, 1")
        for k in range(4):
            A(f"buffer_store_dwordx4 v[{vt+4*k}:{vt+4*k+3}], v{vt+16}, {S_WS}, s81 offen offset:{16*k}")
        A("s_mov_b64 exec, -1")

    def allred16_32(op, x, t):
        A(f"v_mov_b32 v{t}, v{x}")
        A(f"v_permlane16_swap_b32 v{x}, v{t}")
        A(f"{op} v{x}, v{x}, v{t}")
        A(f"v_mov_b32 v{t}, v{x}")
        A(f"v_permlane32_swap_b32 v{x}, v{t}")
        A(f"{op} v{x}, v{x}, v{t}")

    def allred64(op, x, t):
        for pat in ("quad_perm:[1,0,3,2]", "quad_perm:[2,3,0,1]", "row_ror:4", "row_ror:8"):
            A(f"{op}_dpp v{x}, v{x}, v{x} {pat} {DPP}")
        allred16_32(op, x, t)

    def rnd(dst, src):
        A(f"v_cvt_pk_bf16_f32 v{dst}, v{src}, v{src}")
        A(f"v_lshlrev_b32 v{dst}, 16, v{dst}")

    def div640(x, t0, t1):
        A(f"v_mul_f32 v{t0}, {INV640}, v{x}")
        A(f"v_fma_f32 v{t1}, -v{t0}, s80, v{x}")
        A(f"v_mul_f32 v{t1}, {INV640}, v{t1}")
        A(f"v_add_f32 v{x}, v{t0}, v{t1}")

    def layernorm(src, dst, f, t):
        A(f"s_mov_b32 s80, {F640}")
        for u in range(5):
            A(f"v_lshlrev_b32 v{f+2*u}, 16, v{src[u]}")
            A(f"v_and_b32 v{f+2*u+1}, 0xffff0000, v{src[u]}")
        A(f"v_add_f32 v{t}, v{f}, v{f+1}")
        A(f"v_add_f32 v{t+1}, v{f+2}, v{f+3}")
        A(f"v_add_f32 v{t+2}, v{f+4}, v{f+5}")
        A(f"v_add_f32 v{t+3}, v{f+6}, v{f+7}")
        A(f"v_add_f32 v{t+4}, v{f+8}, v{f+9}")
        A(f"v_add_f32 v{t}, v{t}, v{t+1}")
        A(f"v_add_f32 v{t+2}, v{t+2}, v{t+3}")
        A(f"v_add_f32 v{t}, v{t}, v{t+4}")
        A(f"v_add_f32 v{t}, v{t}, v{t+2}")
        if ln1:
            A(f"v_readfirstlane_b32 s79, v{f}")
            A(f"v_subrev_f32 v{t+2}, s79, v{f}")
            A(f"v_mul_f32 v{t+1}, v{t+2}, v{t+2}")
            for i in range(1, 10):
                A(f"v_subrev_f32 v{t+2+(i&1)}, s79, v{f+i}")
                A(f"v_fmac_f32 v{t+1}, v{t+2+(i&1)}, v{t+2+(i&1)}")
            for pat in ("quad_perm:[1,0,3,2]", "quad_perm:[2,3,0,1]", "row_ror:4", "row_ror:8"):
                for x in (t, t + 1):
                    A(f"v_add_f32_dpp v{x}, v{x}, v{x} {pat} {DPP}")
            for sw in ("v_permlane16_swap_b32", "v_permlane32_swap_b32"):
                for x in (t, t + 1):
                    A(f"v_mov_b32 v{x+2}, v{x}")
                for x in (t, t + 1):
                    A(f"{sw} v{x}, v{x+2}")
                for x in (t, t + 1):
                    A(f"v_add_f32 v{x}, v{x}, v{x+2}")
            div640(t, t + 2, t + 3)
            div640(t + 1, t + 4, t + 5)
            A(f"v_subrev_f32 v{t+2}, s79, v{t}")
            A(f"v_fma_f32 v{t+1}, -v{t+2}, v{t+2}, v{t+1}")
            A(f"v_max_f32 v{t+1}, 0, v{t+1}")
        else:
            allred64("v_add_f32", t, t + 1)
            div640(t, t + 1, t + 2)
            A(f"v_sub_f32 v{t+2}, v{f}, v{t}")
            A(f"v_mul_f32 v{t+1}, v{t+2}, v{t+2}")
            for i in range(1, 10):
                A(f"v_sub_f32 v{t+2+(i&1)}, v{f+i}, v{t}")
                A(f"v_fmac_f32 v{t+1}, v{t+2+(i&1)}, v{t+2+(i&1)}")
            allred64("v_add_f32", t + 1, t + 2)
            div640(t + 1, t + 2, t + 3)
        rnd(t, t)
        rnd(t + 1, t + 1)
        A(f"v_add_f32 v{t+1}, {EPS}, v{t+1}")
        rnd(t + 1, t + 1)
        A(f"v_sqrt_f32 v{t+1}, v{t+1}")
        rnd(t + 1, t + 1)
        A(f"v_rcp_f32 v{t+2}, v{t+1}")
        for u in range(5):
            a, b = f + 2 * u, f + 2 * u + 1
            A(f"v_sub_f32 v{a}, v{a}, v{t}")
            A(f"v_sub_f32 v{b}, v{b}, v{t}")
            A(f"v_cvt_pk_bf16_f32 v{b}, v{a}, v{b}")
            A(f"v_lshlrev_b32 v{a}, 16, v{b}")
            A(f"v_and_b32 v{b}, 0xffff0000, v{b}")
            A(f"v_mul_f32 v{t+3}, v{a}, v{t+2}")
            A(f"v_mul_f32 v{t+4}, v{b}, v{t+2}")
            A(f"v_fma_f32 v{a}, -v{t+3}, v{t+1}, v{a}")
            A(f"v_fma_f32 v{b}, -v{t+4}, v{t+1}, v{b}")
            A(f"v_fmac_f32 v{t+3}, v{a}, v{t+2}")
            A(f"v_fmac_f32 v{t+4}, v{b}, v{t+2}")
            A(f"v_cvt_pk_bf16_f32 v{dst+u}, v{t+3}, v{t+4}")

    def poll_tagged(loads, tagpairs, tag, tmp, sleep=0, mask=None):
        Lp, Ld = A.newlabel("L_poll"), A.newlabel("L_pdone")
        A(f"s_mov_b32 s81, {spin_g}")
        if mask is not None:
            A(f"s_mov_b64 exec, {mask}")
        A.label(Lp)
        for l in loads:
            A(l)
        A("s_waitcnt vmcnt(0)")
        if len(tagpairs) == 1:
            r = tagpairs[0]
            A(f"v_cmp_ne_u64 vcc, v[{r}:{r+1}], v[{tag}:{tag+1}]")
        else:
            for i, r in enumerate(tagpairs):
                if i == 0:
                    A(f"v_xor_b32 v{tmp}, v{r}, v{tag}")
                    A(f"v_xor_b32 v{tmp+1}, v{r+1}, v{tag+1}")
                else:
                    A(f"v_xor_b32 v{tmp+2}, v{r}, v{tag}")
                    A(f"v_xor_b32 v{tmp+3}, v{r+1}, v{tag+1}")
                    A(f"v_or3_b32 v{tmp+(i&1)}, v{tmp+(i&1)}, v{tmp+2}, v{tmp+3}")
            A(f"v_or_b32 v{tmp}, v{tmp}, v{tmp+1}")
            A(f"v_cmp_ne_u32 vcc, 0, v{tmp}")
        A(f"s_cbranch_vccz {Ld}")
        if sleep:
            A(f"s_sleep {sleep}")
        A("s_sub_u32 s81, s81, 1")
        A("s_cmp_lg_u32 s81, 0")
        A(f"s_cbranch_scc1 {Lp}")
        A.label(Ld)
        if mask is not None:
            A("s_mov_b64 exec, -1")

    def poll_sel(groups, tag, sleep=0):
        Lp, Ld = A.newlabel("L_poll"), A.newlabel("L_pdone")
        A.pads_pause(True)
        A(f"s_mov_b32 s81, {spin_g}")
        for loads, _ in groups:
            for l in loads:
                A(l)
        A.label(Lp)
        A("s_waitcnt vmcnt(0)")
        for i, (_, pairs) in enumerate(groups):
            m = f"s[{4+2*i}:{5+2*i}]"
            for k, r in enumerate(pairs):
                if k == 0:
                    A(f"v_cmp_ne_u64 {m}, v[{r}:{r+1}], v[{tag}:{tag+1}]")
                else:
                    A(f"v_cmp_ne_u64 vcc, v[{r}:{r+1}], v[{tag}:{tag+1}]")
                    A(f"s_or_b64 {m}, {m}, vcc")
        A("s_or_b64 s[38:39], s[4:5], s[6:7]")
        for i in range(2, len(groups)):
            A(f"s_or_b64 s[38:39], s[38:39], s[{4+2*i}:{5+2*i}]")
        A(f"s_cbranch_scc0 {Ld}")
        if sleep:
            A(f"s_sleep {sleep}")
        for i, (loads, _) in enumerate(groups):
            A(f"s_mov_b64 exec, s[{4+2*i}:{5+2*i}]")
            for l in loads:
                A(l)
        A("s_mov_b64 exec, -1")
        A("s_sub_u32 s81, s81, 1")
        A("s_cmp_lg_u32 s81, 0")
        A(f"s_cbranch_scc1 {Lp}")
        A("s_waitcnt vmcnt(0)")
        A.label(Ld)
        A.pads_pause(False)

    def lds_wait(addr_v, val_v, off, target, sleep=1):
        Lp, Ld = A.newlabel("L_lw"), A.newlabel("L_lwd")
        A(f"s_mov_b32 s81, {spin_l}")
        A.label(Lp)
        A(f"ds_read_b32 v{val_v}, v{addr_v} offset:{off}")
        A("s_waitcnt lgkmcnt(0)")
        A(f"v_readfirstlane_b32 s79, v{val_v}")
        A(f"s_cmp_ge_u32 s79, {target}")
        A(f"s_cbranch_scc1 {Ld}")
        A(f"s_sleep {sleep}")
        A("s_sub_u32 s81, s81, 1")
        A("s_cmp_lg_u32 s81, 0")
        A(f"s_cbranch_scc1 {Lp}")
        A.label(Ld)

    def lds_inc(zero_v, one_v, off):
        A("s_mov_b64 exec, 1")
        A(f"ds_add_u32 v{zero_v}, v{one_v} offset:{off}")
        A("s_mov_b64 exec, -1")

    A("s_cmp_ge_u32 s2, 256")
    A("s_cbranch_scc1 L_end")
    A("s_load_dwordx16 s[4:19], s[0:1], 0")
    A("s_load_dwordx8 s[20:27], s[0:1], 64")
    A("v_lshrrev_b32 v1, 6, v0")
    A("v_and_b32 v0, 63, v0")
    A("v_readfirstlane_b32 s3, v1")
    A(f"s_lshr_b32 {sG}, s2, 3")
    A(f"s_and_b32 {sJ}, s2, 7")
    A(f"s_and_b32 {sB}, s3, 3")
    if xr:
        A(f"s_lshl_b32 {sH}, {sJ}, 2")
        A(f"s_add_u32 {sH}, {sH}, {sB}")
        A(f"s_add_u32 {sH}, {sH}, {sG}")
        A(f"s_and_b32 {sH}, {sH}, 31")
    elif mix:
        A(f"s_mul_i32 {sH}, {sB}, {sJ}")
        A(f"s_add_u32 {sH}, {sH}, {sG}")
        A(f"s_and_b32 {sH}, {sH}, 31")
    else:
        A(f"s_mov_b32 {sH}, {sG}")
    if stamps:
        for k in range(16):
            A(f"s_mov_b32 s{84+k}, 0")
    A("s_cmp_lt_u32 s3, 4")
    A("s_cbranch_scc1 L_helper")

    vOFF, vZ = 1, 2
    T = 3
    vTAG = 8
    vM, vL = 11, 12
    vAL, vP = 14, 16
    vU = 18
    vLB = 22
    vQ = 24
    vACC = 36
    vTK = 60
    vSLOT = 64
    sOFF, sCT, sOP = "s75", "s76", "s83"
    sSL = 60

    kreg = lambda slot, i: vSLOT + slot * 24 + 4 * i
    vreg = lambda slot, i: vSLOT + slot * 24 + 12 + 4 * i
    vmq = []

    def vwait(tag, first=False):
        idx = [k for k, t in enumerate(vmq) if t == tag]
        if not idx:
            return
        i = idx[2] if first else idx[-1]
        n = len(vmq) - 1 - i
        assert n <= 63
        A(f"s_waitcnt vmcnt({n})")
        del vmq[:i + 1]

    def issueK(slot, soff):
        for i in range(3):
            r = kreg(slot, i)
            A(f"buffer_load_dwordx4 v[{r}:{r+3}], v{vOFF}, {S_K}, {soff} offen offset:{128*i} nt")
            vmq.append(("K", slot))

    def issueV(slot, soff):
        for i in range(3):
            r = vreg(slot, i)
            A(f"buffer_load_dwordx4 v[{r}:{r+3}], v{vOFF}, {S_V}, {soff} offen offset:{128*i} nt")
            vmq.append(("V", slot))

    def atomic(slot):
        A(f"v_mov_b32 v{vTK+slot}, 1")
        A("s_mov_b64 exec, 1")
        A(f"buffer_atomic_add v{vTK+slot}, v{vZ}, {S_WS}, {sCT} offen sc0")
        A("s_mov_b64 exec, -1")
        vmq.append(("T", slot))

    def consumeK(slot, mid=None):
        t0, t1, t2, t3, t4 = T, T + 1, T + 2, T + 3, T + 4
        k = kreg(slot, 0)
        if nocompute:
            for e in range(0, 12, 4):
                A(f"v_xor_b32 v{vL}, v{vL}, v{k+e}")
            if mid:
                mid()
            return
        for e in range(6):
            A(f"v_dot2_f32_bf16 v{t0}, v{k+e}, v{vQ+e}, " + ("0" if e == 0 else f"v{t0}"))
            A(f"v_dot2_f32_bf16 v{t1}, v{k+6+e}, v{vQ+6+e}, " + ("0" if e == 0 else f"v{t1}"))
        if mid:
            mid()
        A(f"v_add_f32 v{t0}, v{t0}, v{t1}")
        A(f"v_add_f32_dpp v{t0}, v{t0}, v{t0} quad_perm:[1,0,3,2] {DPP}")
        A(f"v_add_f32_dpp v{t0}, v{t0}, v{t0} quad_perm:[2,3,0,1] {DPP}")
        A(f"v_add_f32_dpp v{t0}, v{t0}, v{t0} row_half_mirror {DPP}")
        rnd(t1, t0)
        A(f"v_mul_f32 v{t1}, {SCALE}, v{t1}")
        rnd(t1, t1)
        A(f"v_max_f32 v{t2}, v{vM}, v{t1}")
        A(f"v_sub_f32 v{t3}, v{vM}, v{t2}")
        A(f"v_sub_f32 v{t4}, v{t1}, v{t2}")
        A(f"v_mul_f32 v{t3}, {LOG2E}, v{t3}")
        A(f"v_mul_f32 v{t4}, {LOG2E}, v{t4}")
        A(f"v_exp_f32 v{vAL}, v{t3}")
        A(f"v_exp_f32 v{vP}, v{t4}")
        A(f"v_mov_b32 v{vM}, v{t2}")
        A(f"v_fma_f32 v{vL}, v{vL}, v{vAL}, v{vP}")
        for a in range(12):
            r = vACC + 2 * a
            A(f"v_pk_mul_f32 v[{r}:{r+1}], v[{r}:{r+1}], v[{vAL}:{vAL+1}] op_sel_hi:[1,0]")

    def consumeV(slot):
        v = vreg(slot, 0)
        if nocompute:
            for e in range(0, 12, 4):
                A(f"v_xor_b32 v{vL}, v{vL}, v{v+e}")
            return
        for a in range(12):
            u = vU + 2 * (a & 1)
            r = vACC + 2 * a
            A(f"v_lshlrev_b32 v{u}, 16, v{v+a}")
            A(f"v_and_b32 v{u+1}, 0xffff0000, v{v+a}")
            A(f"v_pk_fma_f32 v[{r}:{r+1}], v[{u}:{u+1}], v[{vP}:{vP+1}], v[{r}:{r+1}] op_sel_hi:[1,0,1]")

    stamp(0)
    A(f"v_lshrrev_b32 v{T}, 3, v0")
    A(f"v_mul_u32_u24 v{T}, 384, v{T}")
    A(f"v_and_b32 v{T+1}, 7, v0")
    A(f"v_lshl_add_u32 v{vOFF}, v{T+1}, 4, v{T}")
    A(f"s_lshl_b32 s77, {sB}, 5")
    A(f"s_add_u32 s77, s77, {sH}")
    A(f"s_mul_i32 s78, s77, {TASKB}")
    A(f"s_mul_i32 {sOFF}, {sJ}, 3072")
    A("s_waitcnt lgkmcnt(0)")
    srd(S_K, 6, TASKB, "s78")
    srd(S_V, 8, TASKB, "s78")

    def s_setup():
        A(f"v_mov_b32 v{vZ}, 0")
        A(f"s_lshl_b32 {sCT}, s77, 8")
        A(f"s_add_u32 {sCT}, {sCT}, {CT_OFF}")
        A(f"s_lshl_b32 {sOP}, s77, 3")
        A(f"s_add_u32 {sOP}, {sOP}, {sJ}")
        A(f"s_lshl_b32 {sOP}, {sOP}, 11")
        A(f"s_add_u32 {sOP}, {sOP}, {OP_OFF}")
        A(f"s_mul_i32 s77, {sB}, {4*6144}")
        A(f"s_add_u32 s77, s77, {L_SBUF}")
        A(f"s_mul_i32 s80, {sB}, 12288")
        A(f"v_lshlrev_b32 v{vLB+1}, 4, v0")
        A(f"v_add_u32 v{vLB}, s77, v{vLB+1}")
        A(f"v_add_u32 v{vLB+1}, s80, v{vLB+1}")
        srd(S_WS, 26, WS_SIZE)
        A(f"s_add_u32 s66, s26, {sCT}")
        A("s_addc_u32 s67, s27, 0")
        A("s_barrier")
    if not early:
        s_setup()
    last = lambda n: ("V", n) if n < NS else ("L", n - NS)
    for n in range(NS + NL):
        if n >= PACE:
            vwait(last(n - PACE))
            if n - PACE + 2 < 8:
                stamp(n - PACE + 2, "start")
        if n < NS:
            issueK(n, sOFF)
            issueV(n, sOFF)
        else:
            li = n - NS
            if li == (0 if np4 else 4):
                lds_wait(vZ, T, C_SYNC1, 4)
            for kv in range(2):
                for i in range(3):
                    A(f"s_add_u32 m0, {'s77' if li < 4 else 's80'}, {(li&3)*6144 + (3*kv+i)*1024 - 128*i}")
                    A(f"buffer_load_dwordx4 v{vOFF}, {S_K if kv == 0 else S_V}, {sOFF} offen offset:{128*i} nt lds")
                    vmq.append(("L", n - NS))
        A(f"s_add_u32 {sOFF}, {sOFF}, {8*3072}")
        if n == PACE - 1 and early:
            s_setup()
        if n == PACE - 1:
            A(f"v_mov_b32 v{vM}, 0xff7fffff")
            A(f"v_mov_b32 v{vL}, 0")
            for a in range(24):
                A(f"v_mov_b32 v{vACC+a}, 0")
    stamp(1)
    lds_wait(vZ, T, C_QRDY, 4)
    A(f"v_and_b32 v{T}, 7, v0")
    A(f"v_lshlrev_b32 v{T}, 4, v{T}")
    A(f"s_mul_i32 s78, {sB}, 384")
    A(f"v_add_u32 v{T}, s78, v{T}")
    for i in range(3):
        A(f"ds_read_b128 v[{vQ+4*i}:{vQ+4*i+3}], v{T} offset:{L_QL+128*i}")
    A(f"ds_read_b64 v[{vTAG}:{vTAG+1}], v{vZ} offset:{L_TAG}")
    A("s_waitcnt lgkmcnt(0)")
    if touch_op:
        A(f"v_lshlrev_b32 v{T}, 4, v0")
        A(f"buffer_store_dwordx4 v[{vACC}:{vACC+3}], v{T}, {S_WS}, {sOP} offen sc1")
        A(f"buffer_store_dwordx4 v[{vACC}:{vACC+3}], v{T}, {S_WS}, {sOP} offen offset:1024 sc1")
    stamp(2)

    def static_step(slot, with_atomic=False, save=False):
        vwait(("K", slot))

        def mid():
            if with_atomic:
                atomic(slot)
            issueK(slot, sOFF)
        consumeK(slot, mid)
        vwait(("V", slot), first=True)
        consumeV(slot)
        issueV(slot, sOFF)
        if save:
            A(f"s_mov_b32 s{sSL+slot}, {sOFF}")
        A(f"s_add_u32 {sOFF}, {sOFF}, {8*3072}")

    for s in range(D):
        static_step(s)
    backlog = [("reg", D + e) for e in range(E)] + [("lds", i) for i in range(NL)]
    nring = R0 - D
    done = 0
    for r in range(nring + 1):
        upto = len(backlog) if r == nring else (len(backlog) * (r + 1) + nring) // (nring + 1)
        while done < upto:
            kind, x = backlog[done]
            done += 1
            if kind == "reg":
                vwait(("K", x))
                consumeK(x)
                vwait(("V", x))
                consumeV(x)
                i = x - D
                if i < NL:
                    vwait(("L", i))
                    for k in range(6):
                        rr = vSLOT + x * 24 + 4 * k
                        A(f"ds_read_b128 v[{rr}:{rr+3}], v{vLB+(i>>2)} offset:{(i&3)*6144+1024*k}")
            else:
                A("s_waitcnt lgkmcnt(0)")
                if x == 0:
                    pass
                consumeK(D + x)
                consumeV(D + x)
        if r < nring:
            static_step(r % D)
    A(f"v_mov_b32 v{T}, 1")
    lds_inc(vZ, T, C_SFREE)
    if xr:
        A(f"s_sub_u32 s68, {sH}, {sB}")
        A("s_sub_u32 s68, s68, 20")
        A("s_and_b32 s68, s68, 31")
        A("s_lshr_b32 s68, s68, 2")
        A(f"s_cmp_eq_u32 s68, {sJ}")
    else:
        A("s_mov_b32 s68, 5")
        A(f"s_cmp_eq_u32 {sJ}, 5")
    A(f"s_cselect_b32 s77, {nA - XF // D}, {nA}")
    A(f"s_add_u32 s68, s68, {8*(S0-XF)}")
    A.label("L_loopA")
    shape = list(vmq)
    for s in range(D):
        static_step(s)
    assert vmq == shape, (vmq, shape)
    A("s_sub_u32 s77, s77, 1")
    A("s_cmp_lg_u32 s77, 0")
    A("s_cbranch_scc1 L_loopA")
    def satomic():
        A(f"s_mov_b32 s65, {1 if tk1 else D}")
        A("s_atomic_add s65, s[66:67], 0 glc")

    PF = POOL - HS
    sMK = lambda s: f"s[{40+2*s}:{41+2*s}]"
    if HS:
        A("s_mov_b32 s48, -1")
        A("s_mov_b32 s49, 0")
        A("s_mov_b32 s50, 0")
        A("s_mov_b32 s51, -1")
        for s in range(D):
            A(f"s_mov_b64 {sMK(s)}, -1")
    trig = any(k in late for k in ("wo", "wd", "gu"))
    if trig:
        A(f"s_mov_b32 s69, {POOL - LT}")
        A("v_mov_b32 v10, 1")
    if not tk1:
        satomic()
    for s in range(D):
        if tk1 and s == D - 1:
            satomic()
        static_step(s, save=True)
    stamp(3)
    A.label("L_loopB")
    shape = list(vmq)
    for s in range(D):
        A(f"s_cmp_ge_u32 s{sSL+s}, {TASKB}")
        A("s_cbranch_scc1 L_s_done")
        if not tk1 and s == 0:
            A("s_waitcnt lgkmcnt(0)")
            A("s_mov_b32 s64, s65")
            satomic()
        if HS:
            A(f"s_mov_b64 exec, {sMK(s)}")
        vwait(("K", s))

        def mid(s=s):
            if tk1:
                A("s_waitcnt lgkmcnt(0)")
                A("s_mov_b32 s78, s65")
                satomic()
            else:
                A(f"s_add_u32 s78, s64, {s}")
            if trig and s == 0:
                lab = A.newlabel("L_nodry")
                A("s_cmp_lt_u32 s78, s69")
                A(f"s_cbranch_scc1 {lab}")
                lds_inc(vZ, 10, C_DRY)
                A("s_mov_b32 s69, -1")
                A.label(lab)
            if HS:
                A(f"s_sub_u32 s79, s78, {PF}")
                A("s_bitcmp1_b32 s79, 0")
                A("s_cselect_b64 s[52:53], s[50:51], s[48:49]")
                A("s_lshr_b32 s79, s79, 1")
                A(f"s_add_u32 s79, s79, {PF}")
                A(f"s_cmp_lt_u32 s78, {PF}")
                A("s_cselect_b32 s78, s78, s79")
                A("s_cselect_b64 s[52:53], -1, s[52:53]")
            A(f"s_min_u32 s78, s78, {POOL}")
            A("s_lshl_b32 s79, s78, 3")
            A("s_add_u32 s79, s79, s68")
            A(f"s_add_u32 s80, s78, {8*S0-XF}")
            A(f"s_cmp_lt_u32 s78, {XF}")
            A("s_cselect_b32 s78, s79, s80")
            A(f"s_mul_i32 s{sSL+s}, s78, 3072")
            if HS:
                A("s_mov_b64 exec, s[52:53]")
            issueK(s, f"s{sSL+s}")
            if HS:
                A(f"s_mov_b64 exec, {sMK(s)}")
        consumeK(s, mid)
        vwait(("V", s), first=True)
        consumeV(s)
        if HS:
            A("s_mov_b64 exec, s[52:53]")
            A(f"s_mov_b64 {sMK(s)}, s[52:53]")
        issueV(s, f"s{sSL+s}")
    assert vmq == shape, (vmq, shape)
    A("s_branch L_loopB")
    A.label("L_s_done")
    A("s_mov_b64 exec, -1")
    stamp(4)
    t0, t1 = T, T + 1
    A(f"v_max_f32_dpp v{t0}, v{vM}, v{vM} row_ror:8 {DPP}")
    allred16_32("v_max_f32", t0, t1)
    A(f"v_sub_f32 v{t1}, v{vM}, v{t0}")
    A(f"v_mul_f32 v{t1}, {LOG2E}, v{t1}")
    A(f"v_exp_f32 v{vAL}, v{t1}")
    A(f"v_mul_f32 v{vL}, v{vL}, v{vAL}")
    for a in range(12):
        r = vACC + 2 * a
        A(f"v_pk_mul_f32 v[{r}:{r+1}], v[{r}:{r+1}], v[{vAL}:{vAL+1}] op_sel_hi:[1,0]")
    A(f"v_add_f32_dpp v{vL}, v{vL}, v{vL} row_ror:8 {DPP}")
    allred16_32("v_add_f32", vL, t1)
    for a in range(12):
        A(f"v_permlane32_swap_b32 v{vACC+a}, v{vACC+12+a}")
    for a in range(12):
        A(f"v_add_f32 v{vACC+a}, v{vACC+a}, v{vACC+12+a}")
    for a in range(6):
        A(f"v_permlane16_swap_b32 v{vACC+a}, v{vACC+6+a}")
    for a in range(6):
        A(f"v_add_f32 v{vACC+a}, v{vACC+a}, v{vACC+6+a}")
    A(f"v_and_b32 v{t1}, 8, v0")
    A(f"v_cmp_ne_u32 vcc, 0, v{t1}")
    if opc:
        O0, O1 = vQ, vQ + 4
        for r in range(3):
            A(f"v_cndmask_b32 v{vU+r}, v{vACC+3+r}, v{vACC+r}, vcc")
            A(f"v_cndmask_b32 v{O0+r}, v{vACC+r}, v{vACC+3+r}, vcc")
        A(f"v_mov_b32 v{O0+3}, v{vTAG}")
        for r in range(3):
            A(f"v_add_f32_dpp v{O0+r}, v{vU+r}, v{O0+r} row_ror:8 {DPP}")
        A(f"v_lshlrev_b32 v{t1}, 4, v0")
        A(f"buffer_store_dwordx4 v[{O0}:{O0+3}], v{t1}, {S_WS}, {sOP} offen sc1")
        A(f"v_mov_b32 v{O1}, v{t0}")
        A(f"v_mov_b32 v{O1+1}, v{vL}")
        A(f"v_mov_b32 v{O1+2}, v{vTAG}")
        A(f"v_mov_b32 v{O1+3}, v{vTAG+1}")
        A("s_mov_b64 exec, 1")
        A(f"buffer_store_dwordx4 v[{O1}:{O1+3}], v{t1}, {S_WS}, {sOP} offen offset:1024 sc1")
        A("s_mov_b64 exec, -1")
    else:
        O0, O1 = vQ, vQ + 4
        dst = [O0, O0 + 1, O1]
        for r in range(3):
            A(f"v_cndmask_b32 v{vU+r}, v{vACC+3+r}, v{vACC+r}, vcc")
            A(f"v_cndmask_b32 v{dst[r]}, v{vACC+r}, v{vACC+3+r}, vcc")
        A(f"v_and_b32 v{t1}, 1, v0")
        A(f"v_cmp_ne_u32 vcc, 0, v{t1}")
        for r in range(3):
            A(f"v_add_f32_dpp v{dst[r]}, v{vU+r}, v{dst[r]} row_ror:8 {DPP}")
        A(f"v_cndmask_b32 v{O1+1}, v{t0}, v{vL}, vcc")
        for o in (O0, O1):
            A(f"v_mov_b32 v{o+2}, v{vTAG}")
            A(f"v_mov_b32 v{o+3}, v{vTAG+1}")
        A(f"v_lshlrev_b32 v{t1}, 4, v0")
        A(f"buffer_store_dwordx4 v[{O0}:{O0+3}], v{t1}, {S_WS}, {sOP} offen sc1")
        A(f"buffer_store_dwordx4 v[{O1}:{O1+3}], v{t1}, {S_WS}, {sOP} offen offset:1024 sc1")
    stamp(5)
    A("s_barrier")
    stamp_flush(36)
    A("s_endpgm")

    A.label("L_helper")
    stamp(0)
    if prio:
        A("s_setprio 2")
    hZ, hONE, hL4, hL16 = 1, 2, 3, 4
    hAD = 5
    hX = 8
    hNC = 14
    hF = 16
    hT = 26
    hA = 32
    hD = 80
    hB = 92
    hG = 128
    hW1 = 160
    A(f"v_mov_b32 v{hZ}, 0")
    A(f"v_mov_b32 v{hONE}, 1")
    A(f"v_lshlrev_b32 v{hL4}, 2, v0")
    A(f"v_lshlrev_b32 v{hL16}, 4, v0")
    if np4:
        def get_tag(sfx):
            A(f"s_mov_b32 s81, {spin_g}")
            A.label(f"L_gf_{sfx}")
            A(f"v_readfirstlane_b32 s79, v{hNC}")
            A(f"v_readfirstlane_b32 s80, v{hNC+1}")
            A("s_cmp_eq_u32 s79, 0")
            A("s_cselect_b32 s80, 0, s80")
            A("s_cmp_lg_u32 s80, 0")
            A(f"s_cbranch_scc1 L_gfd_{sfx}")
            A("s_sleep 8")
            A(f"buffer_load_dwordx2 v[{hNC}:{hNC+1}], v{hZ}, {S_DBG}, 0 offen sc1")
            A("s_waitcnt vmcnt(0)")
            A("s_sub_u32 s81, s81, 1")
            A("s_cmp_lg_u32 s81, 0")
            A(f"s_cbranch_scc1 L_gf_{sfx}")
            A.label(f"L_gfd_{sfx}")
        for k in range(4):
            A(f"v_mov_b32 v{hG+k}, 0")
        A(f"ds_write_b128 v{hZ}, v[{hG}:{hG+3}] offset:{L_CNT}")
        A(f"ds_write_b64 v{hZ}, v[{hG}:{hG+1}] offset:{L_CNT+16}")
        A(f"ds_write_b32 v{hZ}, v{hG} offset:{L_CNT+32}")
        if NP == 4:
            A(f"s_bitcmp1_b32 {sJ}, 0")
            A("s_cbranch_scc1 L_q_consumer")
        elif p67:
            A(f"s_cmp_lt_u32 {sJ}, 6")
            A("s_cbranch_scc1 L_q_consumer")
        else:
            A(f"s_and_b32 s77, {sJ}, 3")
            A("s_cmp_lg_u32 s77, 2")
            A("s_cbranch_scc1 L_q_consumer")
        for i in range(3):
            A(f"v_add_u32 v{hT}, {64*i}, v0")
            A(f"v_mul_u32_u24 v{hT+1}, 2731, v{hT}")
            A(f"v_lshrrev_b32 v{hT+1}, 16, v{hT+1}")
            A(f"v_mul_u32_u24 v{hT+2}, 24, v{hT+1}")
            A(f"v_sub_u32 v{hT}, v{hT}, v{hT+2}")
            A(f"v_mul_u32_u24 v{hT+1}, 12288, v{hT+1}")
            A(f"v_lshl_add_u32 v{hAD+i}, v{hT}, 4, v{hT+1}")
        A("s_mul_i32 s75, s3, 1280")
        if NP == 2 and p67:
            A(f"s_and_b32 s33, {sJ}, 1")
        else:
            A(f"s_lshr_b32 s33, {sJ}, {1 if NP == 4 else 2}")
        A(f"s_mul_i32 s76, s33, {(640//NP)*12288}")
        A(f"s_mul_i32 s77, {sG}, 384")
        A("s_add_u32 s76, s76, s77")
        A(f"s_mul_i32 s77, s3, {8*12288}")
        A("s_add_u32 s76, s76, s77")
        A("s_mul_i32 s32, s3, 3072")
        A(f"s_add_u32 s83, s32, {L_SBUF}")
        A("s_waitcnt lgkmcnt(0)")
        srd(S_X, 4, 5120)
        srd(S_WQ, 10, 640 * 6144 * 2)
        for u in range(5):
            A(f"buffer_load_dword v{hX+u}, v{hL4}, {S_X}, s75 offen offset:{256*u}")
        NBLK = 20 // NP
        for blk in range(NBLK):
            for i in range(3):
                if NP == 4:
                    A(f"s_add_u32 m0, s83, {blk*4*3072 + 1024*i}")
                elif blk < 4:
                    A(f"s_add_u32 m0, s32, {L_STAGE + blk*4*3072 + 1024*i}")
                else:
                    A(f"s_add_u32 m0, s83, {(blk-4)*4*3072 + 1024*i}")
                A(f"buffer_load_dwordx4 v{hAD+i}, {S_WQ}, s76 offen nt lds")
            A(f"s_add_u32 s76, s76, {32*12288}")
        srd(S_DBG, 24, 256)
        srd(S_WS, 26, WS_SIZE)
        A("s_lshl_b32 s76, s3, 5")
        A(f"s_add_u32 s76, s76, {sG}")
        A("s_lshl_b32 s76, s76, 8")
        A(f"s_add_u32 s76, s76, {CT_OFF}")
        A("s_cmp_eq_u32 s33, 0")
        A(f"s_cselect_b32 s76, s76, {OOB}")
        A("s_mov_b64 exec, 1")
        A(f"buffer_store_dword v{hZ}, v{hZ}, {S_WS}, s76 offen sc1")
        A("s_mov_b64 exec, -1")
        A("s_barrier")
        A(f"s_waitcnt vmcnt({3*NBLK+1})")
        stamp(1, "start")
        layernorm([hX + u for u in range(5)], hX, hF, hT)
        A(f"v_add_u32 v{hAD}, s75, v{hL4}")
        for u in range(5):
            A(f"ds_write_b32 v{hAD}, v{hX+u} offset:{L_XN+256*u}")
        A(f"buffer_load_dwordx2 v[{hNC}:{hNC+1}], v{hZ}, {S_DBG}, 0 offen sc1")
        A(f"v_lshrrev_b32 v{hT}, 4, v0")
        A(f"v_and_b32 v{hT+1}, 3, v0")
        A(f"v_mul_u32_u24 v{hAD}, 1280, v{hT+1}")
        A(f"v_lshl_add_u32 v{hAD}, v{hT}, 4, v{hAD}")
        A(f"s_mul_i32 s77, s33, {1280//NP}")
        A(f"v_add_u32 v{hAD}, s77, v{hAD}")
        A(f"v_lshlrev_b32 v{hT}, 3, v{hT}")
        A(f"v_bfe_u32 v{hT+2}, v0, 2, 2")
        A(f"v_add_u32 v{hT}, v{hT}, v{hT+2}")
        A(f"v_mul_u32_u24 v{hAD+1}, 384, v{hT}")
        A(f"v_lshl_add_u32 v{hAD+1}, v{hT+1}, 3, v{hAD+1}")
        A("s_mul_i32 s77, s3, 96")
        if NP == 2:
            A(f"v_add_u32 v{hT+4}, s77, v{hAD+1}")
        A(f"s_add_u32 s77, s77, {L_SBUF}")
        A(f"v_add_u32 v{hAD+1}, s77, v{hAD+1}")
        if NP == 2:
            A(f"v_add_u32 v{hT+5}, {96*384}, v{hAD+1}")
        A("s_mul_i32 s77, s3, 192")
        A(f"v_add_u32 v{hAD+2}, s77, v{hL4}")
        A("s_waitcnt vmcnt(2) lgkmcnt(0)")
        stamp(2, "start")
        lds_inc(hZ, hONE, C_SYNC0)
        lds_wait(hZ, hT, C_SYNC0, 4)
        stamp(3, "start")
        NT = 20 // NP
        breg = lambda t, tt: (hW1 + 12 * t + 4 * tt) if t < 8 else (hG + 12 * (t - 8) + 4 * tt)
        for t in range(NT):
            A(f"ds_read_b128 v[{hA+4*t}:{hA+4*t+3}], v{hAD} offset:{L_XN+64*t}")
        for t in range(NT):
            if NP == 4:
                ad, tl = hAD + 1, t
            else:
                ad, tl = (hT + 4, t) if t < 4 else ((hAD + 1, t - 4) if t < 7 else (hT + 5, t - 7))
            for tt in range(3):
                for hf in range(2):
                    r = breg(t, tt) + 2 * hf
                    A(f"ds_read_b64_tr_b16 v[{r}:{r+1}], v{ad} offset:{(32*tl+4*hf)*384+32*tt}")
        for t in range(NT):
            A(f"s_waitcnt lgkmcnt({min(15, 6*(NT-1-t))})")
            for tt in range(3):
                r = breg(t, tt)
                c = "0" if t == 0 else f"v[{hD+4*tt}:{hD+4*tt+3}]"
                A(f"v_mfma_f32_16x16x32_bf16 v[{hD+4*tt}:{hD+4*tt+3}], v[{hA+4*t}:{hA+4*t+3}], v[{r}:{r+3}], {c}")
        A("s_mov_b64 exec, 0xffff")
        for tt in range(3):
            for b in range(4):
                A(f"ds_write_b32 v{hAD+2}, v{hD+4*tt+b} offset:{L_RED+768*b+64*tt}")
        A("s_mov_b64 exec, -1")
        A(f"s_lshl_b32 s76, {sG}, 2")
        A("s_add_u32 s76, s76, s33")
        A("s_lshl_b32 s76, s76, 12")
        A("s_lshl_b32 s77, s3, 10")
        A("s_add_u32 s76, s76, s77")
        A("s_mul_i32 s78, s3, 768")
        A(f"v_mul_u32_u24 v{hAD}, 12, v0")
        A(f"v_add_u32 v{hAD}, s78, v{hAD}")
        A("s_waitcnt lgkmcnt(0)")
        lds_inc(hZ, hONE, C_SYNC1)
        lds_wait(hZ, hT, C_SYNC1, 4)
        for e in range(3):
            A(f"ds_read_b32 v{hD+e}, v{hAD} offset:{L_RED+4*e}")
        A("s_waitcnt vmcnt(0)")
        get_tag("p")
        A(f"v_mov_b32 v{hD+3}, v{hNC}")
        A("s_waitcnt lgkmcnt(0)")
        if not noqx:
            A(f"buffer_store_dwordx4 v[{hD}:{hD+3}], v{hL16}, {S_WS}, s76 offen sc1")
        stamp(4, "start")
        A("s_branch L_q_gather")
        A.label("L_q_consumer")
        A("s_waitcnt lgkmcnt(0)")
        srd(S_WS, 26, WS_SIZE)
        srd(S_DBG, 24, 256)
        srd(S_X, 4, 5120)
        srd(S_WQ, 10, 640 * 6144 * 2)
        A("s_lshl_b32 s77, s2, 2")
        A("s_add_u32 s77, s77, s3")
        A("s_cmp_lg_u32 s77, 4")
        A("s_cbranch_scc1 L_notag")
        A("s_memrealtime s[78:79]")
        A("s_waitcnt lgkmcnt(0)")
        A("s_or_b32 s78, s78, 1")
        A("s_or_b32 s79, s79, 0x80000000")
        A(f"v_mov_b32 v{hD}, s78")
        A(f"v_mov_b32 v{hD+1}, s79")
        A(f"v_mov_b32 v{hD+2}, 0")
        A(f"v_mov_b32 v{hD+3}, 0")
        A("s_mov_b64 exec, 1")
        A(f"buffer_atomic_cmpswap_x2 v[{hD}:{hD+3}], v{hZ}, {S_DBG}, 0 offen")
        A("s_mov_b64 exec, -1")
        A.label("L_notag")
        A("s_barrier")
        lds_inc(hZ, hONE, C_SYNC1)
        for k in range(qdelay):
            A("s_sleep 64")
        A(f"buffer_load_dwordx2 v[{hNC}:{hNC+1}], v{hZ}, {S_DBG}, 0 offen sc1")
        A("s_waitcnt vmcnt(0)")
        get_tag("c")
        A.label("L_q_gather")
        srd(S_WO, 12, 6144 * 640 * 2)
        srd(S_WG, 16, 640 * 1536 * 2)
        srd(S_WU, 18, 640 * 1536 * 2)
        srd(S_WD, 20, 1536 * 640 * 2)
        srd(S_OUT, 22, 5120)
        A("s_mov_b64 exec, 1")
        A(f"ds_write_b64 v{hZ}, v[{hNC}:{hNC+1}] offset:{L_TAG}")
        A("s_mov_b64 exec, -1")
        A(f"s_lshl_b32 s76, {sH}, 14")
        A("s_lshl_b32 s77, s3, 10")
        A("s_add_u32 s76, s76, s77")
        for k in range(1, 4):
            A(f"s_add_u32 s{76+k}, s76, {4096*k}")
        A("s_mul_i32 s80, s3, 384")
        A(f"v_mul_u32_u24 v{hAD}, 6, v0")
        A(f"v_add_u32 v{hAD}, s80, v{hAD}")
        stamp(1)
        if not noqx and qlight:
            A(f"v_lshlrev_b32 v{hAD+1}, 12, v0")
            A(f"s_mov_b32 s81, {spin_g}")
            A(f"s_mov_b64 exec, {(1 << NP) - 1}")
            A.label("L_qlight")
            A(f"buffer_load_dword v{hT}, v{hAD+1}, {S_WS}, s76 offen offset:1020 sc1")
            A("s_waitcnt vmcnt(0)")
            A(f"v_cmp_ne_u32 vcc, v{hT}, v{hNC}")
            A("s_cbranch_vccz L_qlightd")
            A(f"s_sleep {qsleep}")
            A("s_sub_u32 s81, s81, 1")
            A("s_cmp_lg_u32 s81, 0")
            A("s_cbranch_scc1 L_qlight")
            A.label("L_qlightd")
            A("s_mov_b64 exec, -1")
        if not noqx:
            Lp, Ld = A.newlabel("L_poll"), A.newlabel("L_pdone")
            dl = [f"buffer_load_dwordx4 v[{hG+4*u}:{hG+4*u+3}], v{hL16}, {S_WS}, s{76+u} offen sc1" for u in range(NP)]
            A(f"s_mov_b32 s81, {spin_g}")
            for l in dl:
                A(l)
            A.label(Lp)
            A("s_waitcnt vmcnt(0)")
            for u in range(NP):
                A(f"v_cmp_ne_u32 s[{4+2*u}:{5+2*u}], v{hG+4*u+3}, v{hNC}")
            A("s_or_b64 s[38:39], s[4:5], s[6:7]")
            if NP == 4:
                A("s_or_b64 s[38:39], s[38:39], s[8:9]")
                A("s_or_b64 s[38:39], s[38:39], s[10:11]")
            A(f"s_cbranch_scc0 {Ld}")
            A(f"s_sleep {qsleep}")
            for u, l in enumerate(dl):
                A(f"s_mov_b64 exec, s[{4+2*u}:{5+2*u}]")
                A(l)
            A("s_mov_b64 exec, -1")
            A("s_sub_u32 s81, s81, 1")
            A("s_cmp_lg_u32 s81, 0")
            A(f"s_cbranch_scc1 {Lp}")
            A("s_waitcnt vmcnt(0)")
            A.label(Ld)
            stamp(6, "start")
            for e in range(3):
                A(f"v_add_f32 v{hG+e}, v{hG+e}, v{hG+4+e}")
                if NP == 4:
                    A(f"v_add_f32 v{hG+8+e}, v{hG+8+e}, v{hG+12+e}")
            for e in range(3):
                if NP == 4:
                    A(f"v_add_f32 v{hG+e}, v{hG+e}, v{hG+8+e}")
        A(f"v_cvt_pk_bf16_f32 v{hG+4}, v{hG}, v{hG+1}")
        A(f"v_cvt_pk_bf16_f32 v{hG+5}, v{hG+2}, v{hG+2}")
        A(f"ds_write_b16 v{hAD}, v{hG+4} offset:{L_QL}")
        A(f"ds_write_b16_d16_hi v{hAD}, v{hG+4} offset:{L_QL+2}")
        A(f"ds_write_b16 v{hAD}, v{hG+5} offset:{L_QL+4}")
        A("s_waitcnt lgkmcnt(0)")
        lds_inc(hZ, hONE, C_QRDY)
    else:
        for i in range(3):
            A(f"v_add_u32 v{hT}, {64*i}, v0")
            A(f"v_mul_u32_u24 v{hT+1}, 2731, v{hT}")
            A(f"v_lshrrev_b32 v{hT+1}, 16, v{hT+1}")
            A(f"v_mul_u32_u24 v{hT+2}, 24, v{hT+1}")
            A(f"v_sub_u32 v{hT}, v{hT}, v{hT+2}")
            A(f"v_mul_u32_u24 v{hT+1}, 12288, v{hT+1}")
            A(f"v_lshl_add_u32 v{hAD+i}, v{hT}, 4, v{hT+1}")
        A("s_mul_i32 s75, s3, 1280")
        A(f"s_mul_i32 s76, {sJ}, {80*12288}")
        A(f"s_mul_i32 s77, {sG}, 384")
        A("s_add_u32 s76, s76, s77")
        A(f"s_mul_i32 s77, s3, {8*12288}")
        A("s_add_u32 s76, s76, s77")
        A("s_mul_i32 s83, s3, 3072")
        A("s_waitcnt lgkmcnt(0)")
        srd(S_X, 4, 5120)
        srd(S_WQ, 10, 640 * 6144 * 2)
        for u in range(5):
            A(f"buffer_load_dword v{hX+u}, v{hL4}, {S_X}, s75 offen offset:{256*u}")
        for blk in range(3):
            if blk == 2:
                A("s_cmp_lt_u32 s3, 2")
                A(f"s_cselect_b32 s76, s76, {OOB}")
            for i in range(3):
                A(f"s_add_u32 m0, s83, {blk*4*3072 + 1024*i}")
                A(f"buffer_load_dwordx4 v{hAD+i}, {S_WQ}, s76 offen nt lds")
            A(f"s_add_u32 s76, s76, {32*12288}")
        srd(S_DBG, 24, 256)
        srd(S_WS, 26, WS_SIZE)
        A("s_add_u32 s77, s2, s3")
        A("s_cmp_lg_u32 s77, 0")
        A("s_cbranch_scc1 L_notag")
        A("s_memrealtime s[78:79]")
        A("s_waitcnt lgkmcnt(0)")
        A("s_or_b32 s78, s78, 1")
        A("s_or_b32 s79, s79, 0x80000000")
        A(f"v_mov_b32 v{hD}, s78")
        A(f"v_mov_b32 v{hD+1}, s79")
        A(f"v_mov_b32 v{hD+2}, 0")
        A(f"v_mov_b32 v{hD+3}, 0")
        A("s_mov_b64 exec, 1")
        A(f"buffer_atomic_cmpswap_x2 v[{hD}:{hD+3}], v{hZ}, {S_DBG}, 0 offen")
        A("s_mov_b64 exec, -1")
        A.label("L_notag")
        A("s_lshl_b32 s76, s3, 5")
        A(f"s_add_u32 s76, s76, {sG}")
        A("s_lshl_b32 s76, s76, 8")
        A(f"s_add_u32 s76, s76, {CT_OFF}")
        A(f"s_cmp_eq_u32 {sJ}, 0")
        A(f"s_cselect_b32 s76, s76, {OOB}")
        A("s_mov_b64 exec, 1")
        A(f"buffer_store_dword v{hZ}, v{hZ}, {S_WS}, s76 offen sc1")
        A("s_mov_b64 exec, -1")
        for k in range(4):
            A(f"v_mov_b32 v{hG+k}, 0")
        A(f"ds_write_b128 v{hZ}, v[{hG}:{hG+3}] offset:{L_CNT}")
        A(f"ds_write_b64 v{hZ}, v[{hG}:{hG+1}] offset:{L_CNT+16}")
        A(f"ds_write_b32 v{hZ}, v{hG} offset:{L_CNT+32}")
        A("s_waitcnt lgkmcnt(0)")
        A("s_barrier")
        srd(S_WO, 12, 6144 * 640 * 2)
        srd(S_WG, 16, 640 * 1536 * 2)
        srd(S_WU, 18, 640 * 1536 * 2)
        srd(S_WD, 20, 1536 * 640 * 2)
        srd(S_OUT, 22, 5120)
        A("s_waitcnt vmcnt(10)")
        stamp(1, "start")
        layernorm([hX + u for u in range(5)], hX, hF, hT)
        A(f"v_add_u32 v{hAD}, s75, v{hL4}")
        for u in range(5):
            A(f"ds_write_b32 v{hAD}, v{hX+u} offset:{L_XN+256*u}")
        A(f"buffer_load_dwordx2 v[{hNC}:{hNC+1}], v{hZ}, {S_DBG}, 0 offen sc1")
        A(f"v_lshrrev_b32 v{hT}, 4, v0")
        A(f"v_and_b32 v{hT+1}, 3, v0")
        A(f"v_mul_u32_u24 v{hAD}, 1280, v{hT+1}")
        A(f"v_lshl_add_u32 v{hAD}, v{hT}, 3, v{hAD}")
        A(f"s_mul_i32 s77, {sJ}, 160")
        A(f"v_add_u32 v{hAD}, s77, v{hAD}")
        A(f"v_bfe_u32 v{hT+2}, v0, 2, 2")
        A(f"v_lshl_add_u32 v{hT+3}, v{hT}, 2, v{hT+2}")
        A(f"v_mul_u32_u24 v{hAD+1}, 384, v{hT+3}")
        A(f"v_lshl_add_u32 v{hAD+1}, v{hT+1}, 3, v{hAD+1}")
        A("s_mul_i32 s77, s3, 96")
        A(f"v_add_u32 v{hAD+1}, s77, v{hAD+1}")
        A("s_mul_i32 s77, s3, 192")
        A(f"v_add_u32 v{hAD+2}, s77, v{hL4}")
        A("s_waitcnt vmcnt(2) lgkmcnt(0)")
        stamp(2, "start")
        lds_inc(hZ, hONE, C_SYNC0)
        lds_wait(hZ, hT, C_SYNC0, 4)
        stamp(3, "start")
        for t in range(5):
            A(f"ds_read_b64 v[{hA+2*t}:{hA+2*t+1}], v{hAD} offset:{L_XN+32*t}")
        for tt in range(3):
            for t in range(5):
                r = hB + 2 * (tt * 5 + t)
                A(f"ds_read_b64_tr_b16 v[{r}:{r+1}], v{hAD+1} offset:{16*384*t+32*tt}")
        for tt in range(3):
            A(f"s_waitcnt lgkmcnt({10-5*tt})")
            for t in range(5):
                r = hB + 2 * (tt * 5 + t)
                c = "0" if t == 0 else f"v[{hD+4*tt}:{hD+4*tt+3}]"
                A(f"v_mfma_f32_16x16x16_bf16 v[{hD+4*tt}:{hD+4*tt+3}], v[{hA+2*t}:{hA+2*t+1}], v[{r}:{r+1}], {c}")
        A("s_mov_b64 exec, 0xffff")
        for tt in range(3):
            for b in range(4):
                A(f"ds_write_b32 v{hAD+2}, v{hD+4*tt+b} offset:{L_RED+768*b+64*tt}")
        A("s_mov_b64 exec, -1")
        A("s_lshl_b32 s76, s2, 12")
        A("s_lshl_b32 s77, s3, 10")
        A("s_add_u32 s76, s76, s77")
        A("s_mul_i32 s78, s3, 768")
        A(f"v_add_u32 v{hAD}, s78, v{hL16}")
        A("s_waitcnt lgkmcnt(0)")
        lds_inc(hZ, hONE, C_SYNC1)
        lds_wait(hZ, hT, C_SYNC1, 4)
        A(f"ds_read_b128 v[{hD}:{hD+3}], v{hAD} offset:{L_RED}")
        A("s_waitcnt lgkmcnt(0)")
        A("s_mov_b32 exec_hi, 0xffff")
        if not noqx:
            A(f"buffer_store_dwordx4 v[{hD}:{hD+3}], v{hL16}, {S_WS}, s76 offen sc1")
        A("s_mov_b32 exec_hi, -1")
        stamp(4, "start")
        A(f"s_lshl_b32 s78, {sH}, 15")
        A("s_add_u32 s78, s78, s77")
        A(f"v_lshlrev_b32 v{hAD+1}, 12, v0")
        A("s_mul_i32 s77, s3, 384")
        A(f"v_lshl_add_u32 v{hAD}, v0, 3, s77")
        A("s_waitcnt vmcnt(0)")
        stamp(5, "start")
        A(f"s_mov_b32 s81, {spin_g}")
        A.label("L_gf")
        A(f"v_readfirstlane_b32 s79, v{hNC}")
        A(f"v_readfirstlane_b32 s80, v{hNC+1}")
        A("s_cmp_eq_u32 s79, 0")
        A("s_cselect_b32 s80, 0, s80")
        A("s_cmp_lg_u32 s80, 0")
        A("s_cbranch_scc1 L_gfd")
        A("s_sleep 2")
        A(f"buffer_load_dwordx2 v[{hNC}:{hNC+1}], v{hZ}, {S_DBG}, 0 offen sc1")
        A("s_waitcnt vmcnt(0)")
        A("s_sub_u32 s81, s81, 1")
        A("s_cmp_lg_u32 s81, 0")
        A("s_cbranch_scc1 L_gf")
        A.label("L_gfd")
        A("s_mov_b64 exec, 1")
        if not noqx:
            A(f"buffer_store_dwordx2 v[{hNC}:{hNC+1}], v{hZ}, {S_WS}, s76 offen offset:768 sc1")
        A(f"ds_write_b64 v{hZ}, v[{hNC}:{hNC+1}] offset:{L_TAG}")
        A("s_mov_b64 exec, -1")
        stamp(1)
        if not noqx:
            poll_tagged([f"buffer_load_dwordx2 v[{hT}:{hT+1}], v{hAD+1}, {S_WS}, s78 offen offset:768 sc1"], [hT], hNC, hT + 2,
                        sleep=qsleep, mask="0xff")
            stamp(6, "start")
            A("s_mov_b32 exec_hi, 0xffff")
            for jj in range(8):
                A(f"buffer_load_dwordx4 v[{hG+4*jj}:{hG+4*jj+3}], v{hL16}, {S_WS}, s78 offen sc1")
                A("s_add_u32 s78, s78, 4096")
            for jj in range(1, 8):
                A(f"s_waitcnt vmcnt({7-jj})")
                for e in range(4):
                    A(f"v_add_f32 v{hG+e}, v{hG+e}, v{hG+4*jj+e}")
        A("s_mov_b32 exec_hi, 0xffff")
        A(f"v_cvt_pk_bf16_f32 v{hG+4}, v{hG}, v{hG+1}")
        A(f"v_cvt_pk_bf16_f32 v{hG+5}, v{hG+2}, v{hG+3}")
        A(f"ds_write_b64 v{hAD}, v[{hG+4}:{hG+5}] offset:{L_QL}")
        A("s_mov_b32 exec_hi, -1")
        A("s_waitcnt lgkmcnt(0)")
        lds_inc(hZ, hONE, C_QRDY)
    stamp(2)
    stamp(7, "start")
    if prio:
        A("s_setprio 0")

    def tr_addr(dst, rowbytes, base, k16=False):
        A(f"v_lshrrev_b32 v{hT}, 4, v0")
        A(f"v_lshlrev_b32 v{hT}, {2 if k16 else 3}, v{hT}")
        A(f"v_bfe_u32 v{hT+1}, v0, 2, 2")
        A(f"v_add_u32 v{hT}, v{hT}, v{hT+1}")
        A(f"v_mul_u32_u24 v{dst}, {rowbytes}, v{hT}")
        A(f"v_and_b32 v{hT+1}, 3, v0")
        A(f"v_lshl_add_u32 v{dst}, v{hT+1}, 3, v{dst}")
        A(f"v_add_u32 v{dst}, {base}, v{dst}")

    def warm_code(l0, l1, tmp):
        if not warm:
            return
        lab = A.newlabel("L_pc")
        A("s_getpc_b64 s[20:21]")
        A.label(lab)
        A(f"s_add_u32 s20, s20, {l0}-{lab}")
        A("s_addc_u32 s21, s21, 0")
        A(f"v_lshlrev_b32 v{tmp}, 7, v0")
        A(f"v_min_u32 v{tmp}, ({l1}-{l0}-4)&~3, v{tmp}")
        A(f"global_load_dword v{tmp}, v{tmp}, s[20:21]")

    def warm_icache(tag):
        if not pads:
            return
        A("s_mov_b64 exec, 0")
        A(f"s_cbranch_execz L_pad0_{tag}")
        A.label(f"L_padret_{tag}")
        A("s_mov_b64 exec, -1")

    def pack24(o, src):
        for i in range(3):
            A(f"v_perm_b32 v{o+i}, v{src+i}, v{src+3}, s{44+i}")

    def set_sel():
        for i in range(3):
            A(f"s_mov_b32 s{44+i}, 0x0706050{3-i}")

    def split_halves(d):
        A(f"v_cndmask_b32 v{d}, v{d}, v{d+2}, s[34:35]")
        A(f"v_cndmask_b32 v{d+1}, v{d+1}, v{d+3}, s[34:35]")
        A(f"v_mov_b32 v{d+2}, v{hNC}")
        A(f"v_mov_b32 v{d+3}, v{hNC+1}")

    hGO = 13
    A(f"v_and_b32 v{hT}, 15, v0")
    A(f"v_lshlrev_b32 v{hGO}, 5, v{hT}")
    A(f"v_and_b32 v{hT}, 16, v0")
    A(f"v_add_u32 v{hGO}, v{hGO}, v{hT}")
    A("v_cmp_lt_u32 s[34:35], 15, v0")
    A("s_mul_i32 s83, s3, 12288")
    rH, rC = "s100", "s101"
    if xr:
        A(f"s_sub_u32 {rH}, {sG}, 24")
        A(f"s_lshl_b32 {rH}, {rH}, 3")
        A(f"s_add_u32 {rH}, {rH}, {sJ}")
        A(f"s_cmp_ge_u32 {sG}, 24")
        A("s_cbranch_scc1 L_role_red")
        A(f"s_lshl_b32 {rH}, {sJ}, 2")
        A(f"s_add_u32 {rH}, {rH}, {sG}")
        A(f"s_sub_u32 {rH}, {rH}, 20")
        A(f"s_cmp_ge_u32 {sG}, 20")
        A("s_cbranch_scc1 L_role_ffn")
        A(f"s_mul_i32 {rH}, {sG}, 13")
        A(f"s_lshr_b32 {rH}, {rH}, 6")
        A(f"s_mul_i32 {rC}, {rH}, 5")
        A(f"s_sub_u32 {rC}, {sG}, {rC}")
        A(f"s_lshl_b32 {rH}, {rH}, 3")
        A(f"s_add_u32 {rH}, {rH}, {sJ}")
    else:
        A(f"s_lshl_b32 {rH}, {sG}, 1")
        A(f"s_add_u32 {rH}, {rH}, {sJ}")
        A(f"s_sub_u32 {rH}, {rH}, 6")
        A(f"s_cmp_gt_u32 {sJ}, 5")
        A("s_cbranch_scc1 L_role_red")
        A(f"s_mov_b32 {rH}, {sG}")
        A(f"s_mov_b32 {rC}, {sJ}")
        A(f"s_cmp_eq_u32 {sJ}, 5")
        A("s_cbranch_scc1 L_role_ffn")
        if wo2:
            A(f"s_cmp_ge_u32 {sJ}, 2")
            A("s_cbranch_scc1 L_h_end")

    A(f"s_mul_i32 s32, {rH}, {10240 if ypc else 20480}")
    wG, wW, wD, NTW = (40, 136, 92, 5) if wo2 else (hG, hW1, hD, 2)
    if wo2:
        assert ypc and opc
        A(f"s_mul_i32 s77, {rC}, 5120")
        A("s_add_u32 s32, s32, s77")
        A("s_mul_i32 s77, s3, 1280")
    else:
        A(f"s_lshl_b32 s77, {rC}, {11 if ypc else 12}")
        A("s_add_u32 s32, s32, s77")
        A(f"s_lshl_b32 s77, s3, {9 if ypc else 10}")
    set_sel()
    A("s_add_u32 s32, s32, s77")
    A(f"s_add_u32 s32, s32, {YP_OFF}")
    if touch_y:
        for k in range(4):
            A(f"v_mov_b32 v{hG+k}, 0")
        A(f"buffer_store_dwordx4 v[{hG}:{hG+3}], v{hL16}, {S_WS}, s32 offen sc1")
    if wo2 and not noweights:
        for i in range(5):
            A(f"v_add_u32 v{hT}, {64*i}, v0")
            A(f"v_mul_u32_u24 v{hT+1}, 1639, v{hT}")
            A(f"v_lshrrev_b32 v{hT+1}, 16, v{hT+1}")
            A(f"v_mul_u32_u24 v{hT+2}, 40, v{hT+1}")
            A(f"v_sub_u32 v{hT}, v{hT}, v{hT+2}")
            A(f"v_mul_u32_u24 v{hT+1}, 1280, v{hT+1}")
            A(f"v_lshl_add_u32 v{hF+i}, v{hT}, 4, v{hT+1}")
        A(f"s_mul_i32 s76, {rH}, {192*1280}")
        A(f"s_mul_i32 s77, {rC}, 640")
        A("s_add_u32 s76, s76, s77")
        A(f"s_mul_i32 s77, s3, {8*1280}")
        A("s_add_u32 s76, s76, s77")
        A("s_mul_i32 s77, s3, 5120")
        lds_wait(hZ, hT, C_SFREE, 4, sleep=16)
        for k in range(6):
            for i in range(5):
                base = (L_STAGE + k * 4 * 5120) if k < 2 else (L_SBUF + (k - 2) * 4 * 5120)
                A(f"s_add_u32 m0, s77, {base + 1024*i}")
                A(f"buffer_load_dwordx4 v{hF+i}, {S_WO}, s76 offen nt lds")
            A(f"s_add_u32 s76, s76, {32*1280}")
        A("s_mul_i32 s77, s3, 160")
        tr_addr(hAD, 640, "s77")
        A(f"v_add_u32 v{hAD+1}, {L_SBUF}, v{hAD}")
        A(f"v_add_u32 v{hAD+2}, {L_SBUF + 96*640}, v{hAD}")
        A("s_waitcnt vmcnt(0)")
        lds_inc(hZ, hONE, C_WSYNC)
        lds_wait(hZ, hT, C_WSYNC, 4, sleep=4)
        for tt in range(5):
            for t_ in range(6):
                ad, tl = (hAD, t_) if t_ < 2 else ((hAD + 1, t_ - 2) if t_ < 5 else (hAD + 2, 0))
                for hf in range(2):
                    r = wW + 4 * (tt * 6 + t_) + 2 * hf
                    A(f"ds_read_b64_tr_b16 v[{r}:{r+1}], v{ad} offset:{(32*tl+4*hf)*640+32*tt}")
    elif not noweights:
        A(f"v_lshrrev_b32 v{hAD}, 4, v0")
        A(f"v_mul_u32_u24 v{hAD}, 1280, v{hAD}")
        A(f"v_and_b32 v{hT}, 15, v0")
        A(f"v_lshl_add_u32 v{hAD}, v{hT}, 4, v{hAD}")
        A(f"s_mul_i32 s76, {rH}, {192*1280}")
        A(f"s_lshl_b32 s77, {rC}, 8")
        A("s_add_u32 s76, s76, s77")
        A(f"s_mul_i32 s77, s3, {48*1280}")
        A("s_add_u32 s76, s76, s77")
        if NL > 4:
            lds_wait(hZ, hT, C_SFREE, 4, sleep=16)
        if "wo" in late:
            lds_wait(hZ, hT, C_DRY, 1, sleep=8)
        for u in range(12):
            A(f"s_add_u32 m0, s83, {1024*u}")
            A(f"buffer_load_dwordx4 v{hAD}, {S_WO}, s76 offen nt lds")
            A(f"s_add_u32 s76, s76, {4*1280}")
        A("s_lshl_b32 s77, s3, 6")
        tr_addr(hAD + 1, 256, "s77")
        A("s_waitcnt vmcnt(0)")
        lds_inc(hZ, hONE, C_WSYNC)
        lds_wait(hZ, hT, C_WSYNC, 4, sleep=4)
        for tt in range(2):
            for t in range(6):
                for hf in range(2):
                    r = hW1 + 4 * (tt * 6 + t) + 2 * hf
                    A(f"ds_read_b64_tr_b16 v[{r}:{r+1}], v{hAD+1} offset:{(32*t+4*hf)*256+32*tt}")
    hAF, hOD = 122, 124
    A(f"v_and_b32 v{hT}, 3, v0")
    A(f"v_lshrrev_b32 v{hT+1}, 4, v0")
    A(f"v_mul_u32_u24 v{hAF}, 384, v{hT}")
    A(f"v_lshl_add_u32 v{hAF}, v{hT+1}, 4, v{hAF}")
    A(f"v_lshrrev_b32 v{hT}, 3, v0")
    A(f"v_mul_u32_u24 v{hT}, 3, v{hT}")
    A(f"v_and_b32 v{hT+1}, 7, v0")
    A(f"v_lshlrev_b32 v{hT+1}, 4, v{hT+1}")
    A("s_mul_i32 s76, s3, 384")
    A(f"v_add_u32 v{hT+1}, s76, v{hT+1}")
    for r in range(3):
        A(f"v_add_u32 v{hT+2}, {r}, v{hT}")
        A(f"v_lshrrev_b32 v{hT+3}, 3, v{hT+2}")
        A(f"v_lshlrev_b32 v{hT+3}, 7, v{hT+3}")
        A(f"v_and_b32 v{hT+2}, 7, v{hT+2}")
        A(f"v_lshlrev_b32 v{hT+2}, 1, v{hT+2}")
        A(f"v_add3_u32 v{hOD+r}, v{hT+1}, v{hT+2}, v{hT+3}")
    A("s_lshl_b32 s76, s3, 5")
    A(f"s_add_u32 s76, s76, {rH}")
    A("s_lshl_b32 s76, s76, 14")
    A(f"s_add_u32 s76, s76, {OP_OFF}")
    for k in range(1, 4):
        A(f"s_add_u32 s{76+k}, s76, {4096*k}")
    A(f"v_and_b32 v{hT}, 1, v0")
    A(f"v_cmp_ne_u32 s[36:37], 0, v{hT}")
    if opc:
        A(f"v_mov_b32 v{hA+4}, v{hNC}")
        A(f"v_and_b32 v{hA+5}, 7, v0")
        A(f"v_lshlrev_b32 v{hA+5}, 11, v{hA+5}")
    if wo2:
        A(f"v_and_b32 v{hT}, 16, v0")
        A(f"v_cmp_ne_u32 s[40:41], 0, v{hT}")
        A("v_cmp_lt_u32 s[42:43], 31, v0")
        A(f"v_mov_b32 v115, v{hNC}")
        A(f"v_mov_b32 v119, v{hNC}")
    warm_code("L_tail_wo", "L_role_red", hT + 5)
    A("s_waitcnt lgkmcnt(0)")
    warm_icache("wo")
    A("s_barrier")
    A.label("L_tail_wo")
    if pads:
        A.pads_begin("L_pad0_wo", pads)
    stamp(3)
    if opc:
        hML, hTW = hA, hA + 4
        Lp, Ld = A.newlabel("L_poll"), A.newlabel("L_pdone")
        A.pads_pause(True)
        dl = [f"buffer_load_dwordx4 v[{wG+4*jj}:{wG+4*jj+3}], v{hL16}, {S_WS}, s{76+(jj>>1)} offen offset:{2048*(jj&1)} sc1" for jj in range(8)]
        ml = f"buffer_load_dwordx4 v[{hML}:{hML+3}], v{hTW+1}, {S_WS}, s76 offen offset:1024 sc1"
        A(f"s_mov_b32 s81, {spin_g}")
        for l in dl:
            A(l)
        A(ml)
        A.label(Lp)
        A("s_waitcnt vmcnt(0)")
        for jj in range(8):
            A(f"v_cmp_ne_u32 s[{4+2*jj}:{5+2*jj}], v{wG+4*jj+3}, v{hTW}")
        A(f"v_cmp_ne_u64 s[20:21], v[{hML+2}:{hML+3}], v[{hNC}:{hNC+1}]")
        A("s_or_b64 s[38:39], s[4:5], s[6:7]")
        for i in range(2, 9):
            A(f"s_or_b64 s[38:39], s[38:39], s[{4+2*i}:{5+2*i}]")
        A(f"s_cbranch_scc0 {Ld}")
        if psleep:
            A(f"s_sleep {psleep}")
        for i, l in enumerate(dl + [ml]):
            A(f"s_mov_b64 exec, s[{4+2*i}:{5+2*i}]")
            A(l)
        A("s_mov_b64 exec, -1")
        A("s_sub_u32 s81, s81, 1")
        A("s_cmp_lg_u32 s81, 0")
        A(f"s_cbranch_scc1 {Lp}")
        A("s_waitcnt vmcnt(0)")
        A.label(Ld)
        A.pads_pause(False)
        stamp(4)
        A(f"v_max_f32_dpp v{hT}, v{hML}, v{hML} quad_perm:[1,0,3,2] {DPP}")
        A(f"v_max_f32_dpp v{hT}, v{hT}, v{hT} quad_perm:[2,3,0,1] {DPP}")
        A(f"v_max_f32_dpp v{hT}, v{hT}, v{hT} row_half_mirror {DPP}")
        A(f"v_sub_f32 v{hT}, v{hML}, v{hT}")
        A(f"v_mul_f32 v{hT}, {LOG2E}, v{hT}")
        A(f"v_exp_f32 v{hT}, v{hT}")
        A(f"v_mul_f32 v{hT+1}, v{hT}, v{hML+1}")
        A(f"v_add_f32_dpp v{hT+1}, v{hT+1}, v{hT+1} quad_perm:[1,0,3,2] {DPP}")
        A(f"v_add_f32_dpp v{hT+1}, v{hT+1}, v{hT+1} quad_perm:[2,3,0,1] {DPP}")
        A(f"v_add_f32_dpp v{hT+1}, v{hT+1}, v{hT+1} row_half_mirror {DPP}")
        A(f"v_rcp_f32 v{hT+1}, v{hT+1}")
        A(f"v_mul_f32 v{hT}, v{hT}, v{hT+1}")
        for jj in range(8):
            A(f"v_readlane_b32 s{4+jj}, v{hT}, {jj}")
        for r in range(3):
            A(f"v_mul_f32 v{hT+2+r}, s4, v{wG+r}")
        for jj in range(1, 8):
            for r in range(3):
                A(f"v_fmac_f32 v{hT+2+r}, s{4+jj}, v{wG+4*jj+r}")
    else:
        g0 = lambda jj: hG + 4 * jj
        g1 = lambda jj: hA + 4 * jj
        lt = []
        for jj in range(8):
            for k, g in enumerate((g0(jj), g1(jj))):
                lt.append(f"buffer_load_dwordx4 v[{g}:{g+3}], v{hL16}, {S_WS}, s{76+(jj>>1)} offen offset:{2048*(jj&1)+1024*k} sc1")
        if selpoll:
            poll_sel([(lt[2*jj:2*jj+2], [g0(jj) + 2, g1(jj) + 2]) for jj in range(8)], hNC, sleep=psleep)
        else:
            poll_tagged(lt, [g0(jj) + 2 for jj in range(8)] + [g1(jj) + 2 for jj in range(8)], hNC, hT, sleep=psleep)
        stamp(4)
        hMx, hWt = hB, hB + 8
        for jj in range(8):
            A(f"v_mov_b32_dpp v{hMx+jj}, v{g1(jj)+1} quad_perm:[1,0,3,2] {DPP}")
        for jj in range(8):
            A(f"v_cndmask_b32 v{hWt+jj}, v{g1(jj)+1}, v{hMx+jj}, s[36:37]")
            A(f"v_cndmask_b32 v{hMx+jj}, v{hMx+jj}, v{g1(jj)+1}, s[36:37]")
        A(f"v_max3_f32 v{hT}, v{hWt}, v{hWt+1}, v{hWt+2}")
        A(f"v_max3_f32 v{hT+1}, v{hWt+3}, v{hWt+4}, v{hWt+5}")
        A(f"v_max3_f32 v{hT}, v{hT}, v{hWt+6}, v{hWt+7}")
        A(f"v_max_f32 v{hT}, v{hT}, v{hT+1}")
        for jj in range(8):
            A(f"v_sub_f32 v{hWt+jj}, v{hWt+jj}, v{hT}")
        for jj in range(8):
            A(f"v_mul_f32 v{hWt+jj}, {LOG2E}, v{hWt+jj}")
        for jj in range(8):
            A(f"v_exp_f32 v{hWt+jj}, v{hWt+jj}")
        oreg = lambda jj, r: (g0(jj), g0(jj) + 1, g1(jj))[r]
        A(f"v_mul_f32 v{hT+1}, v{hWt}, v{hMx}")
        for r in range(3):
            A(f"v_mul_f32 v{hT+2+r}, v{hWt}, v{oreg(0, r)}")
        for jj in range(1, 8):
            A(f"v_fmac_f32 v{hT+1}, v{hWt+jj}, v{hMx+jj}")
            for r in range(3):
                A(f"v_fmac_f32 v{hT+2+r}, v{hWt+jj}, v{oreg(jj, r)}")
        A(f"v_rcp_f32 v{hT}, v{hT+1}")
        for r in range(3):
            A(f"v_mul_f32 v{hT+2+r}, v{hT+2+r}, v{hT}")
    A(f"v_cvt_pk_bf16_f32 v{hT}, v{hT+2}, v{hT+3}")
    A(f"v_cvt_pk_bf16_f32 v{hT+1}, v{hT+4}, v{hT+4}")
    A(f"ds_write_b16 v{hOD}, v{hT} offset:{L_OL}")
    A(f"ds_write_b16_d16_hi v{hOD+1}, v{hT} offset:{L_OL}")
    A(f"ds_write_b16 v{hOD+2}, v{hT+1} offset:{L_OL}")
    A("s_waitcnt lgkmcnt(0)")
    A("s_barrier")
    for t in range(6):
        A(f"ds_read_b128 v[{hA+4*t}:{hA+4*t+3}], v{hAF} offset:{L_OL+64*t}")
    for t in range(6):
        A(f"s_waitcnt lgkmcnt({5-t})")
        for tt in range(NTW):
            r = wW + 4 * (tt * 6 + t)
            c = "0" if t == 0 else f"v[{wD+4*tt}:{wD+4*tt+3}]"
            A(f"v_mfma_f32_16x16x32_bf16 v[{wD+4*tt}:{wD+4*tt+3}], v[{hA+4*t}:{hA+4*t+3}], v[{r}:{r+3}], {c}")
    if wo2:
        for e in range(4):
            A(f"v_cndmask_b32 v{wD+e}, v{wD+e}, v{wD+4+e}, s[40:41]")
            A(f"v_cndmask_b32 v{wD+8+e}, v{wD+8+e}, v{wD+12+e}, s[40:41]")
            A(f"v_cndmask_b32 v{wD+e}, v{wD+e}, v{wD+8+e}, s[42:43]")
        pack24(112, wD)
        A(f"buffer_store_dwordx4 v[112:115], v{hL16}, {S_WS}, s32 offen sc1")
        pack24(116, wD + 16)
        A("s_mov_b64 exec, 0xffff")
        A(f"buffer_store_dwordx4 v[116:119], v{hL16}, {S_WS}, s32 offen offset:1024 sc1")
        A("s_mov_b64 exec, -1")
        stamp(5)
        A("s_branch L_h_end")
    A("s_mov_b32 exec_hi, 0")
    if ypc:
        A(f"v_mov_b32 v{hD+11}, v{hNC}")
        for e in range(4):
            A(f"v_cndmask_b32 v{hD+e}, v{hD+e}, v{hD+4+e}, s[34:35]")
        pack24(hD + 8, hD)
        A(f"buffer_store_dwordx4 v[{hD+8}:{hD+11}], v{hL16}, {S_WS}, s32 offen sc1")
    else:
        for tt in range(2):
            split_halves(hD + 4 * tt)
            A(f"buffer_store_dwordx4 v[{hD+4*tt}:{hD+4*tt+3}], v{hGO}, {S_WS}, s32 offen offset:{512*tt} sc1")
    A("s_mov_b32 exec_hi, -1")
    if pads:
        A.pads_end("L_padret_wo")
    stamp(5)
    A("s_branch L_h_end")

    A.label("L_role_red")
    A("s_lshl_b32 s77, s3, 6")
    A(f"s_add_u32 s33, {rH}, s77")
    A("s_cmp_ge_u32 s33, 80")
    A("s_cbranch_scc1 L_h_end")
    A("s_lshl_b32 s36, s33, 7")
    A(f"s_add_u32 s36, s36, {HB_OFF}")
    A("s_lshl_b32 s37, s33, 4")
    if touch_y:
        for k in range(4):
            A(f"v_mov_b32 v{hG+k}, 0")
        A("s_mov_b64 exec, 0xff")
        A(f"buffer_store_dwordx4 v[{hG}:{hG+3}], v{hL16}, {S_WS}, s36 offen sc1")
        A("s_mov_b64 exec, -1")
    if ypc:
        hRS = hB
        A(f"v_and_b32 v{hT+2}, 7, v0")
        A(f"v_lshlrev_b32 v{hT+3}, 1, v{hT+2}")
        for bb in range(4):
            A(f"buffer_load_ushort v{hX+bb}, v{hT+3}, {S_X}, s37 offen offset:{1280*bb}")
        A(f"v_and_b32 v{hT+4}, 1, v0")
        A(f"v_cmp_ne_u32 s[34:35], 0, v{hT+4}")
        A(f"v_mul_u32_u24 v{hAD}, 2558, v{hT+4}")
        A(f"v_add_u32 v{hAD}, v{hAD}, v{hT+3}")
        A(f"v_lshlrev_b32 v{hAD+2}, 4, v{hT+2}")
        A(f"v_lshrrev_b32 v{hT+4}, 3, v0")
        A(f"v_mul_u32_u24 v{hAD+1}, 10240, v{hT+4}")
        A(f"v_lshl_add_u32 v{hAD+1}, v{hT+2}, 4, v{hAD+1}")
        A("s_mov_b32 s44, 0x0c040000")
        A("s_mov_b32 s45, 0x07060000")
        if tlb:
            A(f"buffer_load_dword v{hG}, v{hAD}, {S_OUT}, s37 offen")
        A("s_waitcnt vmcnt(0)")
        for bb in range(4):
            A(f"v_lshlrev_b32 v{hRS+bb}, 16, v{hX+bb}")
        warm_code("L_tail_red", "L_role_ffn", hT + 5)
        warm_icache("red")
        A("s_barrier")
        A.label("L_tail_red")
        if pads:
            A.pads_begin("L_pad0_red", pads)
        stamp(3)

        def reduce32c(base_off, st):
            A("s_lshl_b32 s76, s33, 7")
            A(f"s_add_u32 s76, s76, {base_off}")
            for u in range(1, 4):
                A(f"s_add_u32 s{76+u}, s76, {81920*u}")
            Lp, Ld = A.newlabel("L_poll"), A.newlabel("L_pdone")
            A.pads_pause(True)
            dl = [f"buffer_load_dwordx4 v[{hG+4*u}:{hG+4*u+3}], v{hAD+1}, {S_WS}, s{76+u} offen sc1" for u in range(4)]
            A(f"s_mov_b32 s81, {spin_g}")
            for l in dl:
                A(l)
            A.label(Lp)
            A("s_waitcnt vmcnt(0)")
            for u in range(4):
                A(f"v_cmp_ne_u32 s[{4+2*u}:{5+2*u}], v{hG+4*u+3}, v{hNC}")
            A("s_or_b64 s[38:39], s[4:5], s[6:7]")
            A("s_or_b64 s[38:39], s[38:39], s[8:9]")
            A("s_or_b64 s[38:39], s[38:39], s[10:11]")
            A(f"s_cbranch_scc0 {Ld}")
            if psleep:
                A(f"s_sleep {psleep}")
            for u, l in enumerate(dl):
                A(f"s_mov_b64 exec, s[{4+2*u}:{5+2*u}]")
                A(l)
            A("s_mov_b64 exec, -1")
            A("s_sub_u32 s81, s81, 1")
            A("s_cmp_lg_u32 s81, 0")
            A(f"s_cbranch_scc1 {Lp}")
            A("s_waitcnt vmcnt(0)")
            A.label(Ld)
            A.pads_pause(False)
            stamp(st)
            for u in range(4):
                g = hG + 4 * u
                A(f"v_lshlrev_b32 v{hT}, 24, v{g}")
                A(f"v_and_b32 v{hT+1}, 0xff, v{g+1}")
                A(f"v_lshl_or_b32 v{hT}, v{hT+1}, 16, v{hT}")
                A(f"v_and_b32 v{hT+1}, 0xff, v{g+2}")
                A(f"v_lshl_or_b32 v{g+3}, v{hT+1}, 8, v{hT}")
                for e in range(3):
                    A(f"v_and_b32 v{g+e}, 0xffffff00, v{g+e}")
            for e in range(4):
                A(f"v_add_f32 v{hG+e}, v{hG+e}, v{hG+4+e}")
                A(f"v_add_f32 v{hG+8+e}, v{hG+8+e}, v{hG+12+e}")
            for e in range(4):
                A(f"v_add_f32 v{hG+e}, v{hG+e}, v{hG+8+e}")
            for e in range(4):
                A(f"v_add_f32_dpp v{hG+e}, v{hG+e}, v{hG+e} row_ror:8 {DPP}")
            for sw in ("v_permlane16_swap_b32", "v_permlane32_swap_b32"):
                for e in range(4):
                    A(f"v_mov_b32 v{hG+4+e}, v{hG+e}")
                for e in range(4):
                    A(f"{sw} v{hG+e}, v{hG+4+e}")
                for e in range(4):
                    A(f"v_add_f32 v{hG+e}, v{hG+e}, v{hG+4+e}")
            for p_ in range(2):
                A(f"v_cvt_pk_bf16_f32 v{hG+4+p_}, v{hG+2*p_}, v{hG+2*p_+1}")
            for p_ in range(2):
                A(f"v_lshlrev_b32 v{hG+2*p_}, 16, v{hG+4+p_}")
                A(f"v_and_b32 v{hG+2*p_+1}, 0xffff0000, v{hG+4+p_}")
            for e in range(4):
                A(f"v_add_f32 v{hG+e}, v{hG+e}, v{hRS+e}")
            for p_ in range(2):
                A(f"v_cvt_pk_bf16_f32 v{hG+4+p_}, v{hG+2*p_}, v{hG+2*p_+1}")
            for p_ in range(2):
                A(f"v_lshlrev_b32 v{hRS+2*p_}, 16, v{hG+4+p_}")
                A(f"v_and_b32 v{hRS+2*p_+1}, 0xffff0000, v{hG+4+p_}")
            A(f"v_cndmask_b32 v{hG+6}, v{hG+5}, v{hG+4}, s[34:35]")
            A(f"v_cndmask_b32 v{hG+7}, v{hG+4}, v{hG+5}, s[34:35]")
            A(f"v_mov_b32_dpp v{hG+6}, v{hG+6} quad_perm:[1,0,3,2] {DPP}")
            A(f"v_cndmask_b32 v{hG+4}, v{hG+7}, v{hG+6}, s[34:35]")
            A(f"v_cndmask_b32 v{hG+5}, v{hG+6}, v{hG+7}, s[34:35]")
            A(f"v_and_b32 v{hD}, 0xffff, v{hG+4}")
            A(f"v_lshl_or_b32 v{hD}, v{hG+5}, 16, v{hD}")
            A(f"v_and_b32 v{hG+5}, 0xffff0000, v{hG+5}")
            A(f"v_lshrrev_b32 v{hD+1}, 16, v{hG+4}")
            A(f"v_or_b32 v{hD+1}, v{hD+1}, v{hG+5}")

        reduce32c(YP_OFF, 4)
        A(f"v_mov_b32 v{hD+2}, v{hNC}")
        A(f"v_mov_b32 v{hD+3}, v{hNC+1}")
        A("s_mov_b64 exec, 0xff")
        A(f"buffer_store_dwordx4 v[{hD}:{hD+3}], v{hAD+2}, {S_WS}, s36 offen sc1")
        A("s_mov_b64 exec, -1")
        stamp(5)
        reduce32c(ZP_OFF, 6)
        A("s_mov_b64 exec, 0xff")
        A(f"buffer_store_dword v{hD}, v{hAD}, {S_OUT}, s37 offen")
        A(f"buffer_store_dword v{hD+1}, v{hAD}, {S_OUT}, s37 offen offset:1280")
        A("s_mov_b64 exec, -1")
        if pads:
            A.pads_end("L_padret_red")
        A("s_branch L_h_end")
    else:
        A(f"v_and_b32 v{hT+2}, 1, v0")
        A(f"v_mul_u32_u24 v{hAD}, 2560, v{hT+2}")
        A(f"v_and_b32 v{hT+3}, 14, v0")
        A(f"v_add_u32 v{hAD}, v{hAD}, v{hT+3}")
        A(f"buffer_load_ushort v{hX}, v{hAD}, {S_X}, s37 offen")
        A(f"buffer_load_ushort v{hX+1}, v{hAD}, {S_X}, s37 offen offset:1280")
        A(f"v_bfe_u32 v{hT+3}, v0, 2, 2")
        A(f"v_lshlrev_b32 v{hAD+2}, 5, v{hT+3}")
        A(f"v_lshl_add_u32 v{hAD+2}, v{hT+2}, 4, v{hAD+2}")
        A(f"v_lshrrev_b32 v{hT+2}, 4, v0")
        A(f"v_mul_u32_u24 v{hAD+1}, 20480, v{hT+2}")
        A(f"v_and_b32 v{hT+2}, 15, v0")
        A(f"v_lshl_add_u32 v{hAD+1}, v{hT+2}, 4, v{hAD+1}")
        hRS = hB
        A("s_waitcnt vmcnt(0)")
        A(f"v_lshlrev_b32 v{hRS}, 16, v{hX}")
        A(f"v_lshlrev_b32 v{hRS+1}, 16, v{hX+1}")
        warm_code("L_tail_red", "L_role_ffn", hT + 5)
        warm_icache("red")
        A("s_barrier")
        A.label("L_tail_red")
        if pads:
            A.pads_begin("L_pad0_red", pads)
        stamp(3)

        def reduce32(base_off, st):
            A("s_lshl_b32 s76, s33, 8")
            A(f"s_add_u32 s76, s76, {base_off}")
            lt = []
            for u in range(8):
                lt.append(f"buffer_load_dwordx4 v[{hG+4*u}:{hG+4*u+3}], v{hAD+1}, {S_WS}, s76 offen sc1")
                lt.append(f"s_add_u32 s76, s76, {4*20480}" if u < 7 else f"s_sub_u32 s76, s76, {7*4*20480}")
            if selpoll:
                for u in range(8):
                    A(f"s_add_u32 s{20+u}, s76, {4*20480*u}")
                poll_sel([([f"buffer_load_dwordx4 v[{hG+4*u}:{hG+4*u+3}], v{hAD+1}, {S_WS}, s{20+u} offen sc1"], [hG + 4 * u + 2]) for u in range(8)],
                         hNC, sleep=psleep)
            else:
                poll_tagged(lt, [hG + 4 * u + 2 for u in range(8)], hNC, hT, sleep=psleep)
            stamp(st)
            for st2 in (4, 2, 1):
                for u in range(st2):
                    for e in range(2):
                        A(f"v_add_f32 v{hG+4*u+e}, v{hG+4*u+e}, v{hG+4*(u+st2)+e}")
            for sw in ("v_permlane16_swap_b32", "v_permlane32_swap_b32"):
                for e in range(2):
                    A(f"v_mov_b32 v{hG+4+e}, v{hG+e}")
                for e in range(2):
                    A(f"{sw} v{hG+e}, v{hG+4+e}")
                for e in range(2):
                    A(f"v_add_f32 v{hG+e}, v{hG+e}, v{hG+4+e}")
            A(f"v_cvt_pk_bf16_f32 v{hG}, v{hG}, v{hG+1}")
            A(f"v_lshlrev_b32 v{hG+2}, 16, v{hG}")
            A(f"v_and_b32 v{hG+3}, 0xffff0000, v{hG}")
            A(f"v_add_f32 v{hG+2}, v{hG+2}, v{hRS}")
            A(f"v_add_f32 v{hG+3}, v{hG+3}, v{hRS+1}")
            A(f"v_cvt_pk_bf16_f32 v{hG}, v{hG+2}, v{hG+3}")
            A(f"v_lshlrev_b32 v{hRS}, 16, v{hG}")
            A(f"v_and_b32 v{hRS+1}, 0xffff0000, v{hG}")
            A(f"v_mov_b32_dpp v{hG+1}, v{hG} quad_perm:[2,3,0,1] {DPP}")
            A(f"v_and_b32 v{hD}, 0xffff, v{hG}")
            A(f"v_lshl_or_b32 v{hD}, v{hG+1}, 16, v{hD}")
            A(f"v_and_b32 v{hG+1}, 0xffff0000, v{hG+1}")
            A(f"v_lshrrev_b32 v{hD+1}, 16, v{hG}")
            A(f"v_or_b32 v{hD+1}, v{hD+1}, v{hG+1}")

        reduce32(YP_OFF, 4)
        A(f"v_mov_b32 v{hD+2}, v{hNC}")
        A(f"v_mov_b32 v{hD+3}, v{hNC+1}")
        A("s_mov_b64 exec, 0x3333")
        A(f"buffer_store_dwordx4 v[{hD}:{hD+3}], v{hAD+2}, {S_WS}, s36 offen sc1")
        A("s_mov_b64 exec, -1")
        stamp(5)
        reduce32(ZP_OFF, 6)
        A("s_mov_b64 exec, 0x3333")
        A(f"buffer_store_dword v{hD}, v{hAD}, {S_OUT}, s37 offen")
        A(f"buffer_store_dword v{hD+1}, v{hAD}, {S_OUT}, s37 offen offset:1280")
        A("s_mov_b64 exec, -1")
        if pads:
            A.pads_end("L_padret_red")
        A("s_branch L_h_end")

    A.label("L_role_ffn")
    fA, fD, fWD, fWG = 32, 52, 76, 136
    fD2 = fWG

    def load_wd(z, o, l16, ad):
        A(f"s_mul_i32 s22, {rH}, {48*1280}")
        A("s_mul_i32 s23, s3, 15360")
        A("s_add_u32 s22, s22, s23")
        A(f"s_add_u32 s23, s23, {L_SBUF}")
        lds_wait(z, hT, C_SFREE, 4, sleep=16)
        if "wd" in late:
            lds_wait(z, hT, C_DRY, 1, sleep=8)
        for u in range(15):
            A(f"s_add_u32 m0, s23, {1024*u}")
            A(f"buffer_load_dwordx4 v{l16}, {S_WD}, s22 offen nt lds")
            A("s_add_u32 s22, s22, 1024")
        A("s_mul_i32 s23, s3, 320")
        A(f"s_add_u32 s23, s23, {L_SBUF}")
        tr_addr(ad, 1280, "s23", k16=True)
        A("s_waitcnt vmcnt(0)")
        lds_inc(z, o, C_WSYNC)
        lds_wait(z, hT, C_WSYNC, 4, sleep=4)
        for nt in range(10):
            for t in range(3):
                r = fWD + 2 * (nt * 3 + t)
                A(f"ds_read_b64_tr_b16 v[{r}:{r+1}], v{ad} offset:{16*t*1280+32*nt}")
        A("s_waitcnt lgkmcnt(0)")

    A(f"s_mul_i32 s32, {rH}, {10240 if ypc else 20480}")
    A(f"s_mul_i32 s77, s3, {2560 if ypc else 5120}")
    set_sel()
    A("s_add_u32 s32, s32, s77")
    A(f"s_add_u32 s32, s32, {ZP_OFF}")
    A("s_add_u32 s33, s32, 4096")
    if touch_y:
        for k in range(4):
            A(f"v_mov_b32 v{hG+k}, 0")
        for k in range(5):
            A(f"buffer_store_dwordx4 v[{hG}:{hG+3}], v{hL16}, {S_WS}, {'s32' if k < 4 else 's33'} offen offset:{1024*(k&3)} sc1")
    if not noweights:
        A(f"v_mul_u32_u24 v{hT}, 43, v0")
        A(f"v_lshrrev_b32 v{hT}, 8, v{hT}")
        A(f"v_mul_u32_u24 v{hT+1}, 6, v{hT}")
        A(f"v_sub_u32 v{hT+1}, v0, v{hT+1}")
        A(f"v_mul_u32_u24 v{hAD}, 3072, v{hT}")
        A(f"v_lshl_add_u32 v{hAD}, v{hT+1}, 4, v{hAD}")
        if "gu" in late:
            A("s_mul_i32 s78, s3, 24576")
            A(f"s_add_u32 s78, s78, {L_SBUF}")
            tr_addr(hAD + 1, 96, "s78")
            tr_addr(hAD + 2, 96, "s83")
            lds_wait(hZ, hT, C_SFREE, 4, sleep=16)
            lds_wait(hZ, hT, C_DRY, 1, sleep=8)
            A("s_mov_b32 exec_hi, 0xffff")
            for mi, srdn in enumerate((S_WG, S_WU)):
                A(f"s_mul_i32 s76, {rH}, 96")
                A(f"s_mul_i32 s77, s3, {160*3072}")
                A("s_add_u32 s76, s76, s77")
                for u in range(20):
                    if mi == 1 and u >= 12:
                        A(f"s_add_u32 m0, s83, {768*(u-12)}")
                    else:
                        A(f"s_add_u32 m0, s78, {15360*mi+768*u}")
                    A(f"buffer_load_dwordx4 v{hAD}, {srdn}, s76 offen nt lds")
                    A(f"s_add_u32 s76, s76, {8*3072}")
            A("s_mov_b32 exec_hi, -1")
            for mi in range(2):
                A(f"s_waitcnt vmcnt({20*(1-mi)})")
                for tile in range(3):
                    for t in range(5):
                        for hf in range(2):
                            r = fWG + 4 * ((mi * 3 + tile) * 5 + t) + 2 * hf
                            if mi == 1 and t >= 3:
                                A(f"ds_read_b64_tr_b16 v[{r}:{r+1}], v{hAD+2} offset:{(32*(t-3)+4*hf)*96+32*tile}")
                            else:
                                A(f"ds_read_b64_tr_b16 v[{r}:{r+1}], v{hAD+1} offset:{15360*mi+(32*t+4*hf)*96+32*tile}")
            A("s_waitcnt lgkmcnt(0)")
            lds_inc(hZ, hONE, C_WSYNC2)
            lds_wait(hZ, hT, C_WSYNC2, 4, sleep=2)
        else:
            tr_addr(hAD + 1, 96, "s83")
            if NL > 4:
                lds_wait(hZ, hT, C_SFREE, 4, sleep=16)
            for mi, srdn in enumerate((S_WG, S_WU)):
                A(f"s_mul_i32 s76, {rH}, 96")
                A(f"s_mul_i32 s77, s3, {160*3072}")
                A("s_add_u32 s76, s76, s77")
                for (t0_, nt) in ((0, 3), (3, 2)):
                    A("s_mov_b32 exec_hi, 0xffff")
                    for u in range(4 * nt):
                        A(f"s_add_u32 m0, s83, {768*u}")
                        A(f"buffer_load_dwordx4 v{hAD}, {srdn}, s76 offen nt lds")
                        A(f"s_add_u32 s76, s76, {8*3072}")
                    A("s_mov_b32 exec_hi, -1")
                    A("s_waitcnt vmcnt(0)")
                    for tile in range(3):
                        for t in range(nt):
                            for hf in range(2):
                                r = fWG + 4 * ((mi * 3 + tile) * 5 + t0_ + t) + 2 * hf
                                A(f"ds_read_b64_tr_b16 v[{r}:{r+1}], v{hAD+1} offset:{(32*t+4*hf)*96+32*tile}")
                    A("s_waitcnt lgkmcnt(0)")
        if "b4" not in late:
            load_wd(hZ, hONE, hL16, hAD + 1)
    fXW, fAF, fRW, fRR, fAW, fA2, fHL = 5, 6, 7, 72, 73, 74, 75
    fD = 52
    fRR, fAW, fA2, fHL = 1, 2, 3, 4
    A("s_mul_i32 s75, s3, 1280")
    A("s_lshr_b32 s79, s3, 1")
    A("s_lshl_b32 s79, s79, 4")
    A(f"s_add_u32 s76, s79, {HB_OFF}")
    A("s_add_u32 s77, s76, 4096")
    A("s_add_u32 s78, s76, 8192")
    A(f"v_add_u32 v{fXW}, s75, v{hL4}")
    A(f"v_and_b32 v{hT}, 3, v0")
    A(f"v_lshrrev_b32 v{hT+1}, 4, v0")
    A(f"v_mul_u32_u24 v{fAF}, 1280, v{hT}")
    A(f"v_lshl_add_u32 v{fAF}, v{hT+1}, 4, v{fAF}")
    A("s_mul_i32 s79, s3, 320")
    A(f"v_add_u32 v{fAF}, s79, v{fAF}")
    A("s_mul_i32 s79, s3, 1536")
    A(f"v_add_u32 v{fRW}, s79, v{hL16}")
    A(f"v_and_b32 v{hT+2}, 15, v0")
    A(f"v_lshlrev_b32 v{fRR}, 4, v{hT+2}")
    A(f"v_lshl_add_u32 v{fRR}, v{hT+1}, 2, v{fRR}")
    A("s_lshl_b32 s79, s3, 8")
    A(f"v_add_u32 v{fRR}, s79, v{fRR}")
    A(f"v_mul_u32_u24 v{fAW}, 96, v{hT+1}")
    A(f"v_lshl_add_u32 v{fAW}, v{hT+2}, 1, v{fAW}")
    A("s_lshl_b32 s79, s3, 5")
    A(f"v_add_u32 v{fAW}, s79, v{fAW}")
    A(f"v_mul_u32_u24 v{fA2}, 96, v{hT}")
    A(f"v_lshl_add_u32 v{fA2}, v{hT+1}, 3, v{fA2}")
    A(f"v_lshlrev_b32 v{fHL}, 5, v0")
    A("s_bitcmp1_b32 s3, 0")
    A("s_cselect_b64 s[36:37], -1, 0")
    warm_code("L_tail_ffn", "L_end", hT + 5)
    warm_icache("ffn")
    A("s_barrier")
    if "b4" in late and not noweights:
        A(f"v_mov_b32 v{hX}, 0")
        A(f"v_mov_b32 v{hX+1}, 1")
        A(f"v_lshlrev_b32 v{hX+2}, 4, v0")
        load_wd(hX, hX + 1, hX + 2, hX + 3)
    A.label("L_tail_ffn")
    if pads:
        A.pads_begin("L_pad0_ffn", pads)
    stamp(3)
    lt = [f"buffer_load_dwordx4 v[{fA+4*u}:{fA+4*u+3}], v{fHL}, {S_WS}, s{76+(u>>1)} offen offset:{2048*(u&1)} sc1" for u in range(5)]
    if selpoll:
        poll_sel([([lt[u]], [fA + 4 * u + 2]) for u in range(5)], hNC, sleep=psleep)
    else:
        poll_tagged(lt, [fA + 4 * u + 2 for u in range(5)], hNC, hT, sleep=psleep)
    stamp(4)
    for u in range(5):
        A(f"v_cndmask_b32 v{hX+u}, v{fA+4*u}, v{fA+4*u+1}, s[36:37]")
    layernorm([hX + u for u in range(5)], hX, hF, hT)
    for u in range(5):
        A(f"ds_write_b32 v{fXW}, v{hX+u} offset:{L_XN+256*u}")
    A("s_waitcnt lgkmcnt(0)")
    A("s_barrier")
    for t in range(5):
        A(f"ds_read_b128 v[{fA+4*t}:{fA+4*t+3}], v{fAF} offset:{L_XN+64*t}")
    for t in range(5):
        A(f"s_waitcnt lgkmcnt({4-t})")
        for tile in range(6):
            r = fWG + 4 * (tile * 5 + t)
            c = "0" if t == 0 else f"v[{fD+4*tile}:{fD+4*tile+3}]"
            A(f"v_mfma_f32_16x16x32_bf16 v[{fD+4*tile}:{fD+4*tile+3}], v[{fA+4*t}:{fA+4*t+3}], v[{r}:{r+3}], {c}")
    A("s_mov_b64 exec, 0xffff")
    for tile in range(6):
        A(f"ds_write_b128 v{fRW}, v[{fD+4*tile}:{fD+4*tile+3}] offset:{L_RED+256*tile}")
    A("s_mov_b64 exec, -1")
    A("s_waitcnt lgkmcnt(0)")
    A("s_barrier")
    A("s_cmp_eq_u32 s3, 3")
    A("s_cbranch_scc1 L_noact")
    for ww in range(4):
        for gu in range(2):
            A(f"ds_read_b32 v{hF+4*gu+ww}, v{fRR} offset:{L_RED+1536*ww+768*gu}")
    A("s_waitcnt lgkmcnt(0)")
    for gu in range(2):
        f = hF + 4 * gu
        A(f"v_add_f32 v{f}, v{f}, v{f+1}")
        A(f"v_add_f32 v{f+2}, v{f+2}, v{f+3}")
        A(f"v_add_f32 v{f}, v{f}, v{f+2}")
    rnd(hF, hF)
    rnd(hF + 4, hF + 4)
    A(f"v_mul_f32 v{hF+1}, 0xbfb8aa3b, v{hF}")
    A(f"v_exp_f32 v{hF+1}, v{hF+1}")
    A(f"v_add_f32 v{hF+1}, 1.0, v{hF+1}")
    A(f"v_rcp_f32 v{hF+1}, v{hF+1}")
    A(f"v_mul_f32 v{hF}, v{hF}, v{hF+1}")
    rnd(hF, hF)
    A(f"v_mul_f32 v{hF}, v{hF}, v{hF+4}")
    A(f"v_cvt_pk_bf16_f32 v{hF}, v{hF}, v{hF}")
    A(f"ds_write_b16 v{fAW}, v{hF} offset:{L_OL}")
    A("s_waitcnt lgkmcnt(0)")
    A.label("L_noact")
    if ypc:
        A(f"v_and_b32 v{hT}, 16, v0")
        A(f"v_cmp_ne_u32 s[34:35], 0, v{hT}")
        A("v_cmp_lt_u32 s[38:39], 31, v0")
        A(f"v_lshlrev_b32 v{hGO}, 4, v0")
        for p in range(3):
            A(f"v_mov_b32 v{fD+4*p+3}, v{hNC}")
    elif fast2:
        A(f"v_and_b32 v{hT}, 16, v0")
        A(f"v_cmp_ne_u32 s[34:35], 0, v{hT}")
        A("v_cmp_lt_u32 s[38:39], 31, v0")
        A(f"v_lshrrev_b32 v{hT}, 5, v0")
        A(f"v_lshl_add_u32 v{hGO}, v{hT}, 9, v{hGO}")
        for p in range(5):
            A(f"v_mov_b32 v{fD+4*p+2}, v{hNC}")
            A(f"v_mov_b32 v{fD+4*p+3}, v{hNC+1}")
    A("s_barrier")
    for t in range(3):
        A(f"ds_read_b64 v[{fA+2*t}:{fA+2*t+1}], v{fA2} offset:{L_OL+32*t}")
    if ypc:
        fO = fD
        A("s_waitcnt lgkmcnt(0)")

        def quad_store(p):
            n = 4 if p < 2 else 2
            t_ = [fD2 + 16 * p + 4 * i for i in range(n)]
            for e in range(4):
                A(f"v_cndmask_b32 v{t_[0]+e}, v{t_[0]+e}, v{t_[1]+e}, s[34:35]")
                if n == 4:
                    A(f"v_cndmask_b32 v{t_[2]+e}, v{t_[2]+e}, v{t_[3]+e}, s[34:35]")
                    A(f"v_cndmask_b32 v{t_[0]+e}, v{t_[0]+e}, v{t_[2]+e}, s[38:39]")
            pack24(fO + 4 * p, t_[0])
            if n == 2:
                A("s_mov_b32 exec_hi, 0")
            A(f"buffer_store_dwordx4 v[{fO+4*p}:{fO+4*p+3}], v{hGO}, {S_WS}, s32 offen offset:{1024*p} sc1")
            if n == 2:
                A("s_mov_b32 exec_hi, -1")
        for nt in range(10):
            for t in range(3):
                r = fWD + 2 * (nt * 3 + t)
                c = "0" if t == 0 else f"v[{fD2+4*nt}:{fD2+4*nt+3}]"
                A(f"v_mfma_f32_16x16x16_bf16 v[{fD2+4*nt}:{fD2+4*nt+3}], v[{fA+2*t}:{fA+2*t+1}], v[{r}:{r+1}], {c}")
            if nt == 5:
                quad_store(0)
            if nt == 9:
                quad_store(1)
        quad_store(2)
    elif fast2:
        fO = fD
        A("s_waitcnt lgkmcnt(0)")

        def pair_store(p):
            ta, tb, o = fD2 + 8 * p, fD2 + 8 * p + 4, fO + 4 * p
            for e in range(2):
                A(f"v_cndmask_b32 v{ta+e}, v{ta+e}, v{ta+2+e}, s[34:35]")
                A(f"v_cndmask_b32 v{tb+e}, v{tb+e}, v{tb+2+e}, s[34:35]")
                A(f"v_cndmask_b32 v{o+e}, v{ta+e}, v{tb+e}, s[38:39]")
            A(f"buffer_store_dwordx4 v[{o}:{o+3}], v{hGO}, {S_WS}, {'s32' if p < 4 else 's33'} offen offset:{1024*(p&3)} sc1")
        for nt in range(10):
            for t in range(3):
                r = fWD + 2 * (nt * 3 + t)
                c = "0" if t == 0 else f"v[{fD2+4*nt}:{fD2+4*nt+3}]"
                A(f"v_mfma_f32_16x16x16_bf16 v[{fD2+4*nt}:{fD2+4*nt+3}], v[{fA+2*t}:{fA+2*t+1}], v[{r}:{r+1}], {c}")
            if nt >= 3 and nt % 2 == 1:
                pair_store((nt - 3) // 2)
        pair_store(4)
    else:
        for t in range(3):
            A(f"s_waitcnt lgkmcnt({2-t})")
            for nt in range(10):
                r = fWD + 2 * (nt * 3 + t)
                c = "0" if t == 0 else f"v[{fD2+4*nt}:{fD2+4*nt+3}]"
                A(f"v_mfma_f32_16x16x16_bf16 v[{fD2+4*nt}:{fD2+4*nt+3}], v[{fA+2*t}:{fA+2*t+1}], v[{r}:{r+1}], {c}")
        A("s_mov_b32 exec_hi, 0")
        for nt in range(10):
            split_halves(fD2 + 4 * nt)
            A(f"buffer_store_dwordx4 v[{fD2+4*nt}:{fD2+4*nt+3}], v{hGO}, {S_WS}, {'s32' if nt < 8 else 's33'} offen offset:{512*(nt&7)} sc1")
        A("s_mov_b32 exec_hi, -1")
    if pads:
        A.pads_end("L_padret_ffn")
    stamp(5)
    A.label("L_h_end")
    stamp(7)
    stamp_flush(32)
    A.label("L_end")
    A("s_endpgm")
    s = wrap(A.text(), HEADER + DOC, 256, 512, LDS_BYTES, 256, 102)
    s = s.replace("  .amdhsa_group_segment_fixed_size 0\n", "  .amdhsa_group_segment_fixed_size 0\n  .amdhsa_float_denorm_mode_32 3\n")
    return s


if __name__ == "__main__":
    kw = eval("dict(%s)" % (sys.argv[2] if len(sys.argv) > 2 else ""))
    open(sys.argv[1], "w").write(gen(**kw))
```
